```python
import torch

def _softmax(x, axis=-1):
    return torch.softmax(x, dim=axis)
def _gelu(x):
    return torch.nn.functional.gelu(x, approximate="tanh")
def _silu(x):
    return torch.nn.functional.silu(x)
def _sigmoid(x):
    return torch.sigmoid(x)
def _layernorm(x, axis=-1, eps=1e-5):
    m = x.mean(dim=axis, keepdim=True)
    v = x.var(dim=axis, keepdim=True, unbiased=False)
    return (x - m) / torch.sqrt(v + eps)
def _scatter_add(tgt, idx, src, axis=0):
    return tgt.clone().index_add_(axis, idx, src)
def _segment_sum(src, seg, n):
    out = torch.zeros((n,) + src.shape[1:], dtype=src.dtype)
    return out.index_add_(0, seg, src)
def _pad(x, pw):
    flat = tuple(v for pair in reversed(pw) for v in pair)
    return torch.nn.functional.pad(x, flat)

kernel_name = 'recurrent_scan__ssm_conv_s5__mixer_channel_mlp__prompt'

def setup_inputs():

    _w = (lambda a: (lambda t: t.to(torch.bfloat16) if t.is_floating_point() else t)(torch.as_tensor(a)))
    def _A_setup():
        B, S, D = 1, 2048, 576
        P = D
        Lambda_re = -0.5 * (lambda _x: torch.exp(torch.as_tensor(_x)))((lambda *s: torch.randn(*s, dtype=torch.bfloat16) * 0.2)(P))
        Lambda_im = (lambda *s: torch.randn(*s, dtype=torch.bfloat16) * 0.8)(P) * 1.0
        B_re = (lambda *s: torch.randn(*s, dtype=torch.bfloat16) * 0.2)(P, D) * (D ** -0.5)
        B_im = (lambda *s: torch.randn(*s, dtype=torch.bfloat16) * 0.2)(P, D) * (D ** -0.5)
        C_re = (lambda *s: torch.randn(*s, dtype=torch.bfloat16) * 0.2)(D, P) * (P ** -0.5)
        C_im = (lambda *s: torch.randn(*s, dtype=torch.bfloat16) * 0.2)(D, P) * (P ** -0.5)
        log_dt = (lambda *s: torch.randn(*s, dtype=torch.bfloat16) * 0.2)(P) * 0.3 - 2.0
        Dskip = (lambda *s: torch.randn(*s, dtype=torch.bfloat16) * 0.05)(D)
        return {
            "x": _w((lambda *s: torch.randn(*s, dtype=torch.bfloat16) * 0.05)(B, S, D)),
            "Lambda_re": _w(Lambda_re),
            "Lambda_im": _w(Lambda_im),
            "B_re": _w(B_re),
            "B_im": _w(B_im),
            "C_re": _w(C_re),
            "C_im": _w(C_im),
            "log_dt": _w(log_dt),
            "Dskip": _w(Dskip),
        }
    _A_in = _A_setup()

    def _B_setup():
        B, S, D, F = 1, 2048, 576, 4608
        return {
            "x": _w((lambda *s: torch.randn(*s, dtype=torch.bfloat16) * 0.05)(B, S, D)),
            "w1": _w((lambda *s: torch.randn(*s, dtype=torch.bfloat16) * 3.2)(D, F) * (D ** -0.5)),
            "b1": _w((lambda *s: torch.randn(*s, dtype=torch.bfloat16) * 1.6)(F)),
            "w2": _w((lambda *s: torch.randn(*s, dtype=torch.bfloat16) * 0.1)(F, D) * (F ** -0.5)),
            "b2": _w((lambda *s: torch.randn(*s, dtype=torch.bfloat16) * 0.1)(D)),
        }
    _B_in = _B_setup()

    return {
        "A_x": _A_in["x"],
        "A_Lambda_re": _A_in["Lambda_re"],
        "A_Lambda_im": _A_in["Lambda_im"],
        "A_B_re": _A_in["B_re"],
        "A_B_im": _A_in["B_im"],
        "A_C_re": _A_in["C_re"],
        "A_C_im": _A_in["C_im"],
        "A_log_dt": _A_in["log_dt"],
        "A_Dskip": _A_in["Dskip"],
        "B_x": _B_in["x"],
        "B_w1": _B_in["w1"],
        "B_b1": _B_in["b1"],
        "B_w2": _B_in["w2"],
        "B_b2": _B_in["b2"],
    }

def reference(A_x, A_Lambda_re, A_Lambda_im, A_B_re, A_B_im, A_C_re, A_C_im, A_log_dt, A_Dskip, B_x, B_w1, B_b1, B_w2, B_b2):
    def _A_ref(x, Lambda_re, Lambda_im, B_re, B_im, C_re, C_im, log_dt, Dskip):
        Bsz, L, H = x.shape
        Lam = Lambda_re + 1j * Lambda_im
        Bmat = B_re + 1j * B_im
        Cmat = C_re + 1j * C_im
        dt = torch.exp(log_dt)
        Lam_bar = torch.exp(dt * Lam)
        B_bar = ((Lam_bar - 1.0) / Lam)[:, None] * Bmat
        Bu = torch.einsum("bld,pd->blp", x + 0j, B_bar)
        h = torch.zeros_like(Bu[:, 0, :])
        hs = []
        for t in range(L):
            h = Lam_bar[None, :] * h + Bu[:, t, :]
            hs.append(h)
        hseq = torch.stack(hs, 1)
        y = 2.0 * torch.einsum("blp,dp->bld", hseq, Cmat).real + x * Dskip[None, None, :]
        return y

    def _B_ref(x, w1, b1, w2, b2):
        y = _layernorm(x, axis=-1)
        h = _gelu(torch.einsum("bsd,df->bsf", y, w1) + b1)
        return torch.einsum("bsf,fd->bsd", h, w2) + b2

    x = A_x
    xn = _layernorm(x, axis=-1)
    s = _A_ref(xn, A_Lambda_re, A_Lambda_im, A_B_re, A_B_im, A_C_re, A_C_im, A_log_dt, A_Dskip)
    g = _silu(_B_ref(xn, B_w1, B_b1, B_w2, B_b2))
    return x + s * g
```

```python
import re, struct

def f2u(x):
    return struct.unpack("<I", struct.pack("<f", x))[0]

def hexf(x):
    return "0x%08x" % f2u(x)

def vr(b, n=1):
    return f"v{b}" if n == 1 else f"v[{b}:{b+n-1}]"

def sr(b, n=1):
    return f"s{b}" if n == 1 else f"s[{b}:{b+n-1}]"

_reg = re.compile(r"^(-|\|)?([vsa])(?:(\d+)|\[(\d+):(\d+)\])\|?$")

def regs_of(tok):
    tok = tok.strip()
    if tok in ("vcc", "vcc_lo", "vcc_hi"): return {"vcc"}
    if tok in ("exec",): return {"exec"}
    if tok == "m0": return {"m0"}
    m = _reg.match(tok)
    if not m: return set()
    k = m.group(2)
    if m.group(3) is not None: return {k + m.group(3)}
    return {k + str(i) for i in range(int(m.group(4)), int(m.group(5)) + 1)}

TRANS = ("v_exp_f32", "v_log_f32", "v_rcp_f32", "v_rsq_f32", "v_sqrt_f32", "v_sin_f32", "v_cos_f32")

class Ins:
    def __init__(self, text):
        self.text = text
        t = text.split(";")[0].strip()
        self.label = t.endswith(":") or t.startswith(".") or t == ""
        self.op = "" if self.label else t.split()[0]
        self.wr = set(); self.rd = set(); self.srcC = set(); self.ab = set()
        if self.label: return
        rest = t[len(self.op):].strip()
        toks = []
        for p in rest.split(","):
            p = p.strip()
            if p: toks.append(p.split()[0])
        self.toks = toks
        op = self.op
        self.mfma = op.startswith("v_mfma")
        self.valu = op.startswith("v_") and not self.mfma
        self.salu = op.startswith("s_")
        self.ds = op.startswith("ds_")
        self.vmem = op.startswith(("buffer_", "global_"))
        self.dpp = "quad_perm" in t or "row_" in t.replace("row_mask", "") or "_dpp" in op
        self.dot = op.startswith("v_dot")
        self.trans = op.replace("_e32", "").replace("_e64", "") in TRANS
        self.lds_dma = self.vmem and re.search(r"\blds\b", t) is not None
        R = [regs_of(x) for x in toks]
        if self.mfma:
            self.wr = R[0]; self.ab = R[1] | R[2]; self.srcC = R[3]; self.rd = self.ab | self.srcC
        elif self.valu:
            if op.startswith("v_permlane") and "swap" in op:
                self.wr = R[0] | R[1]; self.rd = R[0] | R[1]
            elif op.startswith("v_cmp"):
                self.wr = R[0]; self.rd = set().union(*R[1:])
            else:
                self.wr = R[0]; self.rd = set().union(*R[1:]) if len(R) > 1 else set()
                if op.startswith(("v_fmac", "v_dot2c", "v_mac", "v_writelane")) or self.dpp: self.rd |= R[0]
                if op.startswith("v_cndmask") and len(toks) == 3: self.rd |= {"vcc"}
                if "_co_" in op: self.wr |= R[1]
        elif self.ds:
            if op.startswith(("ds_read", "ds_bpermute", "ds_permute", "ds_swizzle")) or "_rtn" in op:
                self.wr = R[0]; self.rd = set().union(*R[1:])
            else:
                self.rd = set().union(*R)
        elif self.vmem:
            if op in ("buffer_inv", "buffer_wbl2"): pass
            elif self.lds_dma: self.rd = set().union(*R) | {"m0"}
            elif "load" in op: self.wr = R[0]; self.rd = set().union(*R[1:])
            else:
                self.rd = set().union(*R); self.stdata = R[0] if op.startswith("buffer_") else R[1]
                if "atomic" in op and " sc0" in t: self.wr = R[0]
        elif self.salu:
            if op.startswith(("s_cmp", "s_cbranch", "s_branch", "s_waitcnt", "s_barrier", "s_nop", "s_endpgm", "s_setprio", "s_sleep", "s_bitcmp")):
                self.rd = set().union(*R) if R else set()
            else:
                self.wr = R[0] if R else set(); self.rd = set().union(*R[1:]) if len(R) > 1 else set()
                if "saveexec" in op: self.wr |= {"exec"}

    def states(self):
        if self.label: return 0
        if self.op == "s_nop": return int(self.toks[0]) + 1
        return 1

def check_hazards(lines):
    ins = [Ins(l) for l in lines]
    errs = []
    for i, c in enumerate(ins):
        if c.label: continue
        d = 0
        j = i - 1
        while j >= 0 and d < 14:
            p = ins[j]
            if not p.label:
                if p.op in ("s_endpgm", "s_branch"): break
                need = 0
                vw = {r for r in p.wr if r[0] in "va" and r != "vcc"}
                sw = {r for r in p.wr if r[0] == "s" or r == "vcc"}
                if p.mfma:
                    if c.mfma:
                        if c.ab & p.wr: need = 12
                        if c.srcC & p.wr and c.srcC != p.wr: need = max(need, 10)
                        if (c.wr & p.wr) and not (c.srcC == p.wr): need = max(need, 10)
                    elif (c.rd | c.wr) & p.wr: need = 12
                    if c.valu and (c.wr & p.srcC): need = max(need, 7)
                elif p.valu:
                    if c.mfma and (c.rd & vw): need = 3 if p.dot else 2
                    if c.valu and c.dpp and (c.rd & vw): need = max(need, 2)
                    if c.op.startswith("v_permlane") and (c.rd & vw): need = max(need, 2)
                    if c.op.startswith(("v_readlane", "v_readfirstlane")) and (c.rd & vw): need = max(need, 1)
                    if p.trans and c.valu and not c.trans and (c.rd & vw): need = max(need, 1)
                    if p.dot and ((c.rd | c.wr) & vw):
                        if c.op != p.op: need = max(need, 3)
                        else:
                            R = [regs_of(x) for x in c.toks]
                            if (R[1] | R[2]) & vw: need = max(need, 3)
                    if c.vmem and (c.rd & sw): need = max(need, 5)
                    if c.valu and (c.rd & sw): need = max(need, 2)
                    if "exec" in p.wr and (c.dpp): need = max(need, 5)
                    if ("sdwa" in p.op or "op_sel" in p.text) and c.valu and (c.rd & vw): need = max(need, 1)
                elif p.salu:
                    if "m0" in p.wr and c.vmem and c.lds_dma: need = 1
                elif p.vmem and hasattr(p, "stdata") and len(p.stdata) >= 3:
                    if c.wr & p.stdata: need = 2
                if need > d:
                    errs.append(f"hazard need {need} have {d}: [{j}] {p.text.strip()}  ->  [{i}] {c.text.strip()}")
                d += p.states()
            j -= 1
    return errs

class Asm:
    def __init__(self):
        self.L = []
        self.lq = []
        self.vq = []

    def __call__(self, s):
        self.L.append(s)

    def lds(self, s, tag=None):
        self.L.append(s); self.lq.append(tag)

    def vm(self, s, tag=None):
        self.L.append(s); self.vq.append(tag)

    def _need(self, q, tags, mx):
        last = -1
        for i, t in enumerate(q):
            if t in tags: last = i
        if last < 0: return None
        n = len(q) - 1 - last
        n = min(n, mx)
        del q[:len(q) - n]
        return n

    def wait(self, lds=(), vm=()):
        if isinstance(lds, (str, tuple)) and not isinstance(lds, list): lds = [lds] if lds != () else []
        if isinstance(vm, (str, tuple)) and not isinstance(vm, list): vm = [vm] if vm != () else []
        a = self._need(self.lq, lds, 15) if lds else None
        b = self._need(self.vq, vm, 63) if vm else None
        parts = []
        if b is not None: parts.append(f"vmcnt({b})")
        if a is not None: parts.append(f"lgkmcnt({a})")
        if parts: self.L.append("s_waitcnt " + " ".join(parts))

    def wait_all(self, lds=True, vm=False):
        parts = []
        if vm: parts.append("vmcnt(0)"); self.vq = []
        if lds: parts.append("lgkmcnt(0)"); self.lq = []
        self.L.append("s_waitcnt " + " ".join(parts))

    def op(self, o):
        if isinstance(o, str): self(o)
        elif o[0] == "lds": self.lds(o[1], o[2])
        elif o[0] == "vm": self.vm(o[1], o[2])
        elif o[0] == "wl": self.wait(lds=list(o[1]))
        elif o[0] == "wv": self.wait(vm=list(o[1]))
        elif o[0] == "wlv": self.wait(lds=list(o[1]), vm=list(o[2]))
        elif o[0] == "wall": self.wait_all(o[1], o[2])
        else: raise ValueError(o)

    def text(self):
        return "\n".join(self.L) + "\n"
```

```python
import math
from asmlib import *
from gen import *
import gen as G

DPP = "quad_perm:[1,0,3,2] row_mask:0xf bank_mask:0xf"
U = [16 + 16 * t for t in range(5)]
SBUF = 96
sQ = 49

def sel_srd(A, d, pa, pb, nrec, lower):
    A(f"s_cselect_b32 s{d}, s{pb}, s{pa}")
    A(f"s_cselect_b32 s{d+1}, s{pb+1}, s{pa+1}")
    A(f"s_sub_u32 s{d}, s{d}, {lower}")
    A(f"s_subb_u32 s{d+1}, s{d+1}, 0")
    A(f"s_mov_b32 s{d+2}, {nrec + lower}")
    A(f"s_mov_b32 s{d+3}, 0x20000")

def pass1_ops(t):
    u = U[t]
    ops = [("wl", [("k", t)])]
    def coef(i, tmp=2):
        return [f"v_mul_f32_dpp v{tmp}, v{u+i}, v15 {DPP}", f"v_fma_f32 v{u+i}, v{u+i}, v14, v{tmp}"]
    ops += coef(0) + coef(1, 10)
    e = u
    for i in range(1, 16):
        ne = 10 + (i & 1)
        ops += [f"v_fma_f32 v{ne}, v12, v{e}, v{u+i}"]
        if i + 1 < 16: ops += coef(i + 1)
        else: ops += ["s_nop 1"]
        ops += [f"v_fmac_f32_dpp v{ne}, v{e}, v13 {DPP}"]
        e = ne
    ops.append(("lds", f"ds_write_b32 v9, v{e} offset:{t*256}", "ew"))
    return ops

def kread(t):
    return [("lds", f"ds_read_b128 v[12:15], v8 offset:{t*1024}", ("k", t))]

def ssm_path(A, opt):
    D = 3
    A(f"s_sub_u32 s{sQ}, s{sSL}, 12")
    A("v_lshrrev_b32 v9, 5, v0"); A("v_bfe_u32 v10, v0, 1, 4"); A("v_lshl_add_u32 v9, v9, 4, v10")
    A("v_lshlrev_b32 v9, 1, v9")
    A(f"s_mul_i32 s{sT0+2}, s{sQ}, 288")
    for i, pi in enumerate((1, 2, 7)):
        srd(A, SM, kp(pi), 1152)
        A.vm(f"buffer_load_ushort v{49+i}, v9, s[{SM}:{SM+3}], s{sT0+2} offen", "par")
    A("v_mov_b32 v52, v0")
    A(f"s_bitcmp1_b32 s{sW}, 1")
    sel_srd(A, SA, kp(3), kp(4), 663552, 4096)
    A(f"s_cmp_ge_u32 s{sW}, 4")
    sel_srd(A, SB, kp(5), kp(6), 663552, 4096)
    srd(A, SM, kp(15), 256)
    A(f"s_cmp_ge_u32 s{sMT}, 9"); A(f"s_cselect_b32 s{sT0+2}, 9, 0"); A(f"s_sub_u32 s{sROT2}, s{sMT}, s{sT0+2}")
    for i in range(9): A(f"s_mov_b32 s{sD1+i}, {4096 + i*128 - (i%4)*1024}")
    A(f"s_mul_i32 s{sM0W}, s{sW}, 9216")
    A(f"v_lshrrev_b32 v9, 3, v{vLANE}")
    A(f"s_and_b32 s{sT0+2}, s{sW}, 1"); A(f"s_lshl_b32 s{sT0+2}, s{sT0+2}, 3")
    A(f"v_add_u32 v9, s{sT0+2}, v9")
    A(f"v_lshrrev_b32 v10, 1, v9")
    A(f"s_bfe_u32 s{sT0+3}, s{sW}, 0x10001")
    A(f"v_xor_b32 v10, s{sT0+3}, v10")
    A(f"v_and_b32 v11, 7, v{vLANE}")
    A(f"v_xor_b32 v10, v10, v11")
    A(f"s_mul_i32 s{sT0+2}, s{sQ}, 144"); A(f"s_lshl_b32 s{sT0+3}, s{sFG}, 4"); A(f"s_add_u32 s{sT0+2}, s{sT0+2}, s{sT0+3}")
    A(f"v_add_u32 v9, s{sT0+2}, v9")
    A(f"v_mul_u32_u24 v9, 1152, v9")
    A(f"v_lshl_add_u32 v{vDMA2}, v10, 4, v9")
    for i in range(9):
        for o in dma1(A, 0, i): A.op(o)
    nextrow = [f"v_add_u32 v{vDMA2}, {32*1152}, v{vDMA2}"]
    A(f"v_and_b32 v9, 1, v{vLANE}")
    A(f"v_bfe_u32 v10, v{vLANE}, 1, 4")
    A(f"v_lshrrev_b32 v11, 3, v10"); A("v_lshl_add_u32 v11, v9, 1, v11")
    A(f"s_lshl_b32 s{sT0+2}, s{sFG}, 2"); A(f"v_add_u32 v11, s{sT0+2}, v11")
    A("v_mul_u32_u24 v11, 9216, v11")
    A("v_and_b32 v12, 7, v10"); A("v_lshl_add_u32 v11, v12, 7, v11")
    A("v_lshrrev_b32 v10, 1, v10"); A("v_xor_b32 v10, v10, v9")
    A(f"v_lshrrev_b32 v9, 5, v{vLANE}"); A("v_xor_b32 v10, v10, v9")
    A("v_lshl_add_u32 v4, v10, 4, v11")
    for i in range(1, 4): A(f"v_xor_b32 v{4+i}, {32*i}, v4")

    ln_prologue(A, opt, False)
    for o in nextrow: A.op(o)
    for i in range(9):
        for o in dma1(A, 1, i): A.op(o)
    A.wait(vm=["par"])
    for r in (49, 50, 51): A(f"v_lshlrev_b32 v{r}, 16, v{r}")
    L2E = hexf(math.log2(math.e))
    A(f"v_mul_f32 v51, {L2E}, v51"); A("v_exp_f32 v51, v51"); A("s_nop 0")
    bf16r(A, 51, 51)
    A("v_mul_f32 v53, v51, v49"); A("v_mul_f32 v54, v51, v50")
    A(f"v_mul_f32 v53, {L2E}, v53"); A("v_mul_f32 v54, 0.15915494, v54")
    A("v_exp_f32 v53, v53"); A("v_fract_f32 v54, v54")
    A("v_cos_f32 v56, v54"); A("v_sin_f32 v57, v54")
    A("v_mul_f32 v58, v49, v49"); A("v_fma_f32 v58, v50, v50, v58")
    A("v_mul_f32 v56, v56, v53"); A("v_mul_f32 v57, v57, v53")
    A("v_rcp_f32 v58, v58")
    A("v_add_f32 v59, -1.0, v56")
    A("v_mul_f32 v60, v59, v49"); A("v_fma_f32 v60, v57, v50, v60")
    A("v_mul_f32 v61, v57, v49"); A("v_fma_f32 v61, -v59, v50, v61")
    A("v_add_f32 v58, v58, v58")
    A("v_and_b32 v55, 1, v52"); A("v_lshlrev_b32 v55, 31, v55")
    A("v_mul_f32 v60, v60, v58"); A("v_mul_f32 v59, v61, v58")
    A("v_xor_b32 v57, v57, v55")
    A("v_xor_b32 v58, v60, v55")
    A("v_sub_f32 v59, 0, v59")
    A(f"v_lshlrev_b32 v55, 4, v52"); A(f"v_add_u32 v55, {LDS_KT}, v55")
    A("v_cmp_gt_u32 vcc, 288, v52")
    A(f"s_and_saveexec_b64 s[{sT0+4}:{sT0+5}], vcc")
    A.lds("ds_write_b128 v55, v[56:59]", "kw")
    A(f"s_mov_b64 exec, s[{sT0+4}:{sT0+5}]")
    A(f"v_and_b32 v10, 31, v{vLANE}")
    A(f"s_lshl_b32 s{sT0+2}, s{sFG}, 5"); A(f"v_add_u32 v10, s{sT0+2}, v10")
    A(f"v_lshlrev_b32 v8, 4, v10"); A(f"v_add_u32 v8, {LDS_KT}, v8")
    A(f"v_lshrrev_b32 v11, 5, v{vLANE}"); A(f"s_lshl_b32 s{sT0+2}, s{sTG}, 1"); A(f"v_add_u32 v11, s{sT0+2}, v11")
    A("v_mul_u32_u24 v11, 288, v11"); A("v_add_u32 v10, v10, v11")
    A(f"v_lshlrev_b32 v9, 2, v10"); A(f"v_add_u32 v9, {LDS_ET}, v9")
    A.wait(lds=["kw"], vm=[("d1", 0)])
    A("s_barrier")

    units = [(s, k) for s in range(5) for k in range(36)]
    NU = len(units)
    def rd(u):
        s, k = units[u]
        return [("lds", f"ds_read_b128 {vr(SBUF + 4*(u%4), 4)}, v{4+(k&3)} offset:{(k>>2)*1024}", ("a", u))]
    slots = []
    for u, (s, k) in enumerate(units):
        slots.append({"pre": [("wl", [("a", u)])],
                      "mfma": f"v_mfma_f32_32x32x16_bf16 {vr(U[s],16)}, {vr(YB+4*k,4)}, {vr(SBUF+4*(u%4),4)}, {'0' if k == 0 else vr(U[s],16)}"})
    for u in range(NU - D):
        s, k = units[u + D]
        if k == 0:
            op = "v_add_u32" if s & 1 else "v_subrev_u32"
            slots[u]["bar"] = [f"{op} v{4+i}, {BUFSZ}, v{4+i}" for i in range(4)] + [("wv", [("d1", s)]), "s_barrier"]
        slots[u]["rd"] = rd(u + D)
    for s in range(2, 5):
        base = (s - 1) * 36 - 2
        slots[base].setdefault("dma", []).extend(nextrow)
        for i in range(9): slots[base + 1 + 2 * i].setdefault("dma", []).extend(dma1(A, s, i))
    for s in range(1, 5):
        slots[s * 36 - 1].setdefault("x", []).extend(kread(s - 1))
        spread(slots, s * 36 + 3, s * 36 + 30, pass1_ops(s - 1))
    vC = YB
    SLOT = [73728, 110592, 0, 36864]
    csetup = [f"s_and_b32 s{sT0+2}, s{sW}, 1", f"s_lshl_b32 s{sT0+2}, s{sT0+2}, 8",
              f"s_bfe_u32 s{sT0+3}, s{sW}, 0x10001", f"s_mul_i32 s{sT0+3}, s{sT0+3}, {32*1152}",
              f"s_mul_i32 s{sT0+4}, s{sQ}, 288", f"s_add_u32 s{sT0+3}, s{sT0+3}, s{sT0+4}",
              f"s_lshr_b32 s{sM0A}, s{sW}, 1", f"s_mul_i32 s{sM0A}, s{sM0A}, 9216",
              f"s_lshl_b32 s{sT0+4}, s{sT0+2}, 4", f"s_add_u32 s{sM0A}, s{sM0A}, s{sT0+4}",
              f"s_mul_i32 s{sDP}, s{sROT2}, 73728", f"s_movk_i32 s{sT0+5}, 3641"]
    for i in range(5):
        a, b, c = vC + 5, vC + 6, vC + 7
        csetup += [f"v_add_u32 v{a}, s{sT0+2}, v{vLANE}", f"v_add_u32 v{a}, {64*i}, v{a}",
                   f"v_mul_u32_u24 v{b}, s{sT0+5}, v{a}", f"v_lshrrev_b32 v{b}, 16, v{b}",
                   f"v_mul_u32_u24 v{c}, 18, v{b}", f"v_sub_u32 v{a}, v{a}, v{c}",
                   f"v_lshrrev_b32 v{c}, 4, v{b}", f"v_xor_b32 v{a}, v{a}, v{c}",
                   f"v_and_b32 v{vC+i}, 3, v{b}",
                   f"v_lshrrev_b32 v{c}, 3, v{b}", f"v_lshl_add_u32 v{vC+i}, v{c}, 2, v{vC+i}",
                   f"v_bfe_u32 v{c}, v{b}, 2, 1", f"v_lshl_add_u32 v{vC+i}, v{c}, 4, v{vC+i}",
                   f"v_mul_u32_u24 v{vC+i}, 1152, v{vC+i}", f"v_lshl_add_u32 v{vC+i}, v{a}, 4, v{vC+i}",
                   f"v_add_u32 v{vC+i}, s{sT0+3}, v{vC+i}", f"v_add_u32 v{vC+i}, {4096 - (i%4)*1024}, v{vC+i}"]
    def dmac(j, i):
        ops = []
        if i % 4 == 0: ops += [f"s_add_u32 m0, s{sM0A}, {SLOT[j%4] + i*1024}", "s_nop 0"]
        ops.append(("vm", f"buffer_load_dwordx4 v{vC+i}, s[{SB}:{SB+3}], s{sDP} offen offset:{(i%4)*1024} lds", ("d2", j)))
        if i == 4: ops += [f"s_add_u32 s{sDP}, s{sDP}, 73728", f"s_cmp_ge_u32 s{sDP}, {9*73728}", f"s_cselect_b32 s{sDP}, 0, s{sDP}"]
        return ops
    S4 = 4 * 36
    spread(slots, S4 + 2, S4 + 20, csetup, "x")
    n = 0
    for j in range(2):
        for i in range(5):
            slots[S4 + 21 + n].setdefault("dma", []).extend(dmac(j, i)); n += 1
    slots[S4 + 34].setdefault("x", []).extend(kread(4))
    for u in range(D):
        for o in rd(u): A.op(o)
    emit_slots(A, slots[:S4])
    A(f"s_cmp_lg_u32 s{sFG}, 0")
    A("s_cbranch_scc1 L_s4b")
    saved = (list(A.lq), list(A.vq))
    emit_slots(A, slots[S4:])
    A("s_nop 7"); A("s_nop 3")
    for o in pass1_ops(4): A.op(o)
    A.wait_all()
    A("s_branch L_s4j")
    vq_a = list(A.vq)
    A("L_s4b:")
    A.lq, A.vq = saved
    for o in csetup: A.op(o)
    for j in range(2):
        for i in range(5):
            for o in dmac(j, i): A.op(o)
    for o in pass1_ops(3): A.op(o)
    A.wait_all()
    assert len(A.vq) == len(vq_a), (A.vq, vq_a)
    A("L_s4j:")
    stamp(A, opt, 3)
    A("s_barrier")

    T = 120
    A(f"s_cmp_ge_u32 s{sW}, 5")
    A("s_cbranch_scc1 L_carry_done")
    saved = (list(A.lq), list(A.vq))
    A(f"s_lshl_b32 s{sT0+2}, s{sW}, 6")
    A(f"v_add_u32 v{T}, s{sT0+2}, v{vLANE}")
    A(f"v_cmp_gt_u32 vcc, 288, v{T}")
    A(f"s_and_saveexec_b64 s[{sT0+8}:{sT0+9}], vcc")
    A(f"v_lshlrev_b32 v{T+1}, 4, v{T}"); A(f"v_add_u32 v{T+1}, {LDS_KT}, v{T+1}")
    A(f"v_lshlrev_b32 v{T}, 2, v{T}"); A(f"v_add_u32 v{T+2}, {LDS_ET}, v{T}")
    A.lds(f"ds_read_b64 v[{T+4}:{T+5}], v{T+1}", "kk")
    EI = T + 12
    for i in range(8): A.lds(f"ds_read_b32 v{EI+i}, v{T+2} offset:{i*1152}", ("e", i))
    A.wait(lds=["kk"])
    def sq(dr, ds_, r, s):
        A(f"v_mul_f32 v{T+3}, v{s}, v{s}")
        A(f"v_mul_f32 v{ds_}, v{r}, v{s}")
        A(f"v_fma_f32 v{dr}, v{r}, v{r}, -v{T+3}")
        A(f"v_add_f32 v{ds_}, v{ds_}, v{ds_}")
    for _ in range(4): sq(T + 4, T + 5, T + 4, T + 5)
    A.wait(lds=[("e", 7)])
    def step(new, old, add, lr, ls):
        A(f"v_fma_f32 v{new}, v{lr}, v{old}, v{add}")
        A("s_nop 1")
        A(f"v_fmac_f32_dpp v{new}, v{old}, v{ls} {DPP}")
    p = EI
    for i in range(1, 8):
        n_ = T + 8 + (i & 1)
        step(n_, p, EI + i, T + 4, T + 5); p = n_
    A(f"s_lshl_b32 s{sT0+2}, s{sQ}, 4"); A(f"s_mul_i32 s{sT0+3}, s{sT0+2}, 1152"); A(f"s_add_u32 s{sT0+3}, s{sT0+3}, {WS_E}")
    A(f"s_mul_i32 s{sT0+4}, s{sMT}, 1152"); A(f"s_add_u32 s{sT0+4}, s{sT0+4}, s{sT0+3}")
    A.vm(f"buffer_store_dword v{p}, v{T}, s[{SWS}:{SWS+3}], s{sT0+4} offen sc0 sc1", "pub")
    sq(T + 6, T + 7, T + 4, T + 5)
    for _ in range(2): sq(T + 6, T + 7, T + 6, T + 7)
    A(f"s_lshl_b32 s{sT0+5}, 1, s{sMT}")
    A(f"v_mov_b32 v{T+10}, s{sT0+5}")
    A(f"s_sub_u32 s{sT0+5}, s{sT0+5}, 1")
    A(f"s_lshl_b32 s{sT0+6}, s{sQ}, 3"); A(f"s_add_u32 s{sT0+6}, s{sT0+6}, s{sW}"); A(f"s_lshl_b32 s{sT0+6}, s{sT0+6}, 2")
    A.wait_all(lds=False, vm=True)
    A(f"s_mov_b64 s[{sT0+10}:{sT0+11}], exec")
    A("s_mov_b64 exec, 1")
    A(f"buffer_atomic_or v{T+10}, off, s[{SM}:{SM+3}], s{sT0+6} sc1")
    A(f"v_mov_b32 v{T+8}, 0")
    A(f"s_mov_b32 s{sT0+4}, 0x40000")
    A("L_poll:")
    A(f"s_sub_u32 s{sT0+4}, s{sT0+4}, 1")
    A("s_cbranch_scc1 L_poll_done")
    A(f"buffer_load_dword v{T+11}, off, s[{SM}:{SM+3}], s{sT0+6} sc0 sc1")
    A("s_waitcnt vmcnt(0)")
    A(f"v_readfirstlane_b32 s{sT0+7}, v{T+11}")
    A(f"s_and_b32 s{sT0+7}, s{sT0+7}, s{sT0+5}")
    A(f"s_cmp_lg_u32 s{sT0+7}, s{sT0+5}")
    A("s_cbranch_scc1 L_poll")
    A("L_poll_done:")
    A(f"s_mov_b64 exec, s[{sT0+10}:{sT0+11}]")
    stamp(A, opt, 4)
    EC = T + 24
    for c in range(15):
        if c % 3 == 0 and c: A(f"s_add_u32 s{sT0+3}, s{sT0+3}, {3*1152}")
        A.vm(f"buffer_load_dword v{EC+c}, v{T}, s[{SWS}:{SWS+3}], s{sT0+3} offen offset:{(c%3)*1152} sc0 sc1", ("ec", c))
    A(f"v_mov_b32 v{T+8}, 0")
    A.wait_all(lds=False, vm=True)
    for c in range(15):
        A(f"s_cmp_eq_u32 s{sMT}, {c}")
        A("s_cbranch_scc1 L_horner_done")
        step(T + 9, T + 8, EC + c, T + 6, T + 7)
        A(f"v_mov_b32 v{T+8}, v{T+9}")
    A("L_horner_done:")
    A("s_nop 1")
    p = T + 8
    for i in range(8):
        A.lds(f"ds_write_b32 v{T+2}, v{p} offset:{i*1152}", "gw")
        if i < 7:
            n_ = T + 8 + ((i + 1) & 1)
            step(n_, p, EI + i, T + 4, T + 5); p = n_
    A(f"s_mov_b64 exec, s[{sT0+8}:{sT0+9}]")
    A.wait_all()
    A("L_carry_done:")
    A.lq, A.vq = saved
    A("s_barrier")
    stamp(A, opt, 5)

    KK = 120
    A(f"v_and_b32 v10, 1, v{vLANE}"); A(f"v_bfe_u32 v11, v{vLANE}, 1, 4")
    A("v_lshl_add_u32 v11, v10, 4, v11"); A("v_lshlrev_b32 v11, 6, v11")
    A(f"v_lshrrev_b32 v12, 5, v{vLANE}"); A("v_xor_b32 v10, v10, v12")
    A(f"v_bfe_u32 v12, v{vLANE}, 2, 1"); A("v_lshl_add_u32 v10, v10, 1, v12")
    A("v_lshl_add_u32 v136, v10, 4, v11")
    A(f"s_mul_i32 s{sT0+2}, s{sTG}, 18432"); A(f"s_lshl_b32 s{sT0+3}, s{sFG}, 11"); A(f"s_add_u32 s{sT0+3}, s{sT0+3}, s{sT0+2}")
    A(f"v_add_u32 v136, s{sT0+3}, v136"); A("v_xor_b32 v137, 16, v136")
    def pass2(nt):
        for t in range(nt):
            A.lds(f"ds_read_b64 v[{KK+2*t}:{KK+2*t+1}], v8 offset:{t*1024}", "k2")
            A.lds(f"ds_read_b32 v{130+t}, v9 offset:{t*256}", "k2")
        A.wait_all()
        for i in range(16):
            for t in range(nt):
                prev = 130 + t if i == 0 else U[t] + i - 1
                A(f"v_fmac_f32 v{U[t]+i}, v{KK+2*t}, v{prev}")
            for t in range(nt):
                prev = 130 + t if i == 0 else U[t] + i - 1
                A(f"v_fmac_f32_dpp v{U[t]+i}, v{prev}, v{KK+2*t+1} {DPP}")
        for t in range(nt):
            for j in range(8):
                A(f"v_cvt_pk_bf16_f32 v{U[t]+j}, v{U[t]+2*j}, v{U[t]+2*j+1}")
                if j % 4 == 3:
                    A.lds(f"ds_write_b128 v{136 + j//4}, {vr(U[t]+j-3,4)} offset:{t*4096}", "hw")
        A.wait_all()
    A(f"s_cmp_lg_u32 s{sFG}, 0")
    A("s_cbranch_scc1 L_p2b")
    pass2(5)
    A("s_branch L_p2j")
    A("L_p2b:")
    pass2(4)
    A("L_p2j:")
    A(f"v_lshrrev_b32 v10, 5, v{vLANE}"); A(f"v_bfe_u32 v11, v{vLANE}, 2, 2")
    A("v_lshl_add_u32 v10, v10, 3, v11"); A("v_lshlrev_b32 v10, 6, v10")
    A(f"v_bfe_u32 v11, v{vLANE}, 1, 1"); A(f"v_bfe_u32 v12, v{vLANE}, 3, 1"); A("v_xor_b32 v11, v11, v12")
    A(f"v_bfe_u32 v12, v{vLANE}, 4, 1"); A("v_lshl_add_u32 v11, v12, 1, v11")
    A("v_lshl_add_u32 v10, v11, 4, v10")
    A(f"v_and_b32 v11, 1, v{vLANE}"); A("v_lshl_add_u32 v10, v11, 3, v10")
    A(f"v_add_u32 v4, s{sT0+2}, v10"); A("v_xor_b32 v5, 32, v4")
    A(f"v_and_b32 v10, 31, v{vLANE}"); A("v_mul_u32_u24 v11, 288, v10")
    A(f"v_lshrrev_b32 v10, 4, v10"); A(f"v_lshrrev_b32 v12, 5, v{vLANE}"); A("v_xor_b32 v10, v10, v12")
    A("v_lshl_add_u32 v6, v10, 4, v11")
    A(f"s_mul_i32 s{sT0+3}, s{sFG}, 9216"); A(f"v_add_u32 v6, s{sT0+3}, v6"); A(f"v_add_u32 v7, 73728, v6")
    A(f"v_lshlrev_b32 v{vXA}, 4, v{vLANE}")
    A(f"s_lshl_b32 s{sT0+2}, s{sMT}, 2"); A(f"s_add_u32 s{sT0+2}, s{sT0+2}, s{sTG}")
    A(f"s_mul_i32 s{sT0+2}, s{sT0+2}, {18*2048}"); A(f"s_mul_i32 s{sT0+3}, s{sSL}, {PLANE}")
    A(f"s_add_u32 s{sT0+2}, s{sT0+2}, s{sT0+3}"); A(f"s_lshl_b32 s{sT0+3}, s{sFG}, 11")
    A(f"s_add_u32 s{sT0+2}, s{sT0+2}, s{sT0+3}"); A(f"v_add_u32 v{vXA}, s{sT0+2}, v{vXA}")
    A(f"s_lshl_b32 s{sST}, s{sROT2}, 12")
    A.wait(vm=[("d2", 0)])
    A("s_barrier")
    stamp(A, opt, 6)
    GF = 184
    for ks in range(18):
        tile, kk = ks >> 1, ks & 1
        for rr in range(2):
            A.lds(f"ds_read_b64_tr_b16 {vr(GF+4*ks+2*rr,2)}, v{4+kk} offset:{tile*2048 + kk*1024 + rr*256}", "g")
    units = [(j, k) for j in range(9) for k in range(18)]
    NU = len(units)
    def rd2(u):
        j, k = units[u]
        so = SLOT[j % 4]
        a = 7 if so >= 73728 else 6
        off = so % 73728 + (k & 1) * 18432 + (k >> 1) * 32
        return [("lds", f"ds_read_b128 {vr(SBUF + 4*(u%4), 4)}, v{a} offset:{off}", ("a", u))]
    slots = []
    for u, (j, k) in enumerate(units):
        acc = ACC[j & 1]
        slots.append({"pre": [("wl", [("a", u)])],
                      "mfma": f"v_mfma_f32_32x32x16_bf16 {vr(acc,16)}, {vr(SBUF+4*(u%4),4)}, {vr(GF+4*k,4)}, {'0' if k == 0 else vr(acc,16)}"})
    for u in range(NU - D):
        j, k = units[u + D]
        if k == 0: slots[u]["bar"] = [("wv", [("d2", j)]), "s_barrier"]
        slots[u]["rd"] = rd2(u + D)
    slots[0]["bar"] = ["s_barrier"]
    n = 1
    for j in (2, 3):
        for i in range(5):
            slots[n].setdefault("dma", []).extend(dmac(j, i)); n += 1
    for j in range(4, 9):
        base = (j - 3) * 18 - 2
        for i in range(5): slots[base + 2 * i].setdefault("dma", []).extend(dmac(j, i))
    nextst = [f"s_add_u32 s{sST}, s{sST}, 4096", f"s_cmp_ge_u32 s{sST}, {9*4096}", f"s_cselect_b32 s{sST}, 0, s{sST}"]
    SREG = 48
    for j in range(1, 9):
        spread(slots, j * 18 + 3, j * 18 + 9, store_ops(ACC[(j - 1) & 1], SREG, "st") + nextst)
    for u in range(D):
        for o in rd2(u): A.op(o)
    emit_slots(A, slots)
    A("s_nop 7"); A("s_nop 3")
    for o in store_ops(ACC[0], SREG, "st"): A.op(o)
    stamp(A, opt, 7)
```

```python
import sys, math
from asmlib import *

NAME = "recurrent_scan__ssm_conv_s5__mixer_channel_mlp__prompt"
HDR = open("cdna_kernels/" + NAME + ".s.ref").read().split("; Override launch")[0]

C0 = -2.0 * math.log2(math.e) * math.sqrt(2.0 / math.pi)
C1 = C0 * 0.044715
KSC = -((-C1) ** (1.0 / 3.0))
C0K = C0 / KSC
PLANE = 2048 * 576 * 2
WS_AFF = 16 * PLANE
WS_E = WS_AFF + 2048 * 8
WS_STAMP = WS_E + 4 * 16 * 288 * 4 + 4096
WS_SIZE = WS_STAMP + 65536 * 4
BUFSZ = 73728
LDS_Y = 73728
LDS_B1 = 155648
LDS_ET = 147456
LDS_KT = 156672

sW, sTG, sFG, sMT, sSL = 3, 4, 5, 6, 7
SX, SA, SB, SWS, SM = 8, 12, 16, 20, 24
sT0 = 28
sD1 = 40
sD2 = 50
sROT, sROT2, sCOL, sM0A, sST, sDP, sC0K, sONE, sM0W = 56, 57, 58, 59, 60, 61, 62, 63, 64
sPTR = 66
def kp(i): return sPTR + 2 * i

vLANE = 1
vDMA, vDMA2 = 2, 3
vTR = 4
vB1 = 7
vXA = 8
ACC = [16, 32]
ABUF = 48
TMP = 64
HOWN = 72
YB = 112

class Opt:
    stamps = False
    ssm = True

def stamp(A, opt, idx):
    if not opt.stamps: return
    A(f"s_memtime s[100:101]")
    A("s_waitcnt lgkmcnt(0)")
    A.lq = []
    A(f"v_mov_b32 v0, s100")
    A.vm(f"buffer_store_dword v0, off, s[{SWS}:{SWS+3}], s65 offset:{4*idx}", "stamp")

def srd(A, d, p, nrec, lower=0):
    if lower:
        A(f"s_sub_u32 s{d}, s{p}, {lower}")
        A(f"s_subb_u32 s{d+1}, s{p+1}, 0")
    else:
        A(f"s_mov_b32 s{d}, s{p}")
        A(f"s_mov_b32 s{d+1}, s{p+1}")
    A(f"s_mov_b32 s{d+2}, {nrec + lower}")
    A(f"s_mov_b32 s{d+3}, 0x20000")

def Rreg(e, c):
    if c < 5: return 216 + (c * 2 + e) * 4
    return 72 + ((c - 5) * 2 + e) * 4

def bf16r(A, d, s):
    A(f"v_cvt_pk_bf16_f32 v{d}, v{s}, v{s}")
    A(f"v_and_b32 v{d}, 0xffff0000, v{d}")

def x_loads(A):
    A(f"v_lshrrev_b32 v8, 3, v{vLANE}")
    A(f"s_lshl_b32 s{sT0}, s{sW}, 4")
    A(f"v_add_u32 v8, s{sT0}, v8")
    A(f"v_mul_u32_u24 v8, 1152, v8")
    A(f"v_and_b32 v9, 7, v{vLANE}")
    A(f"v_lshl_add_u32 v8, v9, 4, v8")
    A(f"s_mul_i32 s{sT0}, s{sMT}, 147456")
    A(f"s_add_u32 s{sT0+1}, s{sT0}, 9216")
    for c in range(9):
        for e in range(2):
            A.vm(f"buffer_load_dwordx4 {vr(Rreg(e,c),4)}, v8, s[{SX}:{SX+3}], s{sT0+e} offen offset:{c*128}", ("x", c, e))

def dma1(A, stage, i):
    ops = []
    if i % 4 == 0:
        ops.append(f"s_add_u32 m0, s{sM0W}, {(stage & 1) * BUFSZ + i * 1024}")
        ops.append("s_nop 0")
    ops.append(("vm", f"buffer_load_dwordx4 v{vDMA2}, s[{SA}:{SA+3}], s{sD1+i} offen offset:{(i % 4) * 1024} lds", ("d1", stage)))
    return ops

def ln_prologue(A, opt, mlp):
    SUM = [16, 17]; SQ = [18, 19]
    for r in SUM + SQ: A(f"v_mov_b32 v{r}, 0")
    for e in range(2):
        d = 10 + e
        A(f"v_lshrrev_b32 v20, 3, v{vLANE}")
        A(f"s_lshl_b32 s{sT0+2}, s{sW}, 4")
        A(f"s_add_u32 s{sT0+2}, s{sT0+2}, {8*e}")
        A(f"v_add_u32 v20, s{sT0+2}, v20")
        if not mlp:
            A(f"v_and_b32 v21, 0x63, v20")
            A(f"v_bfe_u32 v22, v20, 2, 2")
            A(f"v_lshl_or_b32 v21, v22, 3, v21")
            A(f"v_bfe_u32 v22, v20, 4, 1")
            A(f"v_lshl_or_b32 v20, v22, 2, v21")
        A(f"v_bfe_u32 v21, v20, 1, 3")
        A(f"v_and_b32 v22, 7, v{vLANE}")
        A(f"v_xor_b32 v21, v21, v22")
        A(f"v_lshlrev_b32 v21, 4, v21")
        A(f"v_lshl_add_u32 v{d}, v20, 7, v21")
        A(f"v_add_u32 v{d}, {LDS_Y}, v{d}")
    A(f"v_and_b32 v20, 31, v{vLANE}")
    A(f"v_bfe_u32 v21, v20, 1, 3")
    A(f"v_lshrrev_b32 v22, 5, v{vLANE}")
    A(f"v_xor_b32 v21, v21, v22")
    A(f"v_lshlrev_b32 v21, 4, v21")
    A(f"s_lshl_b32 s{sT0+2}, s{sTG}, 5")
    A(f"v_add_u32 v20, s{sT0+2}, v20")
    A(f"v_lshl_add_u32 v12, v20, 7, v21")
    A(f"v_add_u32 v12, {LDS_Y}, v12")
    for i in range(1, 4): A(f"v_xor_b32 v{12+i}, {32*i}, v12")
    for c in range(9):
        A.wait(vm=[("x", c, 1)])
        for j in range(4):
            for e in range(2):
                r = Rreg(e, c) + j
                A(f"v_dot2c_f32_bf16 v{SUM[e]}, s{sONE}, v{r}")
                A(f"v_dot2c_f32_bf16 v{SQ[e]}, v{r}, v{r}")
    A("s_nop 2")
    for mode in ("quad_perm:[1,0,3,2]", "quad_perm:[2,3,0,1]", "row_half_mirror"):
        for r in SUM + SQ:
            A(f"v_add_f32_dpp v{r}, v{r}, v{r} {mode} row_mask:0xf bank_mask:0xf")
    inv = hexf(1.0 / 576.0); eps = hexf(1e-5)
    def both(f):
        for e in range(2): A(f(e))
    both(lambda e: f"v_mul_f32 v{20+e}, {inv}, v{SUM[e]}")
    both(lambda e: f"v_mul_f32 v{22+e}, {inv}, v{SQ[e]}")
    both(lambda e: f"v_fma_f32 v{22+e}, -v{20+e}, v{20+e}, v{22+e}")
    both(lambda e: f"v_max_f32 v{22+e}, 0, v{22+e}")
    def rnd(d, s):
        both(lambda e: f"v_cvt_pk_bf16_f32 v{d+e}, v{s+e}, v{s+e}")
        both(lambda e: f"v_and_b32 v{d+e}, 0xffff0000, v{d+e}")
    rnd(24, 20)
    rnd(26, 22)
    both(lambda e: f"v_add_f32 v{26+e}, {eps}, v{26+e}")
    rnd(26, 26)
    both(lambda e: f"v_sqrt_f32 v{26+e}, v{26+e}")
    rnd(26, 26)
    both(lambda e: f"v_rcp_f32 v{28+e}, v{26+e}")
    if mlp:
        both(lambda e: f"v_sub_f32 v{30+e}, v{20+e}, v{24+e}")
        both(lambda e: f"v_mul_f32 v{30+e}, v{30+e}, v{28+e}")
        rnd(30, 30)
        both(lambda e: f"v_mul_f32 v{32+e}, v{28+e}, v{28+e}")
        both(lambda e: f"v_mul_f32 v{32+e}, v{32+e}, v{22+e}")
        rnd(32, 32)
        both(lambda e: f"v_add_f32 v{32+e}, {eps}, v{32+e}")
        rnd(32, 32)
        both(lambda e: f"v_sqrt_f32 v{32+e}, v{32+e}")
        rnd(32, 32)
        both(lambda e: f"v_rcp_f32 v{32+e}, v{32+e}")
        both(lambda e: f"v_fma_f32 v{24+e}, v{30+e}, v{26+e}, v{24+e}")
        both(lambda e: f"v_mul_f32 v{28+e}, v{28+e}, v{32+e}")
        both(lambda e: f"v_mul_f32 v{28+e}, {hexf(KSC)}, v{28+e}")
    else:
        A(f"v_lshrrev_b32 v34, 3, v{vLANE}")
        A(f"s_lshl_b32 s{sT0+2}, s{sMT}, 7")
        A(f"s_lshl_b32 s{sT0+3}, s{sW}, 4")
        A(f"s_add_u32 s{sT0+2}, s{sT0+2}, s{sT0+3}")
        A(f"v_add_u32 v34, s{sT0+2}, v34")
        A(f"v_lshlrev_b32 v34, 3, v34")
        A(f"v_mov_b32 v36, v24"); A(f"v_mov_b32 v37, v28"); A(f"v_mov_b32 v38, v25"); A(f"v_mov_b32 v39, v29")
        A(f"s_mov_b32 s{sT0+2}, {WS_AFF}")
        A.vm(f"buffer_store_dwordx2 v[36:37], v34, s[{SWS}:{SWS+3}], s{sT0+2} offen", "aff")
        A.vm(f"buffer_store_dwordx2 v[38:39], v34, s[{SWS}:{SWS+3}], s{sT0+2} offen offset:64", "aff")
        A("s_nop 1")
    rnd(34, 28)
    both(lambda e: f"v_lshrrev_b32 v{36+e}, 16, v{34+e}")
    both(lambda e: f"v_mul_f32 v{38+e}, v{34+e}, v{24+e}")
    both(lambda e: f"v_sub_f32 v{38+e}, 0, v{38+e}")
    def norm(e, c):
        b = Rreg(e, c)
        T = 40
        for j in range(4):
            A(f"v_dot2_f32_bf16 v{T+2*j}, v{b+j}, v{36+e}, v{38+e}")
            A(f"v_dot2_f32_bf16 v{T+2*j+1}, v{b+j}, v{34+e}, v{38+e}")
        A("s_nop 0")
        for j in range(4):
            if j == 3: A("s_nop 0")
            A(f"v_cvt_pk_bf16_f32 v{b+j}, v{T+2*j}, v{T+2*j+1}")
    def ywrite(e, c, slot):
        if slot < 4:
            A.lds(f"ds_write_b128 v{10+e}, {vr(Rreg(e,c),4)} offset:{slot*16384}", "yw")
        else:
            A(f"v_add_u32 v48, 0x10000, v{10+e}")
            A.lds(f"ds_write_b128 v48, {vr(Rreg(e,c),4)}", "yw")
    def yread(s, slot):
        if slot < 4:
            A.lds(f"ds_read_b128 {vr(YB+4*s,4)}, v{12+(s&3)} offset:{slot*16384}", ("y", s))
        else:
            A(f"v_add_u32 v48, 0x10000, v{12+(s&3)}")
            A.lds(f"ds_read_b128 {vr(YB+4*s,4)}, v48", ("y", s))
    stamp(A, opt, 1)
    for c in range(5):
        for e in range(2):
            norm(e, c); ywrite(e, c, c)
    A.wait_all(); A("s_barrier")
    for s in range(20): yread(s, s >> 2)
    for c in range(5, 9):
        for e in range(2): norm(e, c)
    A.wait_all(); A("s_barrier")
    for c in range(5, 9):
        for e in range(2): ywrite(e, c, c - 5)
    A.wait_all(); A("s_barrier")
    for s in range(20, 36): yread(s, (s >> 2) - 5)
    A.wait_all(); A("s_barrier")
    stamp(A, opt, 2)

def cost(o):
    s = o if isinstance(o, str) else o[1]
    if isinstance(s, str) and s.startswith(("v_exp", "v_rcp")): return 8
    if isinstance(s, str) and s.startswith(("v_cvt", "v_dot")) or "dpp" in str(s): return 4
    return 3

def spread(slots, lo, hi, ops, key="valu"):
    tot = sum(cost(o) for o in ops)
    acc = 0
    for o in ops:
        j = lo + int(acc * (hi - lo) / tot)
        slots[j].setdefault(key, []).append(o)
        acc += cost(o)

def gelu_ops(acc, dst, grp=4):
    ops = []
    for g0 in range(0, 16, grp):
        es = range(g0, g0 + grp)
        T = lambda e: TMP + (e % 8)
        for e in es: ops.append(f"v_fma_f32 v{T(e)}, v{acc+e}, v{acc+e}, s{sC0K}")
        for e in es: ops.append(f"v_mul_f32 v{T(e)}, v{T(e)}, v{acc+e}")
        for e in es: ops.append(f"v_exp_f32 v{T(e)}, v{T(e)}")
        for e in es: ops.append(f"v_add_f32 v{T(e)}, 1.0, v{T(e)}")
        for e in es: ops.append(f"v_rcp_f32 v{T(e)}, v{T(e)}")
        for e in es: ops.append(f"v_mul_f32 v{T(e)}, v{T(e)}, v{acc+e}")
        for e in es[::2]: ops.append(f"v_cvt_pk_bf16_f32 v{dst + e//2}, v{T(e)}, v{T(e+1)}")
    return ops

def emit_slots(A, slots):
    for s in slots:
        for k in ("pre",):
            for o in s.get(k, []): A.op(o)
        if s.get("mfma"): A(s["mfma"])
        for k in ("bar", "rd", "dma", "x", "valu"):
            for o in s.get(k, []): A.op(o)

def store_ops(acc, SREG, tag):
    ops = [f"v_cvt_pk_bf16_f32 v{SREG+i}, v{acc+2*i}, v{acc+2*i+1}" for i in range(8)]
    ops.insert(4, ("vm", f"buffer_store_dwordx4 {vr(SREG,4)}, v{vXA}, s[{SWS}:{SWS+3}], s{sST} offen", tag))
    ops.append(("vm", f"buffer_store_dwordx4 {vr(SREG+4,4)}, v{vXA}, s[{SWS}:{SWS+3}], s{sST} offen offset:1024", tag))
    return ops

def mlp_path(A, opt):
    D = 3
    srd(A, SA, kp(10), 5308416)
    srd(A, SB, kp(12), 5308416, lower=4096)
    srd(A, SM, kp(11), 9216)
    A(f"s_mul_i32 s{sT0+2}, s{sMT}, 43"); A(f"s_lshr_b32 s{sT0+2}, s{sT0+2}, 8")
    A(f"s_mul_i32 s{sT0+2}, s{sT0+2}, 6"); A(f"s_sub_u32 s{sROT}, s{sMT}, s{sT0+2}")
    A(f"s_cmp_ge_u32 s{sMT}, 9"); A(f"s_cselect_b32 s{sT0+2}, 9, 0"); A(f"s_sub_u32 s{sROT2}, s{sMT}, s{sT0+2}")
    for i in range(9): A(f"s_mov_b32 s{sD1+i}, {i*73728 - (i%4)*1024}")
    A(f"s_mul_i32 s{sM0W}, s{sW}, 9216")
    A(f"v_bfe_u32 v9, v{vLANE}, 2, 3")
    A(f"v_lshrrev_b32 v10, 5, v{vLANE}")
    A(f"v_and_b32 v11, 3, v{vLANE}")
    A(f"v_lshlrev_b32 v11, 4, v11")
    A(f"v_lshl_add_u32 v10, v10, 6, v11")
    A(f"v_mul_u32_u24 v{vDMA}, 9216, v9")
    A(f"v_add_u32 v{vDMA}, v{vDMA}, v10")
    A(f"s_mul_i32 s{sT0+2}, s{sW}, {72*9216}")
    A(f"s_mul_i32 s{sT0+3}, s{sSL}, 768")
    A(f"s_add_u32 s{sT0+2}, s{sT0+2}, s{sT0+3}")
    A(f"v_add_u32 v{vDMA}, s{sT0+2}, v{vDMA}")
    A(f"s_lshl_b32 s{sCOL}, s{sROT}, 7")
    A(f"v_add_u32 v{vDMA2}, s{sCOL}, v{vDMA}")
    for i in range(9):
        for o in dma1(A, 0, i): A.op(o)
    def nextcol():
        return [f"s_add_u32 s{sCOL}, s{sCOL}, 128", f"s_cmp_ge_u32 s{sCOL}, 768", f"s_cselect_b32 s{sCOL}, 0, s{sCOL}",
                f"v_add_u32 v{vDMA2}, s{sCOL}, v{vDMA}"]
    A(f"v_lshlrev_b32 v9, 1, v0")
    A(f"s_mul_i32 s{sT0+2}, s{sSL}, 768")
    A.vm(f"buffer_load_ushort v49, v9, s[{SM}:{SM+3}], s{sT0+2} offen", "b1")
    A(f"v_lshrrev_b32 v9, 5, v{vLANE}"); A("v_lshlrev_b32 v9, 10, v9")
    A(f"v_bfe_u32 v10, v{vLANE}, 2, 2"); A("v_lshl_add_u32 v9, v10, 6, v9")
    A(f"v_bfe_u32 v10, v{vLANE}, 4, 1"); A("v_lshl_add_u32 v9, v10, 5, v9")
    A(f"v_and_b32 v10, 3, v{vLANE}"); A("v_lshl_add_u32 v9, v10, 3, v9")
    A(f"s_lshl_b32 s{sT0+2}, s{sFG}, 9")
    A(f"v_add_u32 v{vTR}, s{sT0+2}, v9")
    A(f"v_add_u32 v{vTR+1}, 0x10000, v{vTR}")
    A(f"v_add_u32 v{vTR+2}, 0x20000, v{vTR}")
    A(f"v_lshrrev_b32 v9, 5, v{vLANE}")
    A(f"s_lshl_b32 s{sT0+2}, s{sFG}, 7"); A(f"s_add_u32 s{sT0+2}, s{sT0+2}, {LDS_B1}")
    A(f"v_lshl_add_u32 v{vB1}, v9, 4, s{sT0+2}")
    A(f"s_mov_b32 s{sC0K}, {hexf(C0K)}")
    A(f"s_mul_i32 s{sT0+2}, s{sW}, 6")
    A(f"s_mul_i32 s{sT0+6}, s{sSL}, {384*1152}")
    for i in range(6):
        A(f"s_add_u32 s{sT0+3}, s{sT0+2}, {i}")
        A(f"s_lshr_b32 s{sT0+4}, s{sT0+3}, 3")
        A(f"s_add_u32 s{sT0+4}, s{sT0+4}, s{sROT}")
        A(f"s_cmp_ge_u32 s{sT0+4}, 6"); A(f"s_cselect_b32 s{sT0+5}, 6, 0"); A(f"s_sub_u32 s{sT0+4}, s{sT0+4}, s{sT0+5}")
        A(f"s_lshl_b32 s{sT0+4}, s{sT0+4}, 3")
        A(f"s_and_b32 s{sT0+3}, s{sT0+3}, 7")
        A(f"s_add_u32 s{sT0+4}, s{sT0+4}, s{sT0+3}")
        A(f"s_mul_i32 s{sT0+4}, s{sT0+4}, 9216")
        A(f"s_add_u32 s{sT0+4}, s{sT0+4}, s{sT0+6}")
        A(f"s_add_u32 s{sD2+i}, s{sT0+4}, {4096 - (i%4)*1024}")
    A(f"s_sub_u32 s{sT0+2}, s{sW}, s{sROT}")
    A(f"s_cmp_lt_i32 s{sT0+2}, 0"); A(f"s_cselect_b32 s{sT0+3}, 6, 0"); A(f"s_add_u32 s{sT0+2}, s{sT0+2}, s{sT0+3}")
    A(f"s_lshl_b32 s{sT0+2}, s{sT0+2}, 8"); A(f"s_add_u32 s{sT0+2}, s{sT0+2}, {LDS_B1}")
    A(f"s_cmp_ge_u32 s{sW}, 6"); A(f"s_cselect_b32 s{sT0+2}, {LDS_B1 + 2048}, s{sT0+2}")
    A(f"v_lshl_add_u32 v50, v{vLANE}, 2, s{sT0+2}")

    ln_prologue_pre = len(A.L)
    ln_prologue(A, opt, True)
    A.wait(vm=["b1"])
    A("v_lshlrev_b32 v49, 16, v49")
    A(f"v_mul_f32 v49, {hexf(KSC)}, v49")
    A.lds("ds_write_b32 v50, v49", "b1w")
    for o in nextcol(): A.op(o)
    for i in range(9):
        for o in dma1(A, 1, i): A.op(o)
    A.wait(lds=["b1w"], vm=[("d1", 0)])
    A("s_barrier")

    HP = YB
    H5 = YB + 48
    SREG = YB + 56
    vP2 = YB + 64
    vHX = YB + 70
    def hown(t): return HOWN + 8 * t if t < 5 else H5
    korder = [("o", t, kk) for t in range(5) for kk in range(2)] + [("p", t, kk) for t in range(4) for kk in range(2)] + \
             [("o", 5, 0), ("o", 5, 1)] + [("p", t, kk) for t in (4, 5) for kk in range(2)]
    units = []
    for s in range(6):
        for k in range(36): units.append((1, s, k))
    for j in range(9):
        for k in range(24): units.append((2, j, k))
    NU = len(units)
    def rd(u):
        ph, s, k = units[u]
        b = ABUF + 4 * (u % 4)
        if ph == 1:
            pos = (s & 1) * BUFSZ + k * 2048
            return [("lds", f"ds_read_b64_tr_b16 {vr(b+2*r,2)}, v{vTR + ((pos + r*256) >> 16)} offset:{(pos + r*256) & 0xffff}", ("a", u)) for r in range(2)]
        who, t, kk = korder[k]
        areg = vP2 + (s % 3) * 2 + (0 if who == "o" else 1)
        return [("lds", f"ds_read_b64_tr_b16 {vr(b+2*r,2)}, v{areg} offset:{(8*t + 2*kk + r) * 1024}", ("a", u)) for r in range(2)]
    def b1rd(s):
        return [("lds", f"ds_read_b128 {vr(ACC[s&1] + 4*j, 4)}, v{vB1} offset:{s*256 + j*32}", ("b1", s)) for j in range(4)]
    slots = []
    for u, (ph, s, k) in enumerate(units):
        b = ABUF + 4 * (u % 4)
        acc = ACC[s & 1]
        sl = {}
        w = [("a", u)]
        if ph == 1:
            if k == 0: w.append(("b1", s))
            sl["mfma"] = f"v_mfma_f32_32x32x16_bf16 {vr(acc,16)}, {vr(b,4)}, {vr(YB+4*k,4)}, {vr(acc,16)}"
        else:
            who, t, kk = korder[k]
            hb = (hown(t) if who == "o" else HP + 8 * t) + 4 * kk
            if who == "p": w.append(("hx", t))
            sl["mfma"] = f"v_mfma_f32_32x32x16_bf16 {vr(acc,16)}, {vr(b,4)}, {vr(hb,4)}, {'0' if k == 0 else vr(acc,16)}"
        sl["pre"] = [("wl", w)]
        slots.append(sl)
    for u in range(NU - D):
        ph, s, k = units[u + D]
        if k == 0:
            slots[u]["bar"] = [("wv", [("d1", s) if ph == 1 else ("d2", s)]), "s_barrier"]
        slots[u]["rd"] = rd(u + D)
    P2 = 216
    for s in range(2, 6):
        base = (s - 1) * 36 - 2
        slots[base].setdefault("dma", []).extend(nextcol())
        for i in range(9): slots[base + 1 + 2 * i].setdefault("dma", []).extend(dma1(A, s, i))
    def dma2(j, i):
        ops = []
        if i % 4 == 0:
            ops += [f"s_add_u32 m0, s{sM0A}, {(j % 3) * 49152 + i * 1024}", "s_nop 0"]
        ops.append(("vm", f"buffer_load_dwordx4 v{vDMA2}, s[{SB}:{SB+3}], s{sD2+i} offen offset:{(i%4)*1024} lds", ("d2", j)))
        return ops
    def nextdp(first):
        if first:
            return [f"s_mul_i32 s{sM0A}, s{sW}, 6144",
                    f"v_bfe_u32 v9, v{vLANE}, 2, 3", f"v_lshrrev_b32 v10, 5, v{vLANE}", f"v_and_b32 v11, 3, v{vLANE}",
                    "v_lshlrev_b32 v11, 4, v11", "v_lshl_add_u32 v10, v10, 6, v11",
                    f"v_mul_u32_u24 v{vDMA}, 1152, v9", f"v_add_u32 v{vDMA}, v{vDMA}, v10",
                    f"s_lshl_b32 s{sCOL}, s{sROT2}, 7", f"v_add_u32 v{vDMA2}, s{sCOL}, v{vDMA}"]
        return [f"s_add_u32 s{sCOL}, s{sCOL}, 128", f"s_cmp_ge_u32 s{sCOL}, 1152", f"s_cselect_b32 s{sCOL}, 0, s{sCOL}",
                f"v_add_u32 v{vDMA2}, s{sCOL}, v{vDMA}"]
    d2base = {0: 5 * 36 - 2, 1: P2 - 2, 2: P2 + 24 - 2, 3: P2 + 24 + 10}
    for j in range(4, 9): d2base[j] = P2 + (j - 2) * 24 - 2
    for j in range(9):
        base = d2base[j]
        slots[base].setdefault("dma", []).extend(nextdp(j == 0))
        for i in range(6): slots[base + 1 + 2 * i].setdefault("dma", []).extend(dma2(j, i))
    for s in range(1, 6):
        spread(slots, s * 36 + 2, s * 36 + 31, gelu_ops(ACC[(s - 1) & 1], hown(s - 1)))
    for s in range(1, 6):
        slots[s * 36 - 5].setdefault("x", []).extend(b1rd(s))
    spread(slots, P2 + 2, P2 + 15, gelu_ops(ACC[1], H5))
    S5 = 5 * 36
    setup = [f"v_lshlrev_b32 v9, 4, v{vLANE}",
             f"s_lshl_b32 s{sT0+2}, s{sW}, 11", f"s_add_u32 s{sT0+2}, s{sT0+2}, 49152",
             f"v_add_u32 v{vHX}, s{sT0+2}, v9", f"v_add_u32 v{vHX+1}, {147456-49152}, v{vHX}",
             f"v_xor_b32 v{vHX+2}, 0x2000, v{vHX}", f"v_add_u32 v{vHX+3}, {147456-49152}, v{vHX+2}",
             f"v_lshrrev_b32 v9, 5, v{vLANE}", "v_lshlrev_b32 v9, 8, v9",
             f"v_bfe_u32 v10, v{vLANE}, 2, 2", "v_lshl_add_u32 v9, v10, 6, v9",
             f"v_and_b32 v10, 1, v{vLANE}", "v_lshl_add_u32 v9, v10, 5, v9",
             f"v_bfe_u32 v10, v{vLANE}, 1, 1", "v_lshl_add_u32 v9, v10, 3, v9",
             f"v_bfe_u32 v10, v{vLANE}, 4, 1", "v_lshl_add_u32 v9, v10, 4, v9",
             f"s_mul_i32 s{sT0+2}, s{sFG}, {4096+512}",
             f"v_add_u32 v{vP2}, s{sT0+2}, v9", f"v_xor_b32 v{vP2+1}, 0x1000, v{vP2}",
             f"v_add_u32 v{vP2+2}, 49152, v{vP2}", f"v_add_u32 v{vP2+3}, 49152, v{vP2+1}",
             f"v_add_u32 v{vP2+4}, 98304, v{vP2}", f"v_add_u32 v{vP2+5}, 98304, v{vP2+1}",
             f"v_lshlrev_b32 v{vXA}, 4, v{vLANE}",
             f"s_lshl_b32 s{sT0+2}, s{sMT}, 2", f"s_add_u32 s{sT0+2}, s{sT0+2}, s{sTG}",
             f"s_mul_i32 s{sT0+2}, s{sT0+2}, {18*2048}", f"s_mul_i32 s{sT0+3}, s{sSL}, {PLANE}",
             f"s_add_u32 s{sT0+2}, s{sT0+2}, s{sT0+3}", f"s_lshl_b32 s{sT0+3}, s{sFG}, 11",
             f"s_add_u32 s{sT0+2}, s{sT0+2}, s{sT0+3}", f"v_add_u32 v{vXA}, s{sT0+2}, v{vXA}",
             f"s_lshl_b32 s{sST}, s{sROT2}, 12"]
    spread(slots, S5 + 19, S5 + 23, setup[:7], "x")
    spread(slots, S5 + 25, S5 + 32, setup[7:], "x")
    def hw(t):
        a, off = (vHX, t * 16384) if t < 3 else ((vHX + 1, 0) if t == 3 else (vHX, 49152 + (t - 4) * 16384))
        if off + 1024 > 65535: return None
        return [("lds", f"ds_write_b128 v{a}, {vr(hown(t)+4*kk,4)} offset:{off + kk*1024}", ("hw", t)) for kk in range(2)]
    def hr(t):
        a, off = (vHX + 2, t * 16384) if t < 3 else ((vHX + 3, 0) if t == 3 else (vHX + 2, 49152 + (t - 4) * 16384))
        return [("lds", f"ds_read_b128 {vr(HP+8*t+4*kk,4)}, v{a} offset:{off + kk*1024}", ("hx", t)) for kk in range(2)]
    slots[S5 + 22].setdefault("bar", []).append("s_barrier")
    for t in range(4): slots[S5 + 23 + t].setdefault("x", []).extend(hw(t))
    slots[S5 + 29].setdefault("bar", []).extend([("wl", [("hw", 3)]), "s_barrier"])
    for t in range(4): slots[S5 + 29 + t].setdefault("x", []).extend(hr(t))
    slots[S5 + 33]["bar"].insert(0, ("wl", [("hx", 3)]))
    slots[P2 + 1].setdefault("x", []).extend(hw(4))
    slots[P2 + 2].setdefault("x", []).extend([f"v_add_u32 v{vHX+1}, 0x10000, v{vHX}", f"v_add_u32 v{vHX+3}, 0x10000, v{vHX+2}"])
    slots[P2 + 15].setdefault("x", []).extend(
        [("lds", f"ds_write_b128 v{vHX+1}, {vr(H5+4*kk,4)} offset:{kk*1024}", ("hw", 5)) for kk in range(2)])
    slots[P2 + 17].setdefault("bar", []).extend([("wl", [("hw", 5)]), "s_barrier"])
    slots[P2 + 17].setdefault("x", []).extend(hr(4) +
        [("lds", f"ds_read_b128 {vr(HP+40+4*kk,4)}, v{vHX+3} offset:{kk*1024}", ("hx", 5)) for kk in range(2)])
    slots[P2 + 21]["bar"].insert(0, ("wl", [("hx", 5)]))
    nextst = [f"s_add_u32 s{sST}, s{sST}, 4096", f"s_cmp_ge_u32 s{sST}, {9*4096}", f"s_cselect_b32 s{sST}, 0, s{sST}"]
    for j in range(1, 9):
        spread(slots, P2 + j * 24 + 2, P2 + j * 24 + 8, store_ops(ACC[(j - 1) & 1], SREG, "st") + nextst)
    for o in b1rd(0): A.op(o)
    for u in range(D):
        for o in rd(u): A.op(o)
    emit_slots(A, slots[:P2])
    stamp(A, opt, 3)
    emit_slots(A, slots[P2:])
    A("s_nop 7"); A("s_nop 3")
    for o in store_ops(ACC[0], SREG, "st"): A.op(o)
    stamp(A, opt, 4)
    A("s_endpgm")

def main_kernel(A, opt):
    K = "main_kernel"
    A(f".globl {K}"); A(".p2align 8"); A(f".type {K},@function"); A(f"{K}:")
    A("s_cmp_ge_u32 s2, 256")
    A("s_cbranch_scc1 L_exit")
    A(f"s_load_dwordx16 s[{68}:{83}], s[0:1], 0")
    A(f"s_load_dwordx16 s[{84}:{99}], s[0:1], 64")
    A(f"s_load_dwordx2 s[{66}:{67}], s[0:1], 128")
    if opt.stamps: A("s_memtime s[100:101]")
    A(f"v_lshrrev_b32 v2, 6, v0")
    A(f"v_and_b32 v{vLANE}, 63, v0")
    A(f"v_readfirstlane_b32 s{sW}, v2")
    A(f"s_and_b32 s{sT0}, s2, 7"); A(f"s_lshr_b32 s{sT0+1}, s2, 3")
    A(f"s_lshl_b32 s{sSL}, s{sT0}, 1"); A(f"s_and_b32 s{sT0+2}, s{sT0+1}, 1"); A(f"s_add_u32 s{sSL}, s{sSL}, s{sT0+2}")
    A(f"s_lshr_b32 s{sMT}, s{sT0+1}, 1")
    A(f"s_and_b32 s{sTG}, s{sW}, 3"); A(f"s_lshr_b32 s{sFG}, s{sW}, 2")
    A(f"s_mov_b32 s{sONE}, 0x3f803f80")
    A("s_waitcnt lgkmcnt(0)")
    srd(A, SX, kp(0), 2359296)
    srd(A, SWS, 66, WS_SIZE)
    x_loads(A)
    if opt.stamps:
        A(f"s_lshl_b32 s65, s2, 3"); A(f"s_add_u32 s65, s65, s{sW}"); A("s_lshl_b32 s65, s65, 6"); A(f"s_add_u32 s65, s65, {WS_STAMP}")
        A(f"v_mov_b32 v15, s100")
        A.vm(f"buffer_store_dword v15, off, s[{SWS}:{SWS+3}], s65", "stamp")
    A(f"s_cmp_ge_u32 s{sSL}, 12")
    A("s_cbranch_scc1 L_ssm")
    saved = (list(A.lq), list(A.vq))
    mlp_path(A, opt)
    A("L_ssm:")
    A.lq, A.vq = saved
    if opt.ssm:
        import gen_ssm
        gen_ssm.ssm_path(A, opt)
    A("L_exit:")
    A("s_endpgm")

def kp(i):
    return 68 + 2 * i

def reduce_kernel(A, opt):
    K = "reduce_kernel"
    A(f".globl {K}"); A(".p2align 8"); A(f".type {K},@function"); A(f"{K}:")
    A("s_cmp_ge_u32 s2, 576")
    A("s_cbranch_scc1 L_rexit")
    A("s_load_dwordx2 s[4:5], s[0:1], 0")
    A("s_load_dwordx2 s[6:7], s[0:1], 64")
    A("s_load_dwordx4 s[8:11], s[0:1], 104")
    A("s_load_dwordx2 s[12:13], s[0:1], 128")
    A("v_lshrrev_b32 v2, 6, v0")
    A("v_and_b32 v1, 63, v0")
    A("v_readfirstlane_b32 s3, v2")
    A("s_lshl_b32 s14, s2, 2"); A("s_add_u32 s14, s14, s3")
    A("s_mul_i32 s15, s14, 1821"); A("s_lshr_b32 s15, s15, 16")
    A("s_mul_i32 s16, s15, 36"); A("s_sub_u32 s16, s14, s16")
    A("s_lshr_b32 s17, s16, 1"); A("s_and_b32 s18, s16, 1")
    A("s_lshl_b32 s17, s17, 5"); A("s_lshl_b32 s18, s18, 3"); A("s_add_u32 s17, s17, s18")
    A("s_lshl_b32 s14, s14, 10")
    A("v_lshl_add_u32 v2, v1, 4, s14")
    A("v_lshrrev_b32 v3, 5, v1"); A("v_lshl_add_u32 v3, v3, 4, s17")
    A("v_and_b32 v4, 31, v1"); A("s_lshl_b32 s15, s15, 5"); A("v_add_u32 v4, s15, v4")
    A("s_movk_i32 s19, 576")
    A("v_mad_u32_u24 v5, v4, s19, v3")
    A("v_lshlrev_b32 v6, 1, v5"); A("v_lshlrev_b32 v7, 2, v5")
    A("v_lshlrev_b32 v3, 1, v3"); A("v_lshlrev_b32 v4, 3, v4")
    A("s_waitcnt lgkmcnt(0)")
    srd(A, 20, 12, WS_SIZE); srd(A, 24, 4, 2359296); srd(A, 28, 6, 1152); srd(A, 32, 8, 1152); srd(A, 36, 10, 4718592)
    NP = 16 if opt.ssm else 12
    for p in range(NP):
        A(f"s_mov_b32 s{40+p}, {p*PLANE}")
    A(f"s_mov_b32 s56, {WS_AFF}")
    for p in range(NP):
        A.vm(f"buffer_load_dwordx4 {vr(32+4*p,4)}, v2, s[20:23], s{40+p} offen", ("p", p))
    A.vm("buffer_load_dwordx4 v[8:11], v6, s[24:27], 0 offen", "x")
    A.vm("buffer_load_dwordx4 v[12:15], v3, s[28:31], 0 offen", "D")
    A.vm("buffer_load_dwordx4 v[16:19], v3, s[32:35], 0 offen", "b2")
    A.vm("buffer_load_dwordx2 v[20:21], v4, s[20:23], s56 offen", "aff")
    A("s_mov_b32 s57, 0x00003f80"); A("s_mov_b32 s58, 0x3f800000")
    O = 96; S = 104
    for r in range(16): A(f"v_mov_b32 v{O+r}, 0")
    for p in range(NP):
        A.wait(vm=[("p", p)])
        dst = O if p < 12 else S
        for j in range(4):
            A(f"v_dot2c_f32_bf16 v{dst+2*j}, s57, v{32+4*p+j}")
            A(f"v_dot2c_f32_bf16 v{dst+2*j+1}, s58, v{32+4*p+j}")
    A.wait(vm=["aff"])
    for (src, dst) in ((8, 32), (12, 40), (16, 48)):
        for j in range(4):
            A(f"v_lshlrev_b32 v{dst+2*j}, 16, v{src+j}")
            A(f"v_and_b32 v{dst+2*j+1}, 0xffff0000, v{src+j}")
    A(f"s_mov_b32 s59, {hexf(1.0/KSC)}")
    A(f"s_mov_b32 s60, {hexf(-math.log2(math.e))}")
    E = range(8)
    for e in E: A(f"v_fma_f32 v{O+e}, v{O+e}, s59, v{48+e}")
    if opt.ssm:
        for e in E: A(f"v_mul_f32 v{56+e}, s60, v{O+e}")
        for e in E: A(f"v_exp_f32 v{56+e}, v{56+e}")
        for e in E: A(f"v_sub_f32 v{64+e}, v{32+e}, v20")
        for e in E: A(f"v_add_f32 v{56+e}, 1.0, v{56+e}")
        for e in E: A(f"v_rcp_f32 v{56+e}, v{56+e}")
        for e in E: A(f"v_mul_f32 v{64+e}, v{64+e}, v21")
        for e in E: A(f"v_fma_f32 v{S+e}, v{64+e}, v{40+e}, v{S+e}")
        for e in E: A(f"v_mul_f32 v{O+e}, v{O+e}, v{56+e}")
        for e in E: A(f"v_fma_f32 v{O+e}, v{O+e}, v{S+e}, v{32+e}")
    A(f"buffer_store_dwordx4 {vr(O,4)}, v7, s[36:39], 0 offen")
    A(f"buffer_store_dwordx4 {vr(O+4,4)}, v7, s[36:39], 0 offen offset:16")
    A("L_rexit:")
    A("s_endpgm")

def kdesc(A, K, nv):
    A(".p2align 6")
    A(f".amdhsa_kernel {K}")
    A(f"  .amdhsa_next_free_vgpr {nv}")
    A("  .amdhsa_next_free_sgpr 102")
    A(f"  .amdhsa_accum_offset {nv}")
    A("  .amdhsa_group_segment_fixed_size 0")
    A("  .amdhsa_kernarg_size 136")
    A("  .amdhsa_user_sgpr_count 2")
    A("  .amdhsa_user_sgpr_kernarg_segment_ptr 1")
    A("  .amdhsa_system_sgpr_workgroup_id_x 1")
    A(".end_amdhsa_kernel")

def build(opt):
    A = Asm()
    A(HDR.rstrip("\n"))
    A("; @launch kernel=main_kernel grid=(256,1,1) block=(512,1,1) lds=163840")
    A("; @launch kernel=reduce_kernel grid=(576,1,1) block=(256,1,1) lds=0")
    A('.amdgcn_target "amdgcn-amd-amdhsa--gfx950"')
    A(".text")
    n0 = len(A.L)
    main_kernel(A, opt)
    A.lq = []; A.vq = []
    reduce_kernel(A, opt)
    errs = check_hazards(A.L[n0:])
    for e in errs: print(e, file=sys.stderr)
    A('.section .rodata,"a"')
    kdesc(A, "main_kernel", 256)
    kdesc(A, "reduce_kernel", 112)
    return A.text(), errs

if __name__ == "__main__":
    sys.modules["gen"] = sys.modules["__main__"]
    opt = Opt()
    out = sys.argv[1] if len(sys.argv) > 1 else "k.s"
    for a in sys.argv[2:]:
        k, v = a.split("=")
        setattr(opt, k, int(v))
    t, errs = build(opt)
    open(out, "w").write(t)
    print(out, len(t.splitlines()), "lines", len(errs), "hazards")
```

```python
import re, struct

def f2u(x):
    return struct.unpack("<I", struct.pack("<f", x))[0]

def hexf(x):
    return "0x%08x" % f2u(x)

def vr(b, n=1):
    return f"v{b}" if n == 1 else f"v[{b}:{b+n-1}]"

def sr(b, n=1):
    return f"s{b}" if n == 1 else f"s[{b}:{b+n-1}]"

_reg = re.compile(r"^(-|\|)?([vsa])(?:(\d+)|\[(\d+):(\d+)\])\|?$")

def regs_of(tok):
    tok = tok.strip()
    if tok in ("vcc", "vcc_lo", "vcc_hi"): return {"vcc"}
    if tok in ("exec",): return {"exec"}
    if tok == "m0": return {"m0"}
    m = _reg.match(tok)
    if not m: return set()
    k = m.group(2)
    if m.group(3) is not None: return {k + m.group(3)}
    return {k + str(i) for i in range(int(m.group(4)), int(m.group(5)) + 1)}

TRANS = ("v_exp_f32", "v_log_f32", "v_rcp_f32", "v_rsq_f32", "v_sqrt_f32", "v_sin_f32", "v_cos_f32")

class Ins:
    def __init__(self, text):
        self.text = text
        t = text.split(";")[0].strip()
        self.label = t.endswith(":") or t.startswith(".") or t == ""
        self.op = "" if self.label else t.split()[0]
        self.wr = set(); self.rd = set(); self.srcC = set(); self.ab = set()
        if self.label: return
        rest = t[len(self.op):].strip()
        toks = []
        for p in rest.split(","):
            p = p.strip()
            if p: toks.append(p.split()[0])
        self.toks = toks
        op = self.op
        self.mfma = op.startswith("v_mfma")
        self.valu = op.startswith("v_") and not self.mfma
        self.salu = op.startswith("s_")
        self.ds = op.startswith("ds_")
        self.vmem = op.startswith(("buffer_", "global_"))
        self.dpp = "quad_perm" in t or "row_" in t.replace("row_mask", "") or "_dpp" in op
        self.dot = op.startswith("v_dot")
        self.trans = op.replace("_e32", "").replace("_e64", "") in TRANS
        self.lds_dma = self.vmem and re.search(r"\blds\b", t) is not None
        R = [regs_of(x) for x in toks]
        if self.mfma:
            self.wr = R[0]; self.ab = R[1] | R[2]; self.srcC = R[3]; self.rd = self.ab | self.srcC
        elif self.valu:
            if op.startswith("v_permlane") and "swap" in op:
                self.wr = R[0] | R[1]; self.rd = R[0] | R[1]
            elif op.startswith("v_cmp"):
                self.wr = R[0]; self.rd = set().union(*R[1:])
            else:
                self.wr = R[0]; self.rd = set().union(*R[1:]) if len(R) > 1 else set()
                if op.startswith(("v_fmac", "v_dot2c", "v_mac", "v_writelane")) or self.dpp: self.rd |= R[0]
                if op.startswith("v_cndmask") and len(toks) == 3: self.rd |= {"vcc"}
                if "_co_" in op: self.wr |= R[1]
        elif self.ds:
            if op.startswith(("ds_read", "ds_bpermute", "ds_permute", "ds_swizzle")) or "_rtn" in op:
                self.wr = R[0]; self.rd = set().union(*R[1:])
            else:
                self.rd = set().union(*R)
        elif self.vmem:
            if op in ("buffer_inv", "buffer_wbl2"): pass
            elif self.lds_dma: self.rd = set().union(*R) | {"m0"}
            elif "load" in op: self.wr = R[0]; self.rd = set().union(*R[1:])
            else:
                self.rd = set().union(*R); self.stdata = R[0] if op.startswith("buffer_") else R[1]
                if "atomic" in op and " sc0" in t: self.wr = R[0]
        elif self.salu:
            if op.startswith(("s_cmp", "s_cbranch", "s_branch", "s_waitcnt", "s_barrier", "s_nop", "s_endpgm", "s_setprio", "s_sleep", "s_bitcmp")):
                self.rd = set().union(*R) if R else set()
            else:
                self.wr = R[0] if R else set(); self.rd = set().union(*R[1:]) if len(R) > 1 else set()
                if "saveexec" in op: self.wr |= {"exec"}

    def states(self):
        if self.label: return 0
        if self.op == "s_nop": return int(self.toks[0]) + 1
        return 1

def passes(op):
    if "32x32x2_f32" in op: return 16
    if "16x16x32" in op: return 4
    return 8

def need_between(p, c):
    need = 0
    vw = {r for r in p.wr if r[0] in "va" and r != "vcc"}
    sw = {r for r in p.wr if r[0] == "s" or r == "vcc"}
    if p.mfma:
        ps = passes(p.op); sg = p.op.endswith("_f32")
        ov = {4: 6, 8: 10, 16: 18}[ps]
        ab = ov if sg else ov + 2
        if c.mfma:
            csg = c.op.endswith("_f32")
            if c.ab & p.wr: need = ab
            same = (c.srcC == p.wr and c.op == p.op)
            if (c.srcC & p.wr or c.wr & p.wr) and not same:
                if not (sg and not csg and c.srcC == p.wr): need = max(need, ov)
        elif (c.rd | c.wr) & p.wr: need = ab
        if c.valu and (c.wr & p.srcC) and not sg: need = max(need, ps - 1)
    elif p.valu:
        if c.mfma and (c.rd & vw): need = 3 if p.dot else 2
        if c.valu and c.dpp and (c.rd & vw): need = max(need, 2)
        if c.op.startswith("v_permlane") and (c.rd & vw): need = max(need, 2)
        if c.op.startswith(("v_readlane", "v_readfirstlane")) and (c.rd & vw): need = max(need, 1)
        if p.trans and c.valu and not c.trans and (c.rd & vw): need = max(need, 1)
        if p.dot and ((c.rd | c.wr) & vw):
            if c.op != p.op: need = max(need, 3)
            else:
                R = [regs_of(x) for x in c.toks]
                if (R[1] | R[2]) & vw: need = max(need, 3)
        if c.vmem and (c.rd & sw): need = max(need, 5)
        if c.valu and (c.rd & sw): need = max(need, 2)
        if "exec" in p.wr and (c.dpp): need = max(need, 5)
        if ("sdwa" in p.op or "op_sel" in p.text) and c.valu and (c.rd & vw): need = max(need, 1)
    elif p.salu:
        if "m0" in p.wr and c.vmem and c.lds_dma: need = 1
    elif p.vmem and hasattr(p, "stdata") and len(p.stdata) >= 3:
        if c.wr & p.stdata: need = 2
    return need

def check_hazards(lines, fix=False):
    out = []
    errs = []
    for l in lines:
        c = Ins(l)
        if not c.label:
            d = 0; short = 0; why = None
            j = len(out) - 1
            while j >= 0 and d < 22:
                p = out[j]
                if not p.label:
                    if p.op == "s_endpgm": break
                    need = need_between(p, c)
                    if need - d > short:
                        short = need - d; why = f"hazard need {need} have {d}: {p.text.strip()}  ->  {c.text.strip()}"
                    d += p.states()
                j -= 1
            if short:
                errs.append(why)
                if fix:
                    while short > 0:
                        n = min(short, 8)
                        out.append(Ins(f"s_nop {n-1}")); short -= n
        out.append(c)
    if fix: return [i.text for i in out], errs
    return errs

class Asm:
    def __init__(self):
        self.L = []
        self.lq = []
        self.vq = []

    def __call__(self, s):
        self.L.append(s)

    def lds(self, s, tag=None):
        self.L.append(s); self.lq.append(tag)

    def vm(self, s, tag=None):
        self.L.append(s); self.vq.append(tag)

    def _need(self, q, tags, mx):
        last = -1
        for i, t in enumerate(q):
            if t in tags: last = i
        if last < 0: return None
        n = len(q) - 1 - last
        n = min(n, mx)
        del q[:len(q) - n]
        return n

    def wait(self, lds=(), vm=()):
        if isinstance(lds, (str, tuple)) and not isinstance(lds, list): lds = [lds] if lds != () else []
        if isinstance(vm, (str, tuple)) and not isinstance(vm, list): vm = [vm] if vm != () else []
        a = self._need(self.lq, lds, 15) if lds else None
        b = self._need(self.vq, vm, 63) if vm else None
        parts = []
        if b is not None: parts.append(f"vmcnt({b})")
        if a is not None: parts.append(f"lgkmcnt({a})")
        if parts: self.L.append("s_waitcnt " + " ".join(parts))

    def wait_all(self, lds=True, vm=False):
        parts = []
        if vm: parts.append("vmcnt(0)"); self.vq = []
        if lds: parts.append("lgkmcnt(0)"); self.lq = []
        self.L.append("s_waitcnt " + " ".join(parts))

    def op(self, o):
        if isinstance(o, str): self(o)
        elif o[0] == "grp":
            for x in o[1]: self.op(x)
        elif o[0] == "lds": self.lds(o[1], o[2])
        elif o[0] == "vm": self.vm(o[1], o[2])
        elif o[0] == "wl": self.wait(lds=list(o[1]))
        elif o[0] == "wv": self.wait(vm=list(o[1]))
        elif o[0] == "wlv": self.wait(lds=list(o[1]), vm=list(o[2]))
        elif o[0] == "wall": self.wait_all(o[1], o[2])
        else: raise ValueError(o)

    def text(self):
        return "\n".join(self.L) + "\n"
```

```python
import math
from asmlib import *
from gen2 import *
import gen2 as G

DPP = "quad_perm:[1,0,3,2] row_mask:0xf bank_mask:0xf"
U = [16 + 16 * t for t in range(5)]
SBUF = 96
sQ = 49
sER = 38

def sel_srd(A, d, pa, pb, nrec, lower):
    A(f"s_cselect_b32 s{d}, s{pb}, s{pa}")
    A(f"s_cselect_b32 s{d+1}, s{pb+1}, s{pa+1}")
    A(f"s_sub_u32 s{d}, s{d}, {lower}")
    A(f"s_subb_u32 s{d+1}, s{d+1}, 0")
    A(f"s_mov_b32 s{d+2}, {nrec + lower}")
    A(f"s_mov_b32 s{d+3}, 0x20000")

def pass1_ops(t):
    u = U[t]
    ops = [("wl", [("k", t)])]
    def coef(i, tmp=2):
        return [f"v_mul_f32_dpp v{tmp}, v{u+i}, v15 {DPP}", f"v_fma_f32 v{u+i}, v{u+i}, v14, v{tmp}"]
    ops += coef(0) + coef(1, 10)
    e = u
    for i in range(1, 16):
        ne = 10 + (i & 1)
        ops += [f"v_fma_f32 v{ne}, v12, v{e}, v{u+i}"]
        if i + 1 < 16: ops += coef(i + 1)
        else: ops += ["s_nop 1"]
        ops += [f"v_fmac_f32_dpp v{ne}, v{e}, v13 {DPP}"]
        e = ne
    ops.append(("lds", f"ds_write_b32 v9, v{e} offset:{t*256}", "ew"))
    return ops

def kread(t):
    return [("lds", f"ds_read_b128 v[12:15], v8 offset:{t*1024}", ("k", t))]

def ssm_path(A, opt):
    D = 3
    A(f"s_sub_u32 s{sQ}, s{sSL}, 12")
    A("v_lshrrev_b32 v9, 5, v0"); A("v_bfe_u32 v10, v0, 1, 4"); A("v_lshl_add_u32 v9, v9, 4, v10")
    A("v_lshlrev_b32 v9, 1, v9")
    A(f"s_mul_i32 s{sT0+2}, s{sQ}, 288")
    for i, pi in enumerate((1, 2, 7)):
        srd(A, SM, kp(pi), 1152)
        A.vm(f"buffer_load_ushort v{49+i}, v9, s[{SM}:{SM+3}], s{sT0+2} offen", "par")
    A("v_mov_b32 v52, v0")
    A(f"s_bitcmp1_b32 s{sW}, 1")
    sel_srd(A, SA, kp(3), kp(4), 663552, 4096)
    A(f"s_cmp_ge_u32 s{sW}, 4")
    sel_srd(A, SB, kp(5), kp(6), 663552, 4096)
    srd(A, SM, kp(15), 256)
    A(f"s_cmp_ge_u32 s{sMT}, 9"); A(f"s_cselect_b32 s{sT0+2}, 9, 0"); A(f"s_sub_u32 s{sROT2}, s{sMT}, s{sT0+2}")
    for i in range(9): A(f"s_mov_b32 s{sD1+i}, {4096 + i*128 - (i%4)*1024}")
    A(f"s_mul_i32 s{sM0W}, s{sW}, 9216")
    A(f"v_lshrrev_b32 v9, 3, v{vLANE}")
    A(f"s_and_b32 s{sT0+2}, s{sW}, 1"); A(f"s_lshl_b32 s{sT0+2}, s{sT0+2}, 3")
    A(f"v_add_u32 v9, s{sT0+2}, v9")
    A(f"v_lshrrev_b32 v10, 1, v9")
    A(f"s_bfe_u32 s{sT0+3}, s{sW}, 0x10001")
    A(f"v_xor_b32 v10, s{sT0+3}, v10")
    A(f"v_and_b32 v11, 7, v{vLANE}")
    A(f"v_xor_b32 v10, v10, v11")
    A(f"s_mul_i32 s{sT0+2}, s{sQ}, 144"); A(f"s_lshl_b32 s{sT0+3}, s{sFG}, 4"); A(f"s_add_u32 s{sT0+2}, s{sT0+2}, s{sT0+3}")
    A(f"v_add_u32 v9, s{sT0+2}, v9")
    A(f"v_mul_u32_u24 v9, 1152, v9")
    A(f"v_lshl_add_u32 v{vDMA2}, v10, 4, v9")
    for i in range(9):
        for o in dma1(A, 0, i): A.op(o)
    nextrow = [f"v_add_u32 v{vDMA2}, {32*1152}, v{vDMA2}"]
    A(f"v_and_b32 v9, 1, v{vLANE}")
    A(f"v_bfe_u32 v10, v{vLANE}, 1, 4")
    A(f"v_lshrrev_b32 v11, 3, v10"); A("v_lshl_add_u32 v11, v9, 1, v11")
    A(f"s_lshl_b32 s{sT0+2}, s{sFG}, 2"); A(f"v_add_u32 v11, s{sT0+2}, v11")
    A("v_mul_u32_u24 v11, 9216, v11")
    A("v_and_b32 v12, 7, v10"); A("v_lshl_add_u32 v11, v12, 7, v11")
    A("v_lshrrev_b32 v10, 1, v10"); A("v_xor_b32 v10, v10, v9")
    A(f"v_lshrrev_b32 v9, 5, v{vLANE}"); A("v_xor_b32 v10, v10, v9")
    A("v_lshl_add_u32 v4, v10, 4, v11")
    for i in range(1, 4): A(f"v_xor_b32 v{4+i}, {32*i}, v4")

    ln_prologue(A, opt, False)
    clear_flag(A)
    A(f"s_lshl_b32 s{sT0+2}, s{sQ}, 4"); A(f"s_add_u32 s{sT0+2}, s{sT0+2}, 15"); A(f"s_sub_u32 s{sT0+2}, s{sT0+2}, s{sMT}")
    A(f"s_mul_i32 s{sER}, s{sT0+2}, {EROW}"); A(f"s_add_u32 s{sER}, s{sER}, {WS_E}")
    A(f"s_cmp_ge_u32 s{sW}, 5"); A("s_cbranch_scc1 L_noclr")
    A("v_lshlrev_b32 v9, 2, v52"); A("v_mov_b32 v10, -1")
    A(f"buffer_store_dword v10, v9, s[{SWS}:{SWS+3}], s{sER} offen sc0 sc1")
    A("L_noclr:")
    for o in nextrow: A.op(o)
    for i in range(9):
        for o in dma1(A, 1, i): A.op(o)
    A.wait(vm=["par"])
    for r in (49, 50, 51): A(f"v_lshlrev_b32 v{r}, 16, v{r}")
    L2E = hexf(math.log2(math.e))
    A(f"v_mul_f32 v51, {L2E}, v51"); A("v_exp_f32 v51, v51"); A("s_nop 0")
    bf16r(A, 51, 51)
    A("v_mul_f32 v53, v51, v49"); A("v_mul_f32 v54, v51, v50")
    A(f"v_mul_f32 v53, {L2E}, v53"); A("v_mul_f32 v54, 0.15915494, v54")
    A("v_exp_f32 v53, v53"); A("v_fract_f32 v54, v54")
    A("v_cos_f32 v56, v54"); A("v_sin_f32 v57, v54")
    A("v_mul_f32 v58, v49, v49"); A("v_fma_f32 v58, v50, v50, v58")
    A("v_mul_f32 v56, v56, v53"); A("v_mul_f32 v57, v57, v53")
    A("v_rcp_f32 v58, v58")
    A("v_add_f32 v59, -1.0, v56")
    A("v_mul_f32 v60, v59, v49"); A("v_fma_f32 v60, v57, v50, v60")
    A("v_mul_f32 v61, v57, v49"); A("v_fma_f32 v61, -v59, v50, v61")
    A("v_add_f32 v58, v58, v58")
    A("v_and_b32 v55, 1, v52"); A("v_lshlrev_b32 v55, 31, v55")
    A("v_mul_f32 v60, v60, v58"); A("v_mul_f32 v59, v61, v58")
    A("v_xor_b32 v57, v57, v55")
    A("v_xor_b32 v58, v60, v55")
    A("v_sub_f32 v59, 0, v59")
    A(f"v_lshlrev_b32 v55, 4, v52"); A(f"v_add_u32 v55, {LDS_KT}, v55")
    A("v_cmp_gt_u32 vcc, 288, v52")
    A(f"s_and_saveexec_b64 s[{sT0+4}:{sT0+5}], vcc")
    A.lds("ds_write_b128 v55, v[56:59]", "kw")
    A(f"s_mov_b64 exec, s[{sT0+4}:{sT0+5}]")
    A(f"v_and_b32 v10, 31, v{vLANE}")
    A(f"s_lshl_b32 s{sT0+2}, s{sFG}, 5"); A(f"v_add_u32 v10, s{sT0+2}, v10")
    A(f"v_lshlrev_b32 v8, 4, v10"); A(f"v_add_u32 v8, {LDS_KT}, v8")
    A(f"v_lshrrev_b32 v11, 5, v{vLANE}"); A(f"s_lshl_b32 s{sT0+2}, s{sTG}, 1"); A(f"v_add_u32 v11, s{sT0+2}, v11")
    A("v_mul_u32_u24 v11, 288, v11"); A("v_add_u32 v10, v10, v11")
    A(f"v_lshlrev_b32 v9, 2, v10"); A(f"v_add_u32 v9, {LDS_ET}, v9")
    A.wait(lds=["kw"], vm=[("d1", 0)])
    A("s_barrier")

    units = [(s, k) for s in range(5) for k in range(36)]
    NU = len(units)
    def rd(u):
        s, k = units[u]
        return [("lds", f"ds_read_b128 {vr(SBUF + 4*(u%4), 4)}, v{4+(k&3)} offset:{(k>>2)*1024}", ("a", u))]
    slots = []
    for u, (s, k) in enumerate(units):
        slots.append({"pre": [("wl", [("a", u)])],
                      "mfma": f"v_mfma_f32_32x32x16_bf16 {vr(U[s],16)}, {vr(YB+4*k,4)}, {vr(SBUF+4*(u%4),4)}, {'0' if k == 0 else vr(U[s],16)}"})
    for u in range(NU - D):
        s, k = units[u + D]
        if k == 0:
            op = "v_add_u32" if s & 1 else "v_subrev_u32"
            slots[u]["bar"] = [f"{op} v{4+i}, {BUFSZ}, v{4+i}" for i in range(4)] + [("wv", [("d1", s)]), "s_barrier"]
        slots[u]["rd"] = rd(u + D)
    slots[36 - D]["bar"] += announce("L_ann_s")
    for s in range(2, 5):
        base = (s - 1) * 36 - 2
        slots[base].setdefault("dma", []).extend(nextrow)
        for i in range(9): slots[base + 1 + 2 * i].setdefault("dma", []).extend(dma1(A, s, i))
    for s in range(1, 5):
        slots[s * 36 - 1].setdefault("x", []).extend(kread(s - 1))
        spread(slots, s * 36 + 3, s * 36 + 30, pass1_ops(s - 1))
    vC = YB
    SLOT = [73728, 110592, 0, 36864]
    csetup = [f"s_and_b32 s{sT0+2}, s{sW}, 1", f"s_lshl_b32 s{sT0+2}, s{sT0+2}, 8",
              f"s_bfe_u32 s{sT0+3}, s{sW}, 0x10001", f"s_mul_i32 s{sT0+3}, s{sT0+3}, {32*1152}",
              f"s_mul_i32 s{sT0+4}, s{sQ}, 288", f"s_add_u32 s{sT0+3}, s{sT0+3}, s{sT0+4}",
              f"s_lshr_b32 s{sM0A}, s{sW}, 1", f"s_mul_i32 s{sM0A}, s{sM0A}, 9216",
              f"s_lshl_b32 s{sT0+4}, s{sT0+2}, 4", f"s_add_u32 s{sM0A}, s{sM0A}, s{sT0+4}",
              f"s_mul_i32 s{sDP}, s{sROT2}, 73728", f"s_movk_i32 s{sT0+5}, 3641"]
    for i in range(5):
        a, b, c = vC + 5, vC + 6, vC + 7
        csetup += [f"v_add_u32 v{a}, s{sT0+2}, v{vLANE}", f"v_add_u32 v{a}, {64*i}, v{a}",
                   f"v_mul_u32_u24 v{b}, s{sT0+5}, v{a}", f"v_lshrrev_b32 v{b}, 16, v{b}",
                   f"v_mul_u32_u24 v{c}, 18, v{b}", f"v_sub_u32 v{a}, v{a}, v{c}",
                   f"v_lshrrev_b32 v{c}, 4, v{b}", f"v_xor_b32 v{a}, v{a}, v{c}",
                   f"v_and_b32 v{vC+i}, 3, v{b}",
                   f"v_lshrrev_b32 v{c}, 3, v{b}", f"v_lshl_add_u32 v{vC+i}, v{c}, 2, v{vC+i}",
                   f"v_bfe_u32 v{c}, v{b}, 2, 1", f"v_lshl_add_u32 v{vC+i}, v{c}, 4, v{vC+i}",
                   f"v_mul_u32_u24 v{vC+i}, 1152, v{vC+i}", f"v_lshl_add_u32 v{vC+i}, v{a}, 4, v{vC+i}",
                   f"v_add_u32 v{vC+i}, s{sT0+3}, v{vC+i}", f"v_add_u32 v{vC+i}, {4096 - (i%4)*1024}, v{vC+i}"]
    def dmac(j, i):
        ops = []
        if i % 4 == 0: ops += [f"s_add_u32 m0, s{sM0A}, {SLOT[j%4] + i*1024}", "s_nop 0"]
        ops.append(("vm", f"buffer_load_dwordx4 v{vC+i}, s[{SB}:{SB+3}], s{sDP} offen offset:{(i%4)*1024} lds", ("d2", j)))
        if i == 4: ops += [f"s_add_u32 s{sDP}, s{sDP}, 73728", f"s_cmp_ge_u32 s{sDP}, {9*73728}", f"s_cselect_b32 s{sDP}, 0, s{sDP}"]
        return ops
    S4 = 4 * 36
    spread(slots, S4 + 2, S4 + 20, csetup, "x")
    n = 0
    for j in range(2):
        for i in range(5):
            slots[S4 + 21 + n].setdefault("dma", []).extend(dmac(j, i)); n += 1
    slots[S4 + 34].setdefault("x", []).extend(kread(4))
    for u in range(D):
        for o in rd(u): A.op(o)
    emit_slots(A, slots[:S4])
    A(f"s_cmp_lg_u32 s{sFG}, 0")
    A("s_cbranch_scc1 L_s4b")
    saved = (list(A.lq), list(A.vq))
    emit_slots(A, slots[S4:])
    A("s_nop 7"); A("s_nop 3")
    for o in pass1_ops(4): A.op(o)
    A.wait_all()
    A("s_branch L_s4j")
    vq_a = list(A.vq)
    A("L_s4b:")
    A.lq, A.vq = saved
    for o in csetup: A.op(o)
    for j in range(2):
        for i in range(5):
            for o in dmac(j, i): A.op(o)
    for o in pass1_ops(3): A.op(o)
    A(f"s_cmp_lg_u32 s{sW}, 7"); A("s_cbranch_scc1 L_nochk")
    check_all(A, "L_chk_s", 120)
    A("L_nochk:")
    A.wait_all()
    assert len(A.vq) == len(vq_a), (A.vq, vq_a)
    A("L_s4j:")
    stamp(A, opt, 3)
    A("s_barrier")

    T = 120
    A(f"s_cmp_ge_u32 s{sW}, 5")
    A("s_cbranch_scc1 L_carry_done")
    saved = (list(A.lq), list(A.vq))
    A(f"s_lshl_b32 s{sT0+2}, s{sW}, 6")
    A(f"v_add_u32 v{T}, s{sT0+2}, v{vLANE}")
    A(f"v_cmp_gt_u32 vcc, 288, v{T}")
    A(f"s_and_saveexec_b64 s[{sT0+8}:{sT0+9}], vcc")
    A(f"v_lshlrev_b32 v{T+1}, 4, v{T}"); A(f"v_add_u32 v{T+1}, {LDS_KT}, v{T+1}")
    A(f"v_lshlrev_b32 v{T}, 2, v{T}"); A(f"v_add_u32 v{T+2}, {LDS_ET}, v{T}")
    A.lds(f"ds_read_b64 v[{T+4}:{T+5}], v{T+1}", "kk")
    EI = T + 12
    for i in range(8): A.lds(f"ds_read_b32 v{EI+i}, v{T+2} offset:{i*1152}", ("e", i))
    A.wait(lds=["kk"])
    def sq(dr, ds_, r, s):
        A(f"v_mul_f32 v{T+3}, v{s}, v{s}")
        A(f"v_mul_f32 v{ds_}, v{r}, v{s}")
        A(f"v_fma_f32 v{dr}, v{r}, v{r}, -v{T+3}")
        A(f"v_add_f32 v{ds_}, v{ds_}, v{ds_}")
    for _ in range(4): sq(T + 4, T + 5, T + 4, T + 5)
    A.wait(lds=[("e", 7)])
    def step(new, old, add, lr, ls):
        A(f"v_fma_f32 v{new}, v{lr}, v{old}, v{add}")
        A("s_nop 1")
        A(f"v_fmac_f32_dpp v{new}, v{old}, v{ls} {DPP}")
    p = EI
    for i in range(1, 8):
        n_ = T + 8 + (i & 1)
        step(n_, p, EI + i, T + 4, T + 5); p = n_
    A.vm(f"buffer_store_dword v{p}, v{T}, s[{SWS}:{SWS+3}], s{sER} offen sc0 sc1", "pub")
    A(f"s_add_u32 s{sT0+2}, s{sQ}, 1"); A(f"s_mul_i32 s{sT0+2}, s{sT0+2}, {16*EROW}"); A(f"s_add_u32 s{SX+2}, s{sT0+2}, {WS_E}")
    A(f"s_mov_b32 s{SX}, s{SWS}"); A(f"s_mov_b32 s{SX+1}, s{SWS+1}")
    for r in range(4): A(f"s_add_u32 s{sT0+2+r}, s{sER}, {EROW*(1+4*r)}")
    A(f"s_movk_i32 s{sT0+6}, 0x4000")
    EC = T + 24
    A("L_poll:")
    for c in range(15):
        A(f"buffer_load_dword v{EC+c}, v{T}, s[{SX}:{SX+3}], s{sT0+2+c//4} offen offset:{(c%4)*EROW} sc0 sc1")
    sq(T + 6, T + 7, T + 4, T + 5)
    for _ in range(2): sq(T + 6, T + 7, T + 6, T + 7)
    A(f"s_sub_u32 s{sT0+6}, s{sT0+6}, 1")
    A("s_cbranch_scc1 L_poll_done")
    A("s_waitcnt vmcnt(0)")
    A(f"v_max3_u32 v{T+8}, v{EC}, v{EC+1}, v{EC+2}")
    for c in range(3, 15, 2): A(f"v_max3_u32 v{T+8}, v{T+8}, v{EC+c}, v{EC+c+1}")
    A(f"v_cmp_eq_u32 vcc, -1, v{T+8}")
    A("s_cbranch_vccnz L_poll")
    A("L_poll_done:")
    A.wait_all(lds=False, vm=True)
    stamp(A, opt, 4)
    p = EC + 14
    for c in range(13, -1, -1):
        n_ = T + 8 + (c & 1)
        step(n_, p, EC + c, T + 6, T + 7); p = n_
    A("s_nop 1")
    p = T + 8
    for i in range(8):
        A.lds(f"ds_write_b32 v{T+2}, v{p} offset:{i*1152}", "gw")
        if i < 7:
            n_ = T + 8 + ((i + 1) & 1)
            step(n_, p, EI + i, T + 4, T + 5); p = n_
    A(f"s_mov_b64 exec, s[{sT0+8}:{sT0+9}]")
    A.wait_all()
    A("L_carry_done:")
    A.lq, A.vq = saved
    A("s_barrier")
    stamp(A, opt, 5)

    KK = 120
    A(f"v_and_b32 v10, 1, v{vLANE}"); A(f"v_bfe_u32 v11, v{vLANE}, 1, 4")
    A("v_lshl_add_u32 v11, v10, 4, v11"); A("v_lshlrev_b32 v11, 6, v11")
    A(f"v_lshrrev_b32 v12, 5, v{vLANE}"); A("v_xor_b32 v10, v10, v12")
    A(f"v_bfe_u32 v12, v{vLANE}, 2, 1"); A("v_lshl_add_u32 v10, v10, 1, v12")
    A("v_lshl_add_u32 v136, v10, 4, v11")
    A(f"s_mul_i32 s{sT0+2}, s{sTG}, 18432"); A(f"s_lshl_b32 s{sT0+3}, s{sFG}, 11"); A(f"s_add_u32 s{sT0+3}, s{sT0+3}, s{sT0+2}")
    A(f"v_add_u32 v136, s{sT0+3}, v136"); A("v_xor_b32 v137, 16, v136")
    def pass2(nt):
        for t in range(nt):
            A.lds(f"ds_read_b64 v[{KK+2*t}:{KK+2*t+1}], v8 offset:{t*1024}", "k2")
            A.lds(f"ds_read_b32 v{130+t}, v9 offset:{t*256}", "k2")
        A.wait_all()
        for i in range(16):
            for t in range(nt):
                prev = 130 + t if i == 0 else U[t] + i - 1
                A(f"v_fmac_f32 v{U[t]+i}, v{KK+2*t}, v{prev}")
            for t in range(nt):
                prev = 130 + t if i == 0 else U[t] + i - 1
                A(f"v_fmac_f32_dpp v{U[t]+i}, v{prev}, v{KK+2*t+1} {DPP}")
        for t in range(nt):
            for j in range(8):
                A(f"v_cvt_pk_bf16_f32 v{U[t]+j}, v{U[t]+2*j}, v{U[t]+2*j+1}")
                if j % 4 == 3:
                    A.lds(f"ds_write_b128 v{136 + j//4}, {vr(U[t]+j-3,4)} offset:{t*4096}", "hw")
        A.wait_all()
    A(f"s_cmp_lg_u32 s{sFG}, 0")
    A("s_cbranch_scc1 L_p2b")
    pass2(5)
    A("s_branch L_p2j")
    A("L_p2b:")
    pass2(4)
    A("L_p2j:")
    A(f"v_lshrrev_b32 v10, 5, v{vLANE}"); A(f"v_bfe_u32 v11, v{vLANE}, 2, 2")
    A("v_lshl_add_u32 v10, v10, 3, v11"); A("v_lshlrev_b32 v10, 6, v10")
    A(f"v_bfe_u32 v11, v{vLANE}, 1, 1"); A(f"v_bfe_u32 v12, v{vLANE}, 3, 1"); A("v_xor_b32 v11, v11, v12")
    A(f"v_bfe_u32 v12, v{vLANE}, 4, 1"); A("v_lshl_add_u32 v11, v12, 1, v11")
    A("v_lshl_add_u32 v10, v11, 4, v10")
    A(f"v_and_b32 v11, 1, v{vLANE}"); A("v_lshl_add_u32 v10, v11, 3, v10")
    A(f"v_add_u32 v4, s{sT0+2}, v10"); A("v_xor_b32 v5, 32, v4")
    A(f"v_and_b32 v10, 31, v{vLANE}"); A("v_mul_u32_u24 v11, 288, v10")
    A(f"v_lshrrev_b32 v10, 4, v10"); A(f"v_lshrrev_b32 v12, 5, v{vLANE}"); A("v_xor_b32 v10, v10, v12")
    A("v_lshl_add_u32 v6, v10, 4, v11")
    A(f"s_mul_i32 s{sT0+3}, s{sFG}, 9216"); A(f"v_add_u32 v6, s{sT0+3}, v6"); A(f"v_add_u32 v7, 73728, v6")
    A(f"v_lshlrev_b32 v{vXA}, 4, v{vLANE}")
    A(f"s_lshl_b32 s{sT0+2}, s{sMT}, 2"); A(f"s_add_u32 s{sT0+2}, s{sT0+2}, s{sTG}")
    A(f"s_mul_i32 s{sT0+2}, s{sT0+2}, {18*2048}"); A(f"s_mul_i32 s{sT0+3}, s{sSL}, {PLANE}")
    A(f"s_add_u32 s{sT0+2}, s{sT0+2}, s{sT0+3}"); A(f"s_lshl_b32 s{sT0+3}, s{sFG}, 11")
    A(f"s_add_u32 s{sT0+2}, s{sT0+2}, s{sT0+3}"); A(f"v_add_u32 v{vXA}, s{sT0+2}, v{vXA}")
    A(f"s_lshl_b32 s{sST}, s{sROT2}, 12")
    A.wait(vm=[("d2", 0)])
    A("s_barrier")
    stamp(A, opt, 6)
    GF = 184
    for ks in range(18):
        tile, kk = ks >> 1, ks & 1
        for rr in range(2):
            A.lds(f"ds_read_b64_tr_b16 {vr(GF+4*ks+2*rr,2)}, v{4+kk} offset:{tile*2048 + kk*1024 + rr*256}", "g")
    units = [(j, k) for j in range(9) for k in range(18)]
    NU = len(units)
    def rd2(u):
        j, k = units[u]
        so = SLOT[j % 4]
        a = 7 if so >= 73728 else 6
        off = so % 73728 + (k & 1) * 18432 + (k >> 1) * 32
        return [("lds", f"ds_read_b128 {vr(SBUF + 4*(u%4), 4)}, v{a} offset:{off}", ("a", u))]
    slots = []
    for u, (j, k) in enumerate(units):
        acc = ACC[j & 1]
        slots.append({"pre": [("wl", [("a", u)])],
                      "mfma": f"v_mfma_f32_32x32x16_bf16 {vr(acc,16)}, {vr(SBUF+4*(u%4),4)}, {vr(GF+4*k,4)}, {'0' if k == 0 else vr(acc,16)}"})
    for u in range(NU - D):
        j, k = units[u + D]
        if k == 0: slots[u]["bar"] = [("wv", [("d2", j)]), "s_barrier"]
        slots[u]["rd"] = rd2(u + D)
    slots[0]["bar"] = ["s_barrier"]
    n = 1
    for j in (2, 3):
        for i in range(5):
            slots[n].setdefault("dma", []).extend(dmac(j, i)); n += 1
    for j in range(4, 9):
        base = (j - 3) * 18 - 2
        for i in range(5): slots[base + 2 * i].setdefault("dma", []).extend(dmac(j, i))
    nextst = [f"s_add_u32 s{sST}, s{sST}, 4096", f"s_cmp_ge_u32 s{sST}, {9*4096}", f"s_cselect_b32 s{sST}, 0, s{sST}"]
    SREG = 48
    for j in range(1, 9):
        spread(slots, j * 18 + 3, j * 18 + 9, store_ops(ACC[(j - 1) & 1], SREG, "st") + nextst)
    for u in range(D):
        for o in rd2(u): A.op(o)
    emit_slots(A, slots)
    A("s_nop 7"); A("s_nop 3")
    for o in store_ops(ACC[0], SREG, "st"): A.op(o)
    stamp(A, opt, 7)
```

```python
import sys, math
from asmlib import *

NAME = "recurrent_scan__ssm_conv_s5__mixer_channel_mlp__prompt"
HDR = open("cdna_kernels/" + NAME + ".s.ref").read().split("; Override launch")[0]

C0 = -2.0 * math.log2(math.e) * math.sqrt(2.0 / math.pi)
C1 = C0 * 0.044715
KSC = -((-C1) ** (1.0 / 3.0))
C0K = C0 / KSC
PLANE = 2048 * 576 * 2
WS_AFF = 16 * PLANE
WS_E = WS_AFF + 2048 * 8
EROW = 1280
WS_FLAG = WS_E + 4 * 16 * EROW
WS_STAMP = WS_FLAG + 16 * 128 + 4096
WS_SIZE = WS_STAMP + 65536 * 8
BUFSZ = 73728
LDS_Y = 73728
LDS_B1 = 155648
LDS_ET = 147456
LDS_KT = 156672

sW, sTG, sFG, sMT, sSL = 3, 4, 5, 6, 7
SX, SA, SB, SWS, SM = 8, 12, 16, 20, 24
sT0 = 28
sD1 = 40
sD2 = 50
sROT, sROT2, sCOL, sM0A, sST, sDP, sC0K, sONE, sM0W = 56, 57, 58, 59, 60, 61, 62, 63, 64
sFLG = 39
sPTR = 66
def kp(i): return sPTR + 2 * i

vLANE = 1
vDMA, vDMA2 = 2, 3
vTR = 4
vB1 = 7
vXA = 8
ACC = [16, 32]
ABUF = 48
TMP = 64
HOWN = 72
YB = 112

class Opt:
    stamps = False
    ssm = True
    nost = False
    newmap = 1
    wt = 1

def stamp(A, opt, idx):
    if not opt.stamps: return
    A(f"s_memtime s[100:101]")
    A("s_waitcnt lgkmcnt(0)")
    A.lq = []
    A(f"v_mov_b32 v0, s100")
    A(f"s_memrealtime s[100:101]")
    A.vm(f"buffer_store_dword v0, off, s[{SWS}:{SWS+3}], s65 offset:{4*idx}", "stamp")
    A("s_waitcnt lgkmcnt(0)")
    A(f"v_mov_b32 v0, s100")
    A.vm(f"buffer_store_dword v0, off, s[{SWS}:{SWS+3}], s65 offset:{4*idx+64}", "stamp")

PST = []
def pstamp(A, opt, idx):
    if not opt.stamps: return
    A(f"s_memtime s[100:101]")
    A("s_waitcnt lgkmcnt(0)")
    A.lq = []
    A(f"v_mov_b32 v{56+idx-5}, s100")

def pflush(A, opt, idxs):
    if not opt.stamps: return
    for idx in idxs:
        A.vm(f"buffer_store_dword v{56+idx-5}, off, s[{SWS}:{SWS+3}], s65 offset:{4*idx}", "stamp")

def rstamp(A, opt, idx, srdr=SWS, soff="s65", drain=True):
    if not opt.stamps: return
    if drain: A("s_waitcnt vmcnt(0)")
    A(f"s_memrealtime s[100:101]")
    A("s_waitcnt lgkmcnt(0)")
    A.lq = []
    A(f"v_mov_b32 v0, s100")
    A.vm(f"buffer_store_dword v0, off, s[{srdr}:{srdr+3}], {soff} offset:{4*idx}", "stamp")

def srd(A, d, p, nrec, lower=0):
    if lower:
        A(f"s_sub_u32 s{d}, s{p}, {lower}")
        A(f"s_subb_u32 s{d+1}, s{p+1}, 0")
    else:
        A(f"s_mov_b32 s{d}, s{p}")
        A(f"s_mov_b32 s{d+1}, s{p+1}")
    A(f"s_mov_b32 s{d+2}, {nrec + lower}")
    A(f"s_mov_b32 s{d+3}, 0x20000")

def Rreg(e, c):
    if c < 5: return 216 + (c * 2 + e) * 4
    return 72 + ((c - 5) * 2 + e) * 4

def bf16r(A, d, s):
    A(f"v_cvt_pk_bf16_f32 v{d}, v{s}, v{s}")
    A(f"v_and_b32 v{d}, 0xffff0000, v{d}")

def x_loads(A):
    A(f"v_lshrrev_b32 v8, 3, v{vLANE}")
    A(f"s_lshl_b32 s{sT0}, s{sW}, 4")
    A(f"v_add_u32 v8, s{sT0}, v8")
    A(f"v_mul_u32_u24 v8, 1152, v8")
    A(f"v_and_b32 v9, 7, v{vLANE}")
    A(f"v_lshl_add_u32 v8, v9, 4, v8")
    A(f"s_mul_i32 s{sT0}, s{sMT}, 147456")
    A(f"s_add_u32 s{sT0+1}, s{sT0}, 9216")
    for c in range(9):
        for e in range(2):
            A.vm(f"buffer_load_dwordx4 {vr(Rreg(e,c),4)}, v8, s[{SX}:{SX+3}], s{sT0+e} offen offset:{c*128}", ("x", c, e))

def dma1(A, stage, i):
    ops = []
    if i % 4 == 0:
        ops.append(f"s_add_u32 m0, s{sM0W}, {(stage & 1) * BUFSZ + i * 1024}")
        ops.append("s_nop 0")
    ops.append(("vm", f"buffer_load_dwordx4 v{vDMA2}, s[{SA}:{SA+3}], s{sD1+i} offen offset:{(i % 4) * 1024} lds", ("d1", stage)))
    return ops

def ln_prologue(A, opt, mlp):
    SUM = [16, 17]; SQ = [18, 19]
    for r in SUM + SQ: A(f"v_mov_b32 v{r}, 0")
    for e in range(2):
        d = 10 + e
        A(f"v_lshrrev_b32 v20, 3, v{vLANE}")
        A(f"s_lshl_b32 s{sT0+2}, s{sW}, 4")
        A(f"s_add_u32 s{sT0+2}, s{sT0+2}, {8*e}")
        A(f"v_add_u32 v20, s{sT0+2}, v20")
        if not mlp:
            A(f"v_and_b32 v21, 0x63, v20")
            A(f"v_bfe_u32 v22, v20, 2, 2")
            A(f"v_lshl_or_b32 v21, v22, 3, v21")
            A(f"v_bfe_u32 v22, v20, 4, 1")
            A(f"v_lshl_or_b32 v20, v22, 2, v21")
        A(f"v_bfe_u32 v21, v20, 1, 3")
        A(f"v_and_b32 v22, 7, v{vLANE}")
        A(f"v_xor_b32 v21, v21, v22")
        A(f"v_lshlrev_b32 v21, 4, v21")
        A(f"v_lshl_add_u32 v{d}, v20, 7, v21")
        A(f"v_add_u32 v{d}, {LDS_Y}, v{d}")
    A(f"v_and_b32 v20, 31, v{vLANE}")
    A(f"v_bfe_u32 v21, v20, 1, 3")
    A(f"v_lshrrev_b32 v22, 5, v{vLANE}")
    A(f"v_xor_b32 v21, v21, v22")
    A(f"v_lshlrev_b32 v21, 4, v21")
    A(f"s_lshl_b32 s{sT0+2}, s{sTG}, 5")
    A(f"v_add_u32 v20, s{sT0+2}, v20")
    A(f"v_lshl_add_u32 v12, v20, 7, v21")
    A(f"v_add_u32 v12, {LDS_Y}, v12")
    for i in range(1, 4): A(f"v_xor_b32 v{12+i}, {32*i}, v12")
    pstamp(A, opt, 10)
    for c in range(9):
        A.wait(vm=[("x", c, 1)])
        if c == 0: pstamp(A, opt, 11)
        if c == 8: pstamp(A, opt, 12)
        for j in range(4):
            for e in range(2):
                r = Rreg(e, c) + j
                A(f"v_dot2c_f32_bf16 v{SUM[e]}, s{sONE}, v{r}")
                A(f"v_dot2c_f32_bf16 v{SQ[e]}, v{r}, v{r}")
    A("s_nop 2")
    for mode in ("quad_perm:[1,0,3,2]", "quad_perm:[2,3,0,1]", "row_half_mirror"):
        for r in SUM + SQ:
            A(f"v_add_f32_dpp v{r}, v{r}, v{r} {mode} row_mask:0xf bank_mask:0xf")
    inv = hexf(1.0 / 576.0); eps = hexf(1e-5)
    def both(f):
        for e in range(2): A(f(e))
    both(lambda e: f"v_mul_f32 v{20+e}, {inv}, v{SUM[e]}")
    both(lambda e: f"v_mul_f32 v{22+e}, {inv}, v{SQ[e]}")
    both(lambda e: f"v_fma_f32 v{22+e}, -v{20+e}, v{20+e}, v{22+e}")
    both(lambda e: f"v_max_f32 v{22+e}, 0, v{22+e}")
    def rnd(d, s):
        both(lambda e: f"v_cvt_pk_bf16_f32 v{d+e}, v{s+e}, v{s+e}")
        both(lambda e: f"v_and_b32 v{d+e}, 0xffff0000, v{d+e}")
    rnd(24, 20)
    rnd(26, 22)
    both(lambda e: f"v_add_f32 v{26+e}, {eps}, v{26+e}")
    rnd(26, 26)
    both(lambda e: f"v_sqrt_f32 v{26+e}, v{26+e}")
    rnd(26, 26)
    both(lambda e: f"v_rcp_f32 v{28+e}, v{26+e}")
    if mlp:
        both(lambda e: f"v_sub_f32 v{30+e}, v{20+e}, v{24+e}")
        both(lambda e: f"v_mul_f32 v{30+e}, v{30+e}, v{28+e}")
        rnd(30, 30)
        both(lambda e: f"v_mul_f32 v{32+e}, v{28+e}, v{28+e}")
        both(lambda e: f"v_mul_f32 v{32+e}, v{32+e}, v{22+e}")
        rnd(32, 32)
        both(lambda e: f"v_add_f32 v{32+e}, {eps}, v{32+e}")
        rnd(32, 32)
        both(lambda e: f"v_sqrt_f32 v{32+e}, v{32+e}")
        rnd(32, 32)
        both(lambda e: f"v_rcp_f32 v{32+e}, v{32+e}")
        both(lambda e: f"v_fma_f32 v{24+e}, v{30+e}, v{26+e}, v{24+e}")
        both(lambda e: f"v_mul_f32 v{28+e}, v{28+e}, v{32+e}")
        both(lambda e: f"v_mul_f32 v{28+e}, {hexf(KSC)}, v{28+e}")
    else:
        A(f"v_lshrrev_b32 v34, 3, v{vLANE}")
        A(f"s_lshl_b32 s{sT0+2}, s{sMT}, 7")
        A(f"s_lshl_b32 s{sT0+3}, s{sW}, 4")
        A(f"s_add_u32 s{sT0+2}, s{sT0+2}, s{sT0+3}")
        A(f"v_add_u32 v34, s{sT0+2}, v34")
        A(f"v_lshlrev_b32 v34, 3, v34")
        A(f"v_mov_b32 v36, v24"); A(f"v_mov_b32 v37, v28"); A(f"v_mov_b32 v38, v25"); A(f"v_mov_b32 v39, v29")
        A(f"s_mov_b32 s{sT0+2}, {WS_AFF}")
        A.vm(f"buffer_store_dwordx2 v[36:37], v34, s[{SWS}:{SWS+3}], s{sT0+2} offen", "aff")
        A.vm(f"buffer_store_dwordx2 v[38:39], v34, s[{SWS}:{SWS+3}], s{sT0+2} offen offset:64", "aff")
        A("s_nop 1")
    rnd(34, 28)
    both(lambda e: f"v_lshrrev_b32 v{36+e}, 16, v{34+e}")
    both(lambda e: f"v_mul_f32 v{38+e}, v{34+e}, v{24+e}")
    both(lambda e: f"v_sub_f32 v{38+e}, 0, v{38+e}")
    def norm(e, c):
        b = Rreg(e, c)
        T = 40
        for j in range(4):
            A(f"v_dot2_f32_bf16 v{T+2*j}, v{b+j}, v{36+e}, v{38+e}")
            A(f"v_dot2_f32_bf16 v{T+2*j+1}, v{b+j}, v{34+e}, v{38+e}")
        A("s_nop 0")
        for j in range(4):
            if j == 3: A("s_nop 0")
            A(f"v_cvt_pk_bf16_f32 v{b+j}, v{T+2*j}, v{T+2*j+1}")
    def ywrite(e, c, slot):
        if slot < 4:
            A.lds(f"ds_write_b128 v{10+e}, {vr(Rreg(e,c),4)} offset:{slot*16384}", "yw")
        else:
            A(f"v_add_u32 v48, 0x10000, v{10+e}")
            A.lds(f"ds_write_b128 v48, {vr(Rreg(e,c),4)}", "yw")
    def yread(s, slot):
        if slot < 4:
            A.lds(f"ds_read_b128 {vr(YB+4*s,4)}, v{12+(s&3)} offset:{slot*16384}", ("y", s))
        else:
            A(f"v_add_u32 v48, 0x10000, v{12+(s&3)}")
            A.lds(f"ds_read_b128 {vr(YB+4*s,4)}, v48", ("y", s))
    stamp(A, opt, 1)
    for c in range(5):
        for e in range(2):
            norm(e, c); ywrite(e, c, c)
    A.wait_all(); A("s_barrier")
    for s in range(20): yread(s, s >> 2)
    for c in range(5, 9):
        for e in range(2): norm(e, c)
    A.wait_all(); A("s_barrier")
    for c in range(5, 9):
        for e in range(2): ywrite(e, c, c - 5)
    A.wait_all(); A("s_barrier")
    for s in range(20, 36): yread(s, (s >> 2) - 5)
    A.wait_all(); A("s_barrier")
    stamp(A, opt, 2)
    pflush(A, opt, [8, 9, 10, 11, 12])

def cost(o):
    s = o if isinstance(o, str) else o[1]
    if isinstance(s, str) and s.startswith(("v_exp", "v_rcp")): return 8
    if isinstance(s, str) and s.startswith(("v_cvt", "v_dot")) or "dpp" in str(s): return 4
    return 3

def spread(slots, lo, hi, ops, key="valu"):
    tot = sum(cost(o) for o in ops)
    acc = 0
    for o in ops:
        j = lo + int(acc * (hi - lo) / tot)
        slots[j].setdefault(key, []).append(o)
        acc += cost(o)

def gelu_ops(acc, dst, grp=4):
    ops = []
    for g0 in range(0, 16, grp):
        es = range(g0, g0 + grp)
        T = lambda e: TMP + (e % 8)
        for e in es: ops.append(f"v_fma_f32 v{T(e)}, v{acc+e}, v{acc+e}, s{sC0K}")
        for e in es: ops.append(f"v_mul_f32 v{T(e)}, v{T(e)}, v{acc+e}")
        for e in es: ops.append(f"v_exp_f32 v{T(e)}, v{T(e)}")
        for e in es: ops.append(f"v_add_f32 v{T(e)}, 1.0, v{T(e)}")
        for e in es: ops.append(f"v_rcp_f32 v{T(e)}, v{T(e)}")
        for e in es: ops.append(f"v_mul_f32 v{T(e)}, v{T(e)}, v{acc+e}")
        for e in es[::2]: ops.append(f"v_cvt_pk_bf16_f32 v{dst + e//2}, v{T(e)}, v{T(e+1)}")
    return ops

def emit_slots(A, slots):
    for s in slots:
        for k in ("pre",):
            for o in s.get(k, []): A.op(o)
        if s.get("mfma"): A(s["mfma"])
        for k in ("bar", "rd", "dma", "x", "valu"):
            for o in s.get(k, []): A.op(o)

WT = " sc0 sc1"
def store_ops(acc, SREG, tag):
    ops = [f"v_cvt_pk_bf16_f32 v{SREG+i}, v{acc+2*i}, v{acc+2*i+1}" for i in range(8)]
    ops.insert(4, ("vm", f"buffer_store_dwordx4 {vr(SREG,4)}, v{vXA}, s[{SWS}:{SWS+3}], s{sST} offen{WT}", tag))
    ops.append(("vm", f"buffer_store_dwordx4 {vr(SREG+4,4)}, v{vXA}, s[{SWS}:{SWS+3}], s{sST} offen offset:1024{WT}", tag))
    return ops

def announce(lbl):
    return [f"s_cmp_lg_u32 s{sW}, 0", f"s_cbranch_scc1 {lbl}",
            f"s_lshl_b32 s{sT0}, s{sMT}, 4", f"s_add_u32 s{sT0}, s{sT0}, s{sSL}",
            f"v_mov_b32 v0, 1",
            f"buffer_store_byte v0, off, s[{SM}:{SM+3}], s{sT0} sc0 sc1", f"{lbl}:"]

def clear_flag(A):
    A(f"s_lshl_b32 s{sFLG}, s{sMT}, 7"); A(f"s_add_u32 s{sFLG}, s{sFLG}, {WS_FLAG}")
    A(f"s_lshl_b32 s{sT0}, s{sSL}, 2"); A(f"s_add_u32 s{sT0}, s{sT0}, s{sFLG}")
    A(f"s_cmp_lg_u32 s{sW}, 7"); A(f"s_cbranch_scc1 L_cf{len(A.L)}")
    lbl = A.L[-1].split()[1]
    A(f"v_mov_b32 v9, 0")
    A(f"buffer_store_dword v9, off, s[{SWS}:{SWS+3}], s{sT0} sc0 sc1")
    A(lbl + ":")

def check_all(A, lbl, vt):
    A(f"v_lshlrev_b32 v{vt}, 2, v{vLANE}")
    A(f"s_movk_i32 s{sT0}, 0x4000")
    A(f"{lbl}:")
    A(f"buffer_load_dword v{vt+1}, v{vt}, s[{SM}:{SM+3}], 0 offen sc0 sc1")
    A(f"s_sub_u32 s{sT0}, s{sT0}, 1")
    A(f"s_cbranch_scc1 {lbl}_d")
    A("s_waitcnt vmcnt(0)")
    A(f"v_cmp_ne_u32 vcc, 0x01010101, v{vt+1}")
    A(f"s_cbranch_vccnz {lbl}")
    A(f"{lbl}_d:")
    A("s_waitcnt vmcnt(0)")

def mlp_path(A, opt):
    D = 3
    srd(A, SA, kp(10), 5308416)
    srd(A, SB, kp(12), 5308416, lower=4096)
    srd(A, SM, kp(11), 9216)
    A(f"s_mul_i32 s{sT0+2}, s{sMT}, 43"); A(f"s_lshr_b32 s{sT0+2}, s{sT0+2}, 8")
    A(f"s_mul_i32 s{sT0+2}, s{sT0+2}, 6"); A(f"s_sub_u32 s{sROT}, s{sMT}, s{sT0+2}")
    A(f"s_cmp_ge_u32 s{sMT}, 9"); A(f"s_cselect_b32 s{sT0+2}, 9, 0"); A(f"s_sub_u32 s{sROT2}, s{sMT}, s{sT0+2}")
    for i in range(9): A(f"s_mov_b32 s{sD1+i}, {i*73728 - (i%4)*1024}")
    A(f"s_mul_i32 s{sM0W}, s{sW}, 9216")
    A(f"v_bfe_u32 v9, v{vLANE}, 2, 3")
    A(f"v_lshrrev_b32 v10, 5, v{vLANE}")
    A(f"v_and_b32 v11, 3, v{vLANE}")
    A(f"v_lshlrev_b32 v11, 4, v11")
    A(f"v_lshl_add_u32 v10, v10, 6, v11")
    A(f"v_mul_u32_u24 v{vDMA}, 9216, v9")
    A(f"v_add_u32 v{vDMA}, v{vDMA}, v10")
    A(f"s_mul_i32 s{sT0+2}, s{sW}, {72*9216}")
    A(f"s_mul_i32 s{sT0+3}, s{sSL}, 768")
    A(f"s_add_u32 s{sT0+2}, s{sT0+2}, s{sT0+3}")
    A(f"v_add_u32 v{vDMA}, s{sT0+2}, v{vDMA}")
    A(f"s_lshl_b32 s{sCOL}, s{sROT}, 7")
    A(f"v_add_u32 v{vDMA2}, s{sCOL}, v{vDMA}")
    for i in range(9):
        for o in dma1(A, 0, i): A.op(o)
    def nextcol():
        return [f"s_add_u32 s{sCOL}, s{sCOL}, 128", f"s_cmp_ge_u32 s{sCOL}, 768", f"s_cselect_b32 s{sCOL}, 0, s{sCOL}",
                f"v_add_u32 v{vDMA2}, s{sCOL}, v{vDMA}"]
    A(f"v_lshlrev_b32 v9, 1, v0")
    A(f"s_mul_i32 s{sT0+2}, s{sSL}, 768")
    A.vm(f"buffer_load_ushort v49, v9, s[{SM}:{SM+3}], s{sT0+2} offen", "b1")
    A(f"v_lshrrev_b32 v9, 5, v{vLANE}"); A("v_lshlrev_b32 v9, 10, v9")
    A(f"v_bfe_u32 v10, v{vLANE}, 2, 2"); A("v_lshl_add_u32 v9, v10, 6, v9")
    A(f"v_bfe_u32 v10, v{vLANE}, 4, 1"); A("v_lshl_add_u32 v9, v10, 5, v9")
    A(f"v_and_b32 v10, 3, v{vLANE}"); A("v_lshl_add_u32 v9, v10, 3, v9")
    A(f"s_lshl_b32 s{sT0+2}, s{sFG}, 9")
    A(f"v_add_u32 v{vTR}, s{sT0+2}, v9")
    A(f"v_add_u32 v{vTR+1}, 0x10000, v{vTR}")
    A(f"v_add_u32 v{vTR+2}, 0x20000, v{vTR}")
    A(f"v_lshrrev_b32 v9, 5, v{vLANE}")
    A(f"s_lshl_b32 s{sT0+2}, s{sFG}, 7"); A(f"s_add_u32 s{sT0+2}, s{sT0+2}, {LDS_B1}")
    A(f"v_lshl_add_u32 v{vB1}, v9, 4, s{sT0+2}")
    A(f"s_mov_b32 s{sC0K}, {hexf(C0K)}")
    A(f"s_mul_i32 s{sT0+2}, s{sW}, 6")
    A(f"s_mul_i32 s{sT0+6}, s{sSL}, {384*1152}")
    for i in range(6):
        A(f"s_add_u32 s{sT0+3}, s{sT0+2}, {i}")
        A(f"s_lshr_b32 s{sT0+4}, s{sT0+3}, 3")
        A(f"s_add_u32 s{sT0+4}, s{sT0+4}, s{sROT}")
        A(f"s_cmp_ge_u32 s{sT0+4}, 6"); A(f"s_cselect_b32 s{sT0+5}, 6, 0"); A(f"s_sub_u32 s{sT0+4}, s{sT0+4}, s{sT0+5}")
        A(f"s_lshl_b32 s{sT0+4}, s{sT0+4}, 3")
        A(f"s_and_b32 s{sT0+3}, s{sT0+3}, 7")
        A(f"s_add_u32 s{sT0+4}, s{sT0+4}, s{sT0+3}")
        A(f"s_mul_i32 s{sT0+4}, s{sT0+4}, 9216")
        A(f"s_add_u32 s{sT0+4}, s{sT0+4}, s{sT0+6}")
        A(f"s_add_u32 s{sD2+i}, s{sT0+4}, {4096 - (i%4)*1024}")
    A(f"s_sub_u32 s{sT0+2}, s{sW}, s{sROT}")
    A(f"s_cmp_lt_i32 s{sT0+2}, 0"); A(f"s_cselect_b32 s{sT0+3}, 6, 0"); A(f"s_add_u32 s{sT0+2}, s{sT0+2}, s{sT0+3}")
    A(f"s_lshl_b32 s{sT0+2}, s{sT0+2}, 8"); A(f"s_add_u32 s{sT0+2}, s{sT0+2}, {LDS_B1}")
    A(f"s_cmp_ge_u32 s{sW}, 6"); A(f"s_cselect_b32 s{sT0+2}, {LDS_B1 + 2048}, s{sT0+2}")
    A(f"v_lshl_add_u32 v50, v{vLANE}, 2, s{sT0+2}")

    ln_prologue_pre = len(A.L)
    ln_prologue(A, opt, True)
    A.wait(vm=["b1"])
    A("v_lshlrev_b32 v49, 16, v49")
    A(f"v_mul_f32 v49, {hexf(KSC)}, v49")
    A.lds("ds_write_b32 v50, v49", "b1w")
    srd(A, SM, kp(15), 256)
    clear_flag(A)
    for o in nextcol(): A.op(o)
    for i in range(9):
        for o in dma1(A, 1, i): A.op(o)
    A.wait(lds=["b1w"], vm=[("d1", 0)])
    A("s_barrier")

    HP = YB
    H5 = YB + 48
    SREG = YB + 56
    vP2 = YB + 64
    vHX = YB + 70
    def hown(t): return HOWN + 8 * t if t < 5 else H5
    korder = [("o", t, kk) for t in range(5) for kk in range(2)] + [("p", t, kk) for t in range(4) for kk in range(2)] + \
             [("o", 5, 0), ("o", 5, 1)] + [("p", t, kk) for t in (4, 5) for kk in range(2)]
    units = []
    for s in range(6):
        for k in range(36): units.append((1, s, k))
    for j in range(9):
        for k in range(24): units.append((2, j, k))
    NU = len(units)
    def rd(u):
        ph, s, k = units[u]
        b = ABUF + 4 * (u % 4)
        if ph == 1:
            pos = (s & 1) * BUFSZ + k * 2048
            return [("lds", f"ds_read_b64_tr_b16 {vr(b+2*r,2)}, v{vTR + ((pos + r*256) >> 16)} offset:{(pos + r*256) & 0xffff}", ("a", u)) for r in range(2)]
        who, t, kk = korder[k]
        areg = vP2 + (s % 3) * 2 + (0 if who == "o" else 1)
        return [("lds", f"ds_read_b64_tr_b16 {vr(b+2*r,2)}, v{areg} offset:{(8*t + 2*kk + r) * 1024}", ("a", u)) for r in range(2)]
    def b1rd(s):
        return [("lds", f"ds_read_b128 {vr(ACC[s&1] + 4*j, 4)}, v{vB1} offset:{s*256 + j*32}", ("b1", s)) for j in range(4)]
    slots = []
    for u, (ph, s, k) in enumerate(units):
        b = ABUF + 4 * (u % 4)
        acc = ACC[s & 1]
        sl = {}
        w = [("a", u)]
        if ph == 1:
            if k == 0: w.append(("b1", s))
            sl["mfma"] = f"v_mfma_f32_32x32x16_bf16 {vr(acc,16)}, {vr(b,4)}, {vr(YB+4*k,4)}, {vr(acc,16)}"
        else:
            who, t, kk = korder[k]
            hb = (hown(t) if who == "o" else HP + 8 * t) + 4 * kk
            if who == "p": w.append(("hx", t))
            sl["mfma"] = f"v_mfma_f32_32x32x16_bf16 {vr(acc,16)}, {vr(b,4)}, {vr(hb,4)}, {'0' if k == 0 else vr(acc,16)}"
        sl["pre"] = [("wl", w)]
        slots.append(sl)
    for u in range(NU - D):
        ph, s, k = units[u + D]
        if k == 0:
            slots[u]["bar"] = [("wv", [("d1", s) if ph == 1 else ("d2", s)]), "s_barrier"]
        slots[u]["rd"] = rd(u + D)
    P2 = 216
    slots[36 - D]["bar"] += announce("L_ann_m")
    for s in range(2, 6):
        base = (s - 1) * 36 - 2
        slots[base].setdefault("dma", []).extend(nextcol())
        for i in range(9): slots[base + 1 + 2 * i].setdefault("dma", []).extend(dma1(A, s, i))
    def dma2(j, i):
        ops = []
        if i % 4 == 0:
            ops += [f"s_add_u32 m0, s{sM0A}, {(j % 3) * 49152 + i * 1024}", "s_nop 0"]
        ops.append(("vm", f"buffer_load_dwordx4 v{vDMA2}, s[{SB}:{SB+3}], s{sD2+i} offen offset:{(i%4)*1024} lds", ("d2", j)))
        return ops
    def nextdp(first):
        if first:
            return [f"s_mul_i32 s{sM0A}, s{sW}, 6144",
                    f"v_bfe_u32 v9, v{vLANE}, 2, 3", f"v_lshrrev_b32 v10, 5, v{vLANE}", f"v_and_b32 v11, 3, v{vLANE}",
                    "v_lshlrev_b32 v11, 4, v11", "v_lshl_add_u32 v10, v10, 6, v11",
                    f"v_mul_u32_u24 v{vDMA}, 1152, v9", f"v_add_u32 v{vDMA}, v{vDMA}, v10",
                    f"s_lshl_b32 s{sCOL}, s{sROT2}, 7", f"v_add_u32 v{vDMA2}, s{sCOL}, v{vDMA}"]
        return [f"s_add_u32 s{sCOL}, s{sCOL}, 128", f"s_cmp_ge_u32 s{sCOL}, 1152", f"s_cselect_b32 s{sCOL}, 0, s{sCOL}",
                f"v_add_u32 v{vDMA2}, s{sCOL}, v{vDMA}"]
    d2base = {0: 5 * 36 - 2, 1: P2 - 2, 2: P2 + 24 - 2, 3: P2 + 24 + 10}
    for j in range(4, 9): d2base[j] = P2 + (j - 2) * 24 - 2
    for j in range(9):
        base = d2base[j]
        slots[base].setdefault("dma", []).extend(nextdp(j == 0))
        for i in range(6): slots[base + 1 + 2 * i].setdefault("dma", []).extend(dma2(j, i))
    for s in range(1, 6):
        spread(slots, s * 36 + 2, s * 36 + 31, gelu_ops(ACC[(s - 1) & 1], hown(s - 1)))
    for s in range(1, 6):
        slots[s * 36 - 5].setdefault("x", []).extend(b1rd(s))
    spread(slots, P2 + 2, P2 + 15, gelu_ops(ACC[1], H5))
    S5 = 5 * 36
    setup = [f"v_lshlrev_b32 v9, 4, v{vLANE}",
             f"s_lshl_b32 s{sT0+2}, s{sW}, 11", f"s_add_u32 s{sT0+2}, s{sT0+2}, 49152",
             f"v_add_u32 v{vHX}, s{sT0+2}, v9", f"v_add_u32 v{vHX+1}, {147456-49152}, v{vHX}",
             f"v_xor_b32 v{vHX+2}, 0x2000, v{vHX}", f"v_add_u32 v{vHX+3}, {147456-49152}, v{vHX+2}",
             f"v_lshrrev_b32 v9, 5, v{vLANE}", "v_lshlrev_b32 v9, 8, v9",
             f"v_bfe_u32 v10, v{vLANE}, 2, 2", "v_lshl_add_u32 v9, v10, 6, v9",
             f"v_and_b32 v10, 1, v{vLANE}", "v_lshl_add_u32 v9, v10, 5, v9",
             f"v_bfe_u32 v10, v{vLANE}, 1, 1", "v_lshl_add_u32 v9, v10, 3, v9",
             f"v_bfe_u32 v10, v{vLANE}, 4, 1", "v_lshl_add_u32 v9, v10, 4, v9",
             f"s_mul_i32 s{sT0+2}, s{sFG}, {4096+512}",
             f"v_add_u32 v{vP2}, s{sT0+2}, v9", f"v_xor_b32 v{vP2+1}, 0x1000, v{vP2}",
             f"v_add_u32 v{vP2+2}, 49152, v{vP2}", f"v_add_u32 v{vP2+3}, 49152, v{vP2+1}",
             f"v_add_u32 v{vP2+4}, 98304, v{vP2}", f"v_add_u32 v{vP2+5}, 98304, v{vP2+1}",
             f"v_lshlrev_b32 v{vXA}, 4, v{vLANE}",
             f"s_lshl_b32 s{sT0+2}, s{sMT}, 2", f"s_add_u32 s{sT0+2}, s{sT0+2}, s{sTG}",
             f"s_mul_i32 s{sT0+2}, s{sT0+2}, {18*2048}", f"s_mul_i32 s{sT0+3}, s{sSL}, {PLANE}",
             f"s_add_u32 s{sT0+2}, s{sT0+2}, s{sT0+3}", f"s_lshl_b32 s{sT0+3}, s{sFG}, 11",
             f"s_add_u32 s{sT0+2}, s{sT0+2}, s{sT0+3}", f"v_add_u32 v{vXA}, s{sT0+2}, v{vXA}",
             f"s_lshl_b32 s{sST}, s{sROT2}, 12"]
    spread(slots, S5 + 19, S5 + 23, setup[:7], "x")
    spread(slots, S5 + 25, S5 + 32, setup[7:], "x")
    def hw(t):
        a, off = (vHX, t * 16384) if t < 3 else ((vHX + 1, 0) if t == 3 else (vHX, 49152 + (t - 4) * 16384))
        if off + 1024 > 65535: return None
        return [("lds", f"ds_write_b128 v{a}, {vr(hown(t)+4*kk,4)} offset:{off + kk*1024}", ("hw", t)) for kk in range(2)]
    def hr(t):
        a, off = (vHX + 2, t * 16384) if t < 3 else ((vHX + 3, 0) if t == 3 else (vHX + 2, 49152 + (t - 4) * 16384))
        return [("lds", f"ds_read_b128 {vr(HP+8*t+4*kk,4)}, v{a} offset:{off + kk*1024}", ("hx", t)) for kk in range(2)]
    slots[S5 + 22].setdefault("bar", []).append("s_barrier")
    for t in range(4): slots[S5 + 23 + t].setdefault("x", []).extend(hw(t))
    slots[S5 + 29].setdefault("bar", []).extend([("wl", [("hw", 3)]), "s_barrier"])
    for t in range(4): slots[S5 + 29 + t].setdefault("x", []).extend(hr(t))
    slots[S5 + 33]["bar"].insert(0, ("wl", [("hx", 3)]))
    slots[P2 + 1].setdefault("x", []).extend(hw(4))
    slots[P2 + 2].setdefault("x", []).extend([f"v_add_u32 v{vHX+1}, 0x10000, v{vHX}", f"v_add_u32 v{vHX+3}, 0x10000, v{vHX+2}"])
    slots[P2 + 15].setdefault("x", []).extend(
        [("lds", f"ds_write_b128 v{vHX+1}, {vr(H5+4*kk,4)} offset:{kk*1024}", ("hw", 5)) for kk in range(2)])
    slots[P2 + 17].setdefault("bar", []).extend([("wl", [("hw", 5)]), "s_barrier"])
    slots[P2 + 17].setdefault("x", []).extend(hr(4) +
        [("lds", f"ds_read_b128 {vr(HP+40+4*kk,4)}, v{vHX+3} offset:{kk*1024}", ("hx", 5)) for kk in range(2)])
    slots[P2 + 21]["bar"].insert(0, ("wl", [("hx", 5)]))
    nextst = [f"s_add_u32 s{sST}, s{sST}, 4096", f"s_cmp_ge_u32 s{sST}, {9*4096}", f"s_cselect_b32 s{sST}, 0, s{sST}"]
    for j in range(1, 9):
        spread(slots, P2 + j * 24 + 2, P2 + j * 24 + 8, store_ops(ACC[(j - 1) & 1], SREG, "st") + nextst)
    for o in b1rd(0): A.op(o)
    for u in range(D):
        for o in rd(u): A.op(o)
    emit_slots(A, slots[:P2])
    stamp(A, opt, 3)
    emit_slots(A, slots[P2:])
    A("s_nop 7"); A("s_nop 3")
    for o in store_ops(ACC[0], SREG, "st"): A.op(o)
    stamp(A, opt, 4)
    rstamp(A, opt, 14)
    A("s_endpgm")

def main_kernel(A, opt):
    K = "main_kernel"
    A(f".globl {K}"); A(".p2align 8"); A(f".type {K},@function"); A(f"{K}:")
    A("s_cmp_ge_u32 s2, 256")
    A("s_cbranch_scc1 L_exit")
    A(f"s_load_dwordx16 s[{68}:{83}], s[0:1], 0")
    A(f"s_load_dwordx16 s[{84}:{99}], s[0:1], 64")
    A(f"s_load_dwordx2 s[{66}:{67}], s[0:1], 128")
    if opt.stamps: A("s_memtime s[100:101]"); A("s_memrealtime s[44:45]")
    A(f"v_lshrrev_b32 v2, 6, v0")
    A(f"v_and_b32 v{vLANE}, 63, v0")
    A(f"v_readfirstlane_b32 s{sW}, v2")
    A(f"s_and_b32 s{sT0}, s2, 7"); A(f"s_lshr_b32 s{sT0+1}, s2, 3")
    if opt.newmap:
        A(f"s_lshr_b32 s{sT0+2}, s{sT0}, 1")
        A(f"s_and_b32 s{sT0+3}, s{sT0+1}, 3")
        A(f"s_mul_i32 s{sSL}, s{sT0+2}, 3"); A(f"s_add_u32 s{sSL}, s{sSL}, s{sT0+3}")
        A(f"s_add_u32 s{sT0+2}, s{sT0+2}, 12")
        A(f"s_cmp_eq_u32 s{sT0+3}, 3"); A(f"s_cselect_b32 s{sSL}, s{sT0+2}, s{sSL}")
        A(f"s_and_b32 s{sT0}, s{sT0}, 1"); A(f"s_lshl_b32 s{sT0}, s{sT0}, 3")
        A(f"s_lshr_b32 s{sMT}, s{sT0+1}, 2"); A(f"s_add_u32 s{sMT}, s{sMT}, s{sT0}")
    else:
        A(f"s_lshl_b32 s{sSL}, s{sT0}, 1"); A(f"s_and_b32 s{sT0+2}, s{sT0+1}, 1"); A(f"s_add_u32 s{sSL}, s{sSL}, s{sT0+2}")
        A(f"s_lshr_b32 s{sMT}, s{sT0+1}, 1")
    A(f"s_and_b32 s{sTG}, s{sW}, 3"); A(f"s_lshr_b32 s{sFG}, s{sW}, 2")
    A(f"s_mov_b32 s{sONE}, 0x3f803f80")
    A("s_waitcnt lgkmcnt(0)")
    if opt.stamps: A("v_mov_b32 v15, s100")
    pstamp(A, opt, 8)
    srd(A, SX, kp(0), 2359296)
    srd(A, SWS, 66, WS_SIZE)
    x_loads(A)
    pstamp(A, opt, 9)
    if opt.stamps:
        A(f"s_lshl_b32 s65, s2, 3"); A(f"s_add_u32 s65, s65, s{sW}"); A("s_lshl_b32 s65, s65, 7"); A(f"s_add_u32 s65, s65, {WS_STAMP}")
        A.vm(f"buffer_store_dword v15, off, s[{SWS}:{SWS+3}], s65", "stamp")
        A(f"v_mov_b32 v15, s44")
        A.vm(f"buffer_store_dword v15, off, s[{SWS}:{SWS+3}], s65 offset:64", "stamp")
    A(f"s_cmp_ge_u32 s{sSL}, 12")
    A("s_cbranch_scc1 L_ssm")
    saved = (list(A.lq), list(A.vq))
    mlp_path(A, opt)
    A("L_ssm:")
    A.lq, A.vq = saved
    if opt.ssm:
        import gen2_ssm
        gen2_ssm.ssm_path(A, opt)
        rstamp(A, opt, 14)
    A("L_exit:")
    A("s_endpgm")

def kp(i):
    return 68 + 2 * i

def reduce_kernel(A, opt):
    K = "reduce_kernel"
    A(f".globl {K}"); A(".p2align 8"); A(f".type {K},@function"); A(f"{K}:")
    A("s_cmp_ge_u32 s2, 576")
    A("s_cbranch_scc1 L_rexit")
    A("s_load_dwordx2 s[4:5], s[0:1], 0")
    A("s_load_dwordx2 s[6:7], s[0:1], 64")
    A("s_load_dwordx4 s[8:11], s[0:1], 104")
    A("s_load_dwordx2 s[12:13], s[0:1], 128")
    if opt.stamps: A("s_memrealtime s[62:63]")
    A("v_lshrrev_b32 v2, 6, v0")
    A("v_and_b32 v1, 63, v0")
    A("v_readfirstlane_b32 s3, v2")
    A("s_lshl_b32 s14, s2, 2"); A("s_add_u32 s14, s14, s3")
    if opt.stamps: A("s_lshl_b32 s65, s14, 3"); A(f"s_add_u32 s65, s65, {WS_STAMP + 262144}")
    A("s_mul_i32 s15, s14, 1821"); A("s_lshr_b32 s15, s15, 16")
    A("s_mul_i32 s16, s15, 36"); A("s_sub_u32 s16, s14, s16")
    A("s_lshr_b32 s17, s16, 1"); A("s_and_b32 s18, s16, 1")
    A("s_lshl_b32 s17, s17, 5"); A("s_lshl_b32 s18, s18, 3"); A("s_add_u32 s17, s17, s18")
    A("s_lshl_b32 s14, s14, 10")
    A("v_lshl_add_u32 v2, v1, 4, s14")
    A("v_lshrrev_b32 v3, 5, v1"); A("v_lshl_add_u32 v3, v3, 4, s17")
    A("v_and_b32 v4, 31, v1"); A("s_lshl_b32 s15, s15, 5"); A("v_add_u32 v4, s15, v4")
    A("s_movk_i32 s19, 576")
    A("v_mad_u32_u24 v5, v4, s19, v3")
    A("v_lshlrev_b32 v6, 1, v5"); A("v_lshlrev_b32 v7, 2, v5")
    A("v_lshlrev_b32 v3, 1, v3"); A("v_lshlrev_b32 v4, 3, v4")
    A("s_waitcnt lgkmcnt(0)")
    srd(A, 20, 12, WS_SIZE); srd(A, 24, 4, 2359296); srd(A, 28, 6, 1152); srd(A, 32, 8, 1152); srd(A, 36, 10, 4718592)
    NP = 16 if opt.ssm else 12
    for p in range(NP):
        A(f"s_mov_b32 s{40+p}, {p*PLANE}")
    A(f"s_mov_b32 s56, {WS_AFF}")
    for p in range(NP):
        A.vm(f"buffer_load_dwordx4 {vr(32+4*p,4)}, v2, s[20:23], s{40+p} offen", ("p", p))
    A.vm("buffer_load_dwordx4 v[8:11], v6, s[24:27], 0 offen", "x")
    A.vm("buffer_load_dwordx4 v[12:15], v3, s[28:31], 0 offen", "D")
    A.vm("buffer_load_dwordx4 v[16:19], v3, s[32:35], 0 offen", "b2")
    A.vm("buffer_load_dwordx2 v[20:21], v4, s[20:23], s56 offen", "aff")
    A("s_mov_b32 s57, 0x00003f80"); A("s_mov_b32 s58, 0x3f800000")
    O = 96; S = 104
    for r in range(16): A(f"v_mov_b32 v{O+r}, 0")
    for p in range(NP):
        A.wait(vm=[("p", p)])
        dst = O if p < 12 else S
        for j in range(4):
            A(f"v_dot2c_f32_bf16 v{dst+2*j}, s57, v{32+4*p+j}")
            A(f"v_dot2c_f32_bf16 v{dst+2*j+1}, s58, v{32+4*p+j}")
    A.wait(vm=["aff"])
    for (src, dst) in ((8, 32), (12, 40), (16, 48)):
        for j in range(4):
            A(f"v_lshlrev_b32 v{dst+2*j}, 16, v{src+j}")
            A(f"v_and_b32 v{dst+2*j+1}, 0xffff0000, v{src+j}")
    A(f"s_mov_b32 s59, {hexf(1.0/KSC)}")
    A(f"s_mov_b32 s60, {hexf(-math.log2(math.e))}")
    E = range(8)
    for e in E: A(f"v_fma_f32 v{O+e}, v{O+e}, s59, v{48+e}")
    if opt.ssm:
        for e in E: A(f"v_mul_f32 v{56+e}, s60, v{O+e}")
        for e in E: A(f"v_exp_f32 v{56+e}, v{56+e}")
        for e in E: A(f"v_sub_f32 v{64+e}, v{32+e}, v20")
        for e in E: A(f"v_add_f32 v{56+e}, 1.0, v{56+e}")
        for e in E: A(f"v_rcp_f32 v{56+e}, v{56+e}")
        for e in E: A(f"v_mul_f32 v{64+e}, v{64+e}, v21")
        for e in E: A(f"v_fma_f32 v{S+e}, v{64+e}, v{40+e}, v{S+e}")
        for e in E: A(f"v_mul_f32 v{O+e}, v{O+e}, v{56+e}")
        for e in E: A(f"v_fma_f32 v{O+e}, v{O+e}, v{S+e}, v{32+e}")
    A(f"buffer_store_dwordx4 {vr(O,4)}, v7, s[36:39], 0 offen")
    A(f"buffer_store_dwordx4 {vr(O+4,4)}, v7, s[36:39], 0 offen offset:16")
    if opt.stamps:
        A("v_mov_b32 v1, s62")
        A("buffer_store_dword v1, off, s[20:23], s65")
        rstamp(A, opt, 1, 20)
    A("L_rexit:")
    A("s_endpgm")

def kdesc(A, K, nv):
    A(".p2align 6")
    A(f".amdhsa_kernel {K}")
    A(f"  .amdhsa_next_free_vgpr {nv}")
    A("  .amdhsa_next_free_sgpr 102")
    A(f"  .amdhsa_accum_offset {nv}")
    A("  .amdhsa_group_segment_fixed_size 0")
    A("  .amdhsa_kernarg_size 136")
    A("  .amdhsa_user_sgpr_count 2")
    A("  .amdhsa_user_sgpr_kernarg_segment_ptr 1")
    A("  .amdhsa_system_sgpr_workgroup_id_x 1")
    A(".end_amdhsa_kernel")

def build(opt):
    A = Asm()
    A(HDR.rstrip("\n"))
    A("; @launch kernel=main_kernel grid=(256,1,1) block=(512,1,1) lds=163840")
    A("; @launch kernel=reduce_kernel grid=(576,1,1) block=(256,1,1) lds=0")
    A('.amdgcn_target "amdgcn-amd-amdhsa--gfx950"')
    A(".text")
    n0 = len(A.L)
    main_kernel(A, opt)
    A.lq = []; A.vq = []
    reduce_kernel(A, opt)
    errs = check_hazards(A.L[n0:])
    for e in errs: print(e, file=sys.stderr)
    A('.section .rodata,"a"')
    kdesc(A, "main_kernel", 256)
    kdesc(A, "reduce_kernel", 112)
    return A.text(), errs

if __name__ == "__main__":
    sys.modules["gen2"] = sys.modules["__main__"]
    opt = Opt()
    out = sys.argv[1] if len(sys.argv) > 1 else "k.s"
    for a in sys.argv[2:]:
        k, v = a.split("=")
        setattr(opt, k, int(v))
    t, errs = build(opt)
    open(out, "w").write(t)
    print(out, len(t.splitlines()), "lines", len(errs), "hazards")
```

```python
import math
from asmlib import *
from gen2 import *
import gen2 as G

DPP = "quad_perm:[1,0,3,2] row_mask:0xf bank_mask:0xf"
U = [16 + 16 * t for t in range(5)]
SBUF = 96
sQ = 49
sER = 38

def sel_srd(A, d, pa, pb, nrec, lower):
    A(f"s_cselect_b32 s{d}, s{pb}, s{pa}")
    A(f"s_cselect_b32 s{d+1}, s{pb+1}, s{pa+1}")
    A(f"s_sub_u32 s{d}, s{d}, {lower}")
    A(f"s_subb_u32 s{d+1}, s{d+1}, 0")
    A(f"s_mov_b32 s{d+2}, {nrec + lower}")
    A(f"s_mov_b32 s{d+3}, 0x20000")

def pass1_ops(t):
    u = U[t]
    ops = [("wl", [("k", t)])]
    def coef(i, tmp=2):
        return [f"v_mul_f32_dpp v{tmp}, v{u+i}, v15 {DPP}", f"v_fma_f32 v{u+i}, v{u+i}, v14, v{tmp}"]
    ops += coef(0) + coef(1, 10)
    e = u
    for i in range(1, 16):
        ne = 10 + (i & 1)
        ops += [f"v_fma_f32 v{ne}, v12, v{e}, v{u+i}"]
        if i + 1 < 16: ops += coef(i + 1)
        else: ops += ["s_nop 1"]
        ops += [f"v_fmac_f32_dpp v{ne}, v{e}, v13 {DPP}"]
        e = ne
    ops.append(("lds", f"ds_write_b32 v9, v{e} offset:{t*256}", "ew"))
    return ops

def adv(s, unit, j):
    return [("grp", [f"s_add_u32 s{s}, s{s}, {unit * (4 if j % 3 == 2 else 3)}", f"s_cmp_ge_u32 s{s}, {9*unit}",
            f"s_cselect_b32 s{sT0+7}, {9*unit}, 0", f"s_sub_u32 s{s}, s{s}, s{sT0+7}"])]

def kread(t):
    return [("lds", f"ds_read_b128 v[12:15], v8 offset:{t*1024}", ("k", t))]

def ssm_path(A, opt):
    D = 3
    A(f"s_sub_u32 s{sQ}, s{sSL}, 12")
    A("v_lshrrev_b32 v9, 5, v0"); A("v_bfe_u32 v10, v0, 1, 4"); A("v_lshl_add_u32 v9, v9, 4, v10")
    A("v_lshlrev_b32 v9, 1, v9")
    A(f"s_mul_i32 s{sT0+2}, s{sQ}, 288")
    for i, pi in enumerate((1, 2, 7)):
        srd(A, SM, kp(pi), 1152)
        A.vm(f"buffer_load_ushort v{49+i}, v9, s[{SM}:{SM+3}], s{sT0+2} offen", "par")
    A("v_mov_b32 v52, v0")
    A(f"s_bitcmp1_b32 s{sW}, 1")
    sel_srd(A, SA, kp(3), kp(4), 663552, 4096)
    A(f"s_cmp_ge_u32 s{sW}, 4")
    sel_srd(A, SB, kp(5), kp(6), 663552, 4096)
    srd(A, SM, kp(15), 256)
    A(f"s_cmp_ge_u32 s{sMT}, 9"); A(f"s_cselect_b32 s{sT0+2}, 9, 0"); A(f"s_sub_u32 s{sROT2}, s{sMT}, s{sT0+2}")
    for i in range(9): A(f"s_mov_b32 s{sD1+i}, {4096 + i*128 - (i%4)*1024}")
    A(f"s_mul_i32 s{sM0W}, s{sW}, 9216")
    A(f"v_lshrrev_b32 v9, 3, v{vLANE}")
    A(f"s_and_b32 s{sT0+2}, s{sW}, 1"); A(f"s_lshl_b32 s{sT0+2}, s{sT0+2}, 3")
    A(f"v_add_u32 v9, s{sT0+2}, v9")
    A(f"v_lshrrev_b32 v10, 1, v9")
    A(f"s_bfe_u32 s{sT0+3}, s{sW}, 0x10001")
    A(f"v_xor_b32 v10, s{sT0+3}, v10")
    A(f"v_and_b32 v11, 7, v{vLANE}")
    A(f"v_xor_b32 v10, v10, v11")
    A(f"s_mul_i32 s{sT0+2}, s{sQ}, 144"); A(f"s_lshl_b32 s{sT0+3}, s{sFG}, 4"); A(f"s_add_u32 s{sT0+2}, s{sT0+2}, s{sT0+3}")
    A(f"v_add_u32 v9, s{sT0+2}, v9")
    A(f"v_mul_u32_u24 v9, 1152, v9")
    A(f"v_lshl_add_u32 v{vDMA2}, v10, 4, v9")
    for i in range(9):
        for o in dma1(A, 0, i): A.op(o)
    nextrow = [f"v_add_u32 v{vDMA2}, {32*1152}, v{vDMA2}"]
    A(f"v_and_b32 v9, 1, v{vLANE}")
    A(f"v_bfe_u32 v10, v{vLANE}, 1, 4")
    A(f"v_lshrrev_b32 v11, 3, v10"); A("v_lshl_add_u32 v11, v9, 1, v11")
    A(f"s_lshl_b32 s{sT0+2}, s{sFG}, 2"); A(f"v_add_u32 v11, s{sT0+2}, v11")
    A("v_mul_u32_u24 v11, 9216, v11")
    A("v_and_b32 v12, 7, v10"); A("v_lshl_add_u32 v11, v12, 7, v11")
    A("v_lshrrev_b32 v10, 1, v10"); A("v_xor_b32 v10, v10, v9")
    A(f"v_lshrrev_b32 v9, 5, v{vLANE}"); A("v_xor_b32 v10, v10, v9")
    A("v_lshl_add_u32 v4, v10, 4, v11")
    for i in range(1, 4): A(f"v_xor_b32 v{4+i}, {32*i}, v4")

    ln_prologue(A, opt, False)
    clear_flag(A)
    A(f"s_lshl_b32 s{sT0+2}, s{sQ}, 4"); A(f"s_add_u32 s{sT0+2}, s{sT0+2}, 15"); A(f"s_sub_u32 s{sT0+2}, s{sT0+2}, s{sMT}")
    A(f"s_mul_i32 s{sER}, s{sT0+2}, {EROW}"); A(f"s_add_u32 s{sER}, s{sER}, {WS_E}")
    A(f"s_cmp_ge_u32 s{sW}, 5"); A("s_cbranch_scc1 L_noclr")
    A("v_lshlrev_b32 v9, 2, v52"); A("v_mov_b32 v10, -1")
    A(f"buffer_store_dword v10, v9, s[{SWS}:{SWS+3}], s{sER} offen sc0 sc1")
    A("L_noclr:")
    for o in nextrow: A.op(o)
    for i in range(9):
        for o in dma1(A, 1, i): A.op(o)
    A.wait(vm=["par"])
    for r in (49, 50, 51): A(f"v_lshlrev_b32 v{r}, 16, v{r}")
    L2E = hexf(math.log2(math.e))
    A(f"v_mul_f32 v51, {L2E}, v51"); A("v_exp_f32 v51, v51"); A("s_nop 0")
    bf16r(A, 51, 51)
    A("v_mul_f32 v53, v51, v49"); A("v_mul_f32 v54, v51, v50")
    A(f"v_mul_f32 v53, {L2E}, v53"); A("v_mul_f32 v54, 0.15915494, v54")
    A("v_exp_f32 v53, v53"); A("v_fract_f32 v54, v54")
    A("v_cos_f32 v56, v54"); A("v_sin_f32 v57, v54")
    A("v_mul_f32 v58, v49, v49"); A("v_fma_f32 v58, v50, v50, v58")
    A("v_mul_f32 v56, v56, v53"); A("v_mul_f32 v57, v57, v53")
    A("v_rcp_f32 v58, v58")
    A("v_add_f32 v59, -1.0, v56")
    A("v_mul_f32 v60, v59, v49"); A("v_fma_f32 v60, v57, v50, v60")
    A("v_mul_f32 v61, v57, v49"); A("v_fma_f32 v61, -v59, v50, v61")
    A("v_add_f32 v58, v58, v58")
    A("v_and_b32 v55, 1, v52"); A("v_lshlrev_b32 v55, 31, v55")
    A("v_mul_f32 v60, v60, v58"); A("v_mul_f32 v59, v61, v58")
    A("v_xor_b32 v57, v57, v55")
    A("v_xor_b32 v58, v60, v55")
    A("v_sub_f32 v59, 0, v59")
    A(f"v_lshlrev_b32 v55, 4, v52"); A(f"v_add_u32 v55, {LDS_KT}, v55")
    A("v_cmp_gt_u32 vcc, 288, v52")
    A(f"s_and_saveexec_b64 s[{sT0+4}:{sT0+5}], vcc")
    A.lds("ds_write_b128 v55, v[56:59]", "kw")
    A(f"s_mov_b64 exec, s[{sT0+4}:{sT0+5}]")
    A(f"v_and_b32 v10, 31, v{vLANE}")
    A(f"s_lshl_b32 s{sT0+2}, s{sFG}, 5"); A(f"v_add_u32 v10, s{sT0+2}, v10")
    A(f"v_lshlrev_b32 v8, 4, v10"); A(f"v_add_u32 v8, {LDS_KT}, v8")
    A(f"v_lshrrev_b32 v11, 5, v{vLANE}"); A(f"s_lshl_b32 s{sT0+2}, s{sTG}, 1"); A(f"v_add_u32 v11, s{sT0+2}, v11")
    A("v_mul_u32_u24 v11, 288, v11"); A("v_add_u32 v10, v10, v11")
    A(f"v_lshlrev_b32 v9, 2, v10"); A(f"v_add_u32 v9, {LDS_ET}, v9")
    A.wait(lds=["kw"], vm=[("d1", 0)])
    A("s_barrier")

    units = [(s, k) for s in range(5) for k in range(36)]
    NU = len(units)
    def rd(u):
        s, k = units[u]
        return [("lds", f"ds_read_b128 {vr(SBUF + 4*(u%4), 4)}, v{4+(k&3)} offset:{(k>>2)*1024}", ("a", u))]
    slots = []
    for u, (s, k) in enumerate(units):
        slots.append({"pre": [("wl", [("a", u)])],
                      "mfma": f"v_mfma_f32_32x32x16_bf16 {vr(U[s],16)}, {vr(YB+4*k,4)}, {vr(SBUF+4*(u%4),4)}, {'0' if k == 0 else vr(U[s],16)}"})
    for u in range(NU - D):
        s, k = units[u + D]
        if k == 0:
            op = "v_add_u32" if s & 1 else "v_subrev_u32"
            slots[u]["bar"] = [f"{op} v{4+i}, {BUFSZ}, v{4+i}" for i in range(4)] + [("wv", [("d1", s)]), "s_barrier"]
        slots[u]["rd"] = rd(u + D)
    slots[36 - D]["bar"] += announce("L_ann_s")
    for s in range(2, 5):
        base = (s - 1) * 36 - 2
        slots[base].setdefault("dma", []).extend(nextrow)
        for i in range(9): slots[base + 1 + 2 * i].setdefault("dma", []).extend(dma1(A, s, i))
    for s in range(1, 5):
        slots[s * 36 - 1].setdefault("x", []).extend(kread(s - 1))
        spread(slots, s * 36 + 3, s * 36 + 30, pass1_ops(s - 1))
    if opt.pf:
        pf = [f"s_and_b32 s{sT0}, s{sMT}, 7", f"s_lshl_b32 s{sT0}, s{sT0}, 2", f"s_add_u32 s{sT0}, s{sT0}, s{sTG}",
              f"s_mul_i32 s{sT0}, s{sT0}, {18*1152}", f"s_lshl_b32 s{sT0+1}, s{sQ}, 8", f"s_add_u32 s{sT0}, s{sT0}, s{sT0+1}",
              f"s_add_u32 s{sT0}, s{sT0}, 4096", f"v_mul_u32_u24 v0, 86, v{vLANE}", "v_lshrrev_b32 v0, 8, v0",
              f"v_mul_u32_u24 v0, 6, v0", f"v_add_u32 v0, v0, v{vLANE}", "v_lshlrev_b32 v0, 7, v0",
              ("vm", f"buffer_load_dword v0, v0, s[{SB}:{SB+3}], s{sT0} offen", "pf")]
        slots[1 * 36 + 18].setdefault("dma", []).extend(pf)
        pf[6] = f"s_add_u32 s{sT0}, s{sT0}, 4160"
        slots[2 * 36 + 18].setdefault("dma", []).extend([("wv", ["pf"])] + pf)
    cs = [f"v_and_b32 v80, 31, v{vLANE}", f"v_lshrrev_b32 v81, 5, v{vLANE}", "v_lshlrev_b32 v80, 5, v80", "v_lshl_add_u32 v84, v81, 4, v80",
          f"s_lshl_b32 s{sT0+2}, s{sMT}, 2", f"s_add_u32 s{sT0+2}, s{sT0+2}, s{sTG}",
          f"s_mul_i32 s{sT0+2}, s{sT0+2}, {18*16384}", f"s_mul_i32 s{sT0+3}, s{sQ}, 2048", f"s_add_u32 s{sT0+3}, s{sT0+3}, 8192",
          f"s_add_u32 s{sT0+2}, s{sT0+2}, s{sT0+3}", f"s_lshl_b32 s{sT0+3}, s{sFG}, 14",
          f"s_add_u32 s{sT0+2}, s{sT0+2}, s{sT0+3}", f"v_add_u32 v84, s{sT0+2}, v84"] + [f"v_mov_b32 v{80+i}, -1" for i in range(4)]
    spread(slots, 1, 5, cs, "x")
    for i, pos in enumerate([8, 20, 36 + 20, 36 + 28, 72 + 22, 108 + 22]):
        slots[pos].setdefault("dma", []).extend([f"s_add_u32 s{sT0+8}, s{sROT2}, {2 + 3 * (i//2)}", f"s_cmp_ge_u32 s{sT0+8}, 9", f"s_cselect_b32 s{sT0+9}, 9, 0",
            f"s_sub_u32 s{sT0+8}, s{sT0+8}, s{sT0+9}", f"s_lshl_b32 s{sT0+8}, s{sT0+8}, 15",
            ("vm", f"buffer_store_dwordx4 v[80:83], v84, s[{SWS}:{SWS+3}], s{sT0+8} offen offset:{(i&1)*1024} sc0 sc1", "clr2")])
    vC = YB
    SLOT = [73728, 110592, 0, 36864]
    csetup = [f"s_and_b32 s{sT0+2}, s{sW}, 1", f"s_lshl_b32 s{sT0+2}, s{sT0+2}, 8",
              f"s_bfe_u32 s{sT0+3}, s{sW}, 0x10001", f"s_mul_i32 s{sT0+3}, s{sT0+3}, {32*1152}",
              f"s_mul_i32 s{sT0+4}, s{sQ}, 288", f"s_add_u32 s{sT0+3}, s{sT0+3}, s{sT0+4}",
              f"s_lshr_b32 s{sM0A}, s{sW}, 1", f"s_mul_i32 s{sM0A}, s{sM0A}, 9216",
              f"s_lshl_b32 s{sT0+4}, s{sT0+2}, 4", f"s_add_u32 s{sM0A}, s{sM0A}, s{sT0+4}",
              f"s_mul_i32 s{sDP}, s{sROT2}, 73728", f"s_movk_i32 s{sT0+5}, 3641"]
    for i in range(5):
        a, b, c = vC + 5, vC + 6, vC + 7
        csetup += [f"v_add_u32 v{a}, s{sT0+2}, v{vLANE}", f"v_add_u32 v{a}, {64*i}, v{a}",
                   f"v_mul_u32_u24 v{b}, s{sT0+5}, v{a}", f"v_lshrrev_b32 v{b}, 16, v{b}",
                   f"v_mul_u32_u24 v{c}, 18, v{b}", f"v_sub_u32 v{a}, v{a}, v{c}",
                   f"v_lshrrev_b32 v{c}, 4, v{b}", f"v_xor_b32 v{a}, v{a}, v{c}",
                   f"v_and_b32 v{vC+i}, 3, v{b}",
                   f"v_lshrrev_b32 v{c}, 3, v{b}", f"v_lshl_add_u32 v{vC+i}, v{c}, 2, v{vC+i}",
                   f"v_bfe_u32 v{c}, v{b}, 2, 1", f"v_lshl_add_u32 v{vC+i}, v{c}, 4, v{vC+i}",
                   f"v_mul_u32_u24 v{vC+i}, 1152, v{vC+i}", f"v_lshl_add_u32 v{vC+i}, v{a}, 4, v{vC+i}",
                   f"v_add_u32 v{vC+i}, s{sT0+3}, v{vC+i}", f"v_add_u32 v{vC+i}, {4096 - (i%4)*1024}, v{vC+i}"]
    def dmac(j, i):
        ops = []
        if i % 4 == 0: ops += [f"s_add_u32 m0, s{sM0A}, {SLOT[j%4] + i*1024}", "s_nop 0"]
        ops.append(("vm", f"buffer_load_dwordx4 v{vC+i}, s[{SB}:{SB+3}], s{sDP} offen offset:{(i%4)*1024} lds", ("d2", j)))
        if i == 4: ops += adv(sDP, 73728, j)
        return ops
    S4 = 4 * 36
    spread(slots, S4 + 2, S4 + 20, csetup, "x")
    n = 0
    for j in range(2):
        for i in range(5):
            slots[S4 + 21 + n].setdefault("dma", []).extend(dmac(j, i)); n += 1
    slots[S4 + 34].setdefault("x", []).extend(kread(4))
    for u in range(D):
        for o in rd(u): A.op(o)
    emit_slots(A, slots[:S4])
    A(f"s_cmp_lg_u32 s{sFG}, 0")
    A("s_cbranch_scc1 L_s4b")
    saved = (list(A.lq), list(A.vq))
    emit_slots(A, slots[S4:])
    A("s_nop 7"); A("s_nop 3")
    for o in pass1_ops(4): A.op(o)
    A.wait_all()
    A("s_branch L_s4j")
    vq_a = list(A.vq)
    A("L_s4b:")
    A.lq, A.vq = saved
    for o in csetup: A.op(o)
    for j in range(2):
        for i in range(5):
            for o in dmac(j, i): A.op(o)
    for o in pass1_ops(3): A.op(o)
    A(f"s_cmp_lg_u32 s{sW}, 7"); A("s_cbranch_scc1 L_nochk")
    check_all(A, "L_chk_s", 120)
    A("L_nochk:")
    A.wait_all()
    assert len(A.vq) == len(vq_a), (A.vq, vq_a)
    A("L_s4j:")
    stamp(A, opt, 3)
    A("s_barrier")

    T = 120
    A(f"s_cmp_ge_u32 s{sW}, 5")
    A("s_cbranch_scc1 L_carry_done")
    saved = (list(A.lq), list(A.vq))
    A(f"s_lshl_b32 s{sT0+2}, s{sW}, 6")
    A(f"v_add_u32 v{T}, s{sT0+2}, v{vLANE}")
    A(f"v_cmp_gt_u32 vcc, 288, v{T}")
    A(f"s_and_saveexec_b64 s[{sT0+8}:{sT0+9}], vcc")
    A(f"v_lshlrev_b32 v{T+1}, 4, v{T}"); A(f"v_add_u32 v{T+1}, {LDS_KT}, v{T+1}")
    A(f"v_lshlrev_b32 v{T}, 2, v{T}"); A(f"v_add_u32 v{T+2}, {LDS_ET}, v{T}")
    A.lds(f"ds_read_b64 v[{T+4}:{T+5}], v{T+1}", "kk")
    EI = T + 12
    for i in range(8): A.lds(f"ds_read_b32 v{EI+i}, v{T+2} offset:{i*1152}", ("e", i))
    A.wait(lds=["kk"])
    def sq(dr, ds_, r, s):
        A(f"v_mul_f32 v{T+3}, v{s}, v{s}")
        A(f"v_mul_f32 v{ds_}, v{r}, v{s}")
        A(f"v_fma_f32 v{dr}, v{r}, v{r}, -v{T+3}")
        A(f"v_add_f32 v{ds_}, v{ds_}, v{ds_}")
    for _ in range(4): sq(T + 4, T + 5, T + 4, T + 5)
    A.wait(lds=[("e", 7)])
    def step(new, old, add, lr, ls):
        A(f"v_fma_f32 v{new}, v{lr}, v{old}, v{add}")
        A("s_nop 1")
        A(f"v_fmac_f32_dpp v{new}, v{old}, v{ls} {DPP}")
    p = EI
    for i in range(1, 8):
        n_ = T + 8 + (i & 1)
        step(n_, p, EI + i, T + 4, T + 5); p = n_
    A.vm(f"buffer_store_dword v{p}, v{T}, s[{SWS}:{SWS+3}], s{sER} offen sc0 sc1", "pub")
    A(f"s_add_u32 s{sT0+2}, s{sQ}, 1"); A(f"s_mul_i32 s{sT0+2}, s{sT0+2}, {16*EROW}"); A(f"s_add_u32 s{SX+2}, s{sT0+2}, {WS_E}")
    A(f"s_mov_b32 s{SX}, s{SWS}"); A(f"s_mov_b32 s{SX+1}, s{SWS+1}")
    for r in range(4): A(f"s_add_u32 s{sT0+2+r}, s{sER}, {EROW*(1+4*r)}")
    A(f"s_movk_i32 s{sT0+6}, 0x4000")
    EC = T + 24
    A("L_poll:")
    for c in range(15):
        A(f"buffer_load_dword v{EC+c}, v{T}, s[{SX}:{SX+3}], s{sT0+2+c//4} offen offset:{(c%4)*EROW} sc0 sc1")
    sq(T + 6, T + 7, T + 4, T + 5)
    for _ in range(2): sq(T + 6, T + 7, T + 6, T + 7)
    A(f"s_sub_u32 s{sT0+6}, s{sT0+6}, 1")
    A("s_cbranch_scc1 L_poll_done")
    A("s_waitcnt vmcnt(0)")
    A(f"v_max3_u32 v{T+8}, v{EC}, v{EC+1}, v{EC+2}")
    for c in range(3, 15, 2): A(f"v_max3_u32 v{T+8}, v{T+8}, v{EC+c}, v{EC+c+1}")
    A(f"v_cmp_eq_u32 vcc, -1, v{T+8}")
    A("s_cbranch_vccnz L_poll")
    A("L_poll_done:")
    A.wait_all(lds=False, vm=True)
    stamp(A, opt, 4)
    p = EC + 14
    for c in range(13, -1, -1):
        n_ = T + 8 + (c & 1)
        step(n_, p, EC + c, T + 6, T + 7); p = n_
    A("s_nop 1")
    p = T + 8
    for i in range(8):
        A.lds(f"ds_write_b32 v{T+2}, v{p} offset:{i*1152}", "gw")
        if i < 7:
            n_ = T + 8 + ((i + 1) & 1)
            step(n_, p, EI + i, T + 4, T + 5); p = n_
    A(f"s_mov_b64 exec, s[{sT0+8}:{sT0+9}]")
    A.wait_all()
    A("L_carry_done:")
    A.lq, A.vq = saved
    A("s_barrier")
    stamp(A, opt, 5)

    KK = 120
    A(f"v_and_b32 v10, 1, v{vLANE}"); A(f"v_bfe_u32 v11, v{vLANE}, 1, 4")
    A("v_lshl_add_u32 v11, v10, 4, v11"); A("v_lshlrev_b32 v11, 6, v11")
    A(f"v_lshrrev_b32 v12, 5, v{vLANE}"); A("v_xor_b32 v10, v10, v12")
    A(f"v_bfe_u32 v12, v{vLANE}, 2, 1"); A("v_lshl_add_u32 v10, v10, 1, v12")
    A("v_lshl_add_u32 v136, v10, 4, v11")
    A(f"s_mul_i32 s{sT0+2}, s{sTG}, 18432"); A(f"s_lshl_b32 s{sT0+3}, s{sFG}, 11"); A(f"s_add_u32 s{sT0+3}, s{sT0+3}, s{sT0+2}")
    A(f"v_add_u32 v136, s{sT0+3}, v136"); A("v_xor_b32 v137, 16, v136")
    def pass2(nt):
        for t in range(nt):
            A.lds(f"ds_read_b64 v[{KK+2*t}:{KK+2*t+1}], v8 offset:{t*1024}", "k2")
            A.lds(f"ds_read_b32 v{130+t}, v9 offset:{t*256}", "k2")
        A.wait_all()
        for i in range(16):
            for t in range(nt):
                prev = 130 + t if i == 0 else U[t] + i - 1
                A(f"v_fmac_f32 v{U[t]+i}, v{KK+2*t}, v{prev}")
            for t in range(nt):
                prev = 130 + t if i == 0 else U[t] + i - 1
                A(f"v_fmac_f32_dpp v{U[t]+i}, v{prev}, v{KK+2*t+1} {DPP}")
        for t in range(nt):
            for j in range(8):
                A(f"v_cvt_pk_bf16_f32 v{U[t]+j}, v{U[t]+2*j}, v{U[t]+2*j+1}")
                if j % 4 == 3:
                    A.lds(f"ds_write_b128 v{136 + j//4}, {vr(U[t]+j-3,4)} offset:{t*4096}", "hw")
        A.wait_all()
    A(f"s_cmp_lg_u32 s{sFG}, 0")
    A("s_cbranch_scc1 L_p2b")
    pass2(5)
    A("s_branch L_p2j")
    A("L_p2b:")
    pass2(4)
    A("L_p2j:")
    A(f"v_lshrrev_b32 v10, 5, v{vLANE}"); A(f"v_bfe_u32 v11, v{vLANE}, 2, 2")
    A("v_lshl_add_u32 v10, v10, 3, v11"); A("v_lshlrev_b32 v10, 6, v10")
    A(f"v_bfe_u32 v11, v{vLANE}, 1, 1"); A(f"v_bfe_u32 v12, v{vLANE}, 3, 1"); A("v_xor_b32 v11, v11, v12")
    A(f"v_bfe_u32 v12, v{vLANE}, 4, 1"); A("v_lshl_add_u32 v11, v12, 1, v11")
    A("v_lshl_add_u32 v10, v11, 4, v10")
    A(f"v_and_b32 v11, 1, v{vLANE}"); A("v_lshl_add_u32 v10, v11, 3, v10")
    A(f"v_add_u32 v4, s{sT0+2}, v10"); A("v_xor_b32 v5, 32, v4")
    A(f"v_and_b32 v10, 31, v{vLANE}"); A("v_mul_u32_u24 v11, 288, v10")
    A(f"v_lshrrev_b32 v10, 4, v10"); A(f"v_lshrrev_b32 v12, 5, v{vLANE}"); A("v_xor_b32 v10, v10, v12")
    A("v_lshl_add_u32 v6, v10, 4, v11")
    A(f"s_mul_i32 s{sT0+3}, s{sFG}, 9216"); A(f"v_add_u32 v6, s{sT0+3}, v6"); A(f"v_add_u32 v7, 73728, v6")
    A(f"v_and_b32 v10, 31, v{vLANE}"); A(f"v_lshrrev_b32 v11, 5, v{vLANE}"); A("v_lshlrev_b32 v10, 5, v10")
    A(f"v_lshl_add_u32 v{vXA}, v11, 4, v10")
    A(f"s_lshl_b32 s{sT0+2}, s{sMT}, 2"); A(f"s_add_u32 s{sT0+2}, s{sT0+2}, s{sTG}")
    A(f"s_mul_i32 s{sT0+2}, s{sT0+2}, {18*16384}"); A(f"s_mul_i32 s{sT0+3}, s{sQ}, 2048"); A(f"s_add_u32 s{sT0+3}, s{sT0+3}, 8192")
    A(f"s_add_u32 s{sT0+2}, s{sT0+2}, s{sT0+3}"); A(f"s_lshl_b32 s{sT0+3}, s{sFG}, 14")
    A(f"s_add_u32 s{sT0+2}, s{sT0+2}, s{sT0+3}"); A(f"v_add_u32 v{vXA}, s{sT0+2}, v{vXA}")
    A(f"s_lshl_b32 s{sST}, s{sROT2}, 15")
    A.wait(vm=[("d2", 0)])
    A("s_barrier")
    for o in announce("L_ann_s2", 3): A(o)
    stamp(A, opt, 6)
    GF = 184
    for ks in range(18):
        tile, kk = ks >> 1, ks & 1
        for rr in range(2):
            A.lds(f"ds_read_b64_tr_b16 {vr(GF+4*ks+2*rr,2)}, v{4+kk} offset:{tile*2048 + kk*1024 + rr*256}", "g")
    units = [(j, k) for j in range(9) for k in range(18)]
    NU = len(units)
    def rd2(u):
        j, k = units[u]
        so = SLOT[j % 4]
        a = 7 if so >= 73728 else 6
        off = so % 73728 + (k & 1) * 18432 + (k >> 1) * 32
        return [("lds", f"ds_read_b128 {vr(SBUF + 4*(u%4), 4)}, v{a} offset:{off}", ("a", u))]
    slots = []
    for u, (j, k) in enumerate(units):
        acc = ACC[j & 1]
        slots.append({"pre": [("wl", [("a", u)])],
                      "mfma": f"v_mfma_f32_32x32x16_bf16 {vr(acc,16)}, {vr(SBUF+4*(u%4),4)}, {vr(GF+4*k,4)}, {'0' if k == 0 else vr(acc,16)}"})
    for u in range(NU - D):
        j, k = units[u + D]
        if k == 0: slots[u]["bar"] = [("wv", [("d2", j)]), "s_barrier"]
        slots[u]["rd"] = rd2(u + D)
    slots[0]["bar"] = ["s_barrier"]
    n = 1
    for j in (2, 3):
        for i in range(5):
            slots[n].setdefault("dma", []).extend(dmac(j, i)); n += 1
    for j in range(4, 9):
        base = (j - 3) * 18 + 6
        for i in range(5): slots[base + 2 * i].setdefault("dma", []).extend(dmac(j, i))
    SREG = 48
    for j in range(1, 9):
        spread(slots, j * 18 + 2, j * 18 + 6, store_ops(ACC[(j - 1) & 1], SREG, ("st", j - 1)) + adv(sST, 32768, j - 1))
    import red
    rr = red.R("s")
    red.plan(rr, slots, 0, 18, opt)
    for u in range(D):
        for o in rd2(u): A.op(o)
    emit_slots(A, slots)
    A("s_nop 7"); A("s_nop 3")
    for o in store_ops(ACC[0], SREG, ("st", 8)): A.op(o)
    stamp(A, opt, 7)
    red.tail(A, rr, opt)
```

```python
import math
from asmlib import *
import gen2 as G
from gen2 import sW, sTG, sFG, sMT, sSL, SX, SA, SM, SWS, sT0, sROT2, sFLG, sMYF, sST, vXA, vLANE, WS_AFF, KSC, kp, srd, stamp
from gen2 import sLOC, sCF, sCP, sXID

sDB = 44
SD, SO = SM, SA
SC = " sc0 sc1"
LX = 147456
LD = LX + 12288
class R:
    def __init__(s, tag):
        s.SEL = [192, 196]
        s.vPL, s.vTK, s.vD, s.vO = 200, 201, 202, 203
        s.vFV = 204 if tag == "m" else 60
        s.vC = 205
        s.vFA = 191 if tag == "m" else 61
        s.AFF = 206
        s.vF = 188
        s.P, s.PU = 208, 216
        s.LB = 232
        s.tag = tag; s.n = 0; s.names = []
    def buf(s, c, i): return (s.LB if c == 0 else 112 + 16 * c) + 4 * i
    def lbl(s):
        s.n += 1; return f"L_r{s.tag}{s.n}"
class L(list):
    def __call__(s, x): s.append(x)
TK = [0]
def tick(r, name):
    if not TK[0] or (TK[0] == 2 and name[0] not in "SZe") or name[0] == "k": return []
    r.names.append(name)
    return ["s_memrealtime s[100:101]", "s_waitcnt lgkmcnt(0)", f"v_writelane_b32 v15, s100, {len(r.names)-1}"]

CH = 8 * G.PLANE
def dbs(A, dst, stride, sh):
    A(f"s_lshr_b32 s{sT0}, s{sSL}, 2"); A(f"s_mul_i32 s{sT0}, s{sT0}, 3"); A(f"s_add_u32 s{sT0}, s{sT0}, s{sMT}")
    A(f"s_cmp_ge_u32 s{sT0}, 9"); A(f"s_cselect_b32 s{sT0+1}, 9, 0"); A(f"s_sub_u32 s{sT0}, s{sT0}, s{sT0+1}")
    for c in range(3):
        A(f"s_cmp_ge_u32 s{sT0}, 9"); A(f"s_cselect_b32 s{sT0+1}, 9, 0"); A(f"s_sub_u32 s{sT0}, s{sT0}, s{sT0+1}")
        A(f"s_lshl_b32 s{dst+stride*c}, s{sT0}, {sh}"); A(f"s_add_u32 s{sT0}, s{sT0}, 1")
def sent_clear():
    A = L()
    dbs(A, sT0 + 4, 2, 15)
    for c in range(3): A(f"s_add_u32 s{sT0+5+2*c}, s{sT0+4+2*c}, 8192")
    A(f"v_lshrrev_b32 v52, 4, v{vLANE}"); A(f"v_and_b32 v53, 15, v{vLANE}"); A(f"v_lshlrev_b32 v53, 4, v53")
    A(f"v_lshl_add_u32 v51, v52, 11, v53")
    A(f"s_lshl_b32 s{sT0}, s{sMT}, 2"); A(f"s_add_u32 s{sT0}, s{sT0}, s{sTG}")
    A(f"s_mul_i32 s{sT0+1}, s{sT0}, 18"); A(f"s_add_u32 s{sT0+1}, s{sT0+1}, s{sFG}"); A(f"s_lshl_b32 s{sT0+1}, s{sT0+1}, 6")
    A(f"s_and_b32 s{sT0}, s{sSL}, 3"); A(f"s_add_u32 s{sT0+1}, s{sT0+1}, s{sT0}"); A(f"s_lshl_b32 s{sT0+1}, s{sT0+1}, 8")
    A(f"v_add_u32 v51, s{sT0+1}, v51")
    for i in range(4): A(f"v_mov_b32 v{52+i}, -1")
    st = [("vm", f"buffer_store_dwordx4 v[52:55], v51, s[{SWS}:{SWS+3}], s{sT0+4+(i>>1)} offen offset:{(i&1)*1024}{SC}", "clr") for i in range(12)]
    return list(A), st

def setup(r):
    A = L(); t = r.LB
    srd(A, SO, kp(14), 4718592)
    A(f"s_cmp_ge_u32 s{sTG}, 2"); A(f"s_cselect_b64 s[{SD}:{SD+1}], s[{kp(13)}:{kp(13)+1}], s[{kp(8)}:{kp(8)+1}]")
    A(f"s_movk_i32 s{SD+2}, 1152")
    dbs(A, sDB, 1, 7)
    A(f"v_and_b32 v{t}, 1, v{vLANE}"); A(f"v_lshlrev_b32 v{t}, 4, v{t}")
    A(f"s_movk_i32 s{sT0}, 0x3f80"); A(f"v_lshlrev_b32 v{t}, v{t}, s{sT0}")
    A(f"v_bfe_u32 v{t+1}, v{vLANE}, 1, 3")
    for i in range(8):
        A(f"v_cmp_eq_u32 vcc, {i}, v{t+1}"); A(f"v_cndmask_b32 v{r.SEL[0]+i}, 0, v{t}, vcc")
    A(f"v_lshrrev_b32 v{t+2}, 4, v{vLANE}"); A(f"v_and_b32 v{t+3}, 15, v{vLANE}"); A(f"v_lshlrev_b32 v{t+3}, 4, v{t+3}")
    A(f"v_lshl_add_u32 v{r.vPL}, v{t+2}, 11, v{t+3}")
    A(f"s_lshl_b32 s{sT0}, s{sMT}, 2"); A(f"s_add_u32 s{sT0}, s{sT0}, s{sTG}")
    A(f"s_mul_i32 s{sT0+1}, s{sT0}, 18"); A(f"s_add_u32 s{sT0+1}, s{sT0+1}, s{sFG}"); A(f"s_lshl_b32 s{sT0+1}, s{sT0+1}, 6")
    A(f"s_and_b32 s{sT0+2}, s{sSL}, 3"); A(f"s_add_u32 s{sT0+1}, s{sT0+1}, s{sT0+2}"); A(f"s_lshl_b32 s{sT0+1}, s{sT0+1}, 8")
    A(f"v_add_u32 v{r.vPL}, s{sT0+1}, v{r.vPL}")
    A(f"v_and_b32 v{t+3}, 1, v{vLANE}"); A(f"v_lshlrev_b32 v{t+3}, 5, v{t+3}"); A(f"v_lshl_add_u32 v{t+3}, v{t+2}, 3, v{t+3}")
    A(f"v_lshl_add_u32 v{r.vTK}, v{t+1}, 6, v{t+3}")
    A(f"s_mul_i32 s{sT0+1}, s{sW}, 1536"); A(f"s_add_u32 s{sT0+1}, s{sT0+1}, {LX}"); A(f"v_add_u32 v{r.vTK}, s{sT0+1}, v{r.vTK}")
    A(f"s_lshl_b32 s{sT0+1}, s{sFG}, 6"); A(f"v_add_u32 v{t+3}, s{sT0+1}, v{t+3}"); A(f"v_add_u32 v{r.vD}, {LD}, v{t+3}")
    A(f"s_lshl_b32 s{sT0}, s{sT0}, 2"); A(f"s_add_u32 s{sT0}, s{sT0}, s{sT0+2}"); A(f"s_lshl_b32 s{sT0}, s{sT0}, 3")
    A(f"v_add_u32 v{t+1}, s{sT0}, v{t+1}"); A(f"v_mul_u32_u24 v{r.vO}, 1152, v{t+1}")
    A(f"v_add_u32 v{r.vO}, v{r.vO}, v{t+3}"); A(f"v_lshlrev_b32 v{r.vO}, 1, v{r.vO}")
    A(f"v_and_b32 v{t+1}, 127, v{t+1}"); A(f"v_lshlrev_b32 v{t+1}, 3, v{t+1}")
    A(f"s_mul_i32 s{sT0+3}, s{sT0}, 1152"); A(f"s_add_u32 s{sT0+3}, s{sT0+3}, s{sT0+1}")
    A(f"s_lshl_b32 s{sT0}, s2, 10"); A(f"s_add_u32 s{sT0}, s{sT0}, {WS_AFF}")
    A(("vm", f"buffer_load_dwordx2 {vr(r.AFF,2)}, v{t+1}, s[{SWS}:{SWS+3}], s{sT0} offen", "raff"))
    return list(A)

def xload(r):
    t = r.LB + 4
    return [f"v_bfe_u32 v{t}, v{vLANE}, 2, 3", f"v_mul_u32_u24 v{t}, 1152, v{t}",
            f"v_and_b32 v{t+1}, 3, v{vLANE}", f"v_lshl_add_u32 v{t}, v{t+1}, 4, v{t}",
            f"s_sub_u32 s{sT0}, s{sDB+1}, s{sDB}", f"v_lshrrev_b32 v{t+1}, 5, v{vLANE}", f"v_mul_i32_i24 v{t+1}, s{sT0}, v{t+1}",
            f"v_add3_u32 v{t+1}, v{t+1}, s{sDB}, v{t}",
            f"s_mul_i32 s{sT0+1}, s{sW}, 1536", f"s_add_u32 m0, s{sT0+1}, {LX}", "s_nop 0",
            ("vm", f"buffer_load_dwordx4 v{t+1}, s[{SX}:{SX+3}], s{sT0+3} offen lds", "rx"),
            f"s_add_u32 s{sT0}, s{sT0+3}, s{sDB+2}", f"s_add_u32 m0, s{sT0+1}, {LX+1024}", "s_mov_b32 exec_hi, 0",
            ("vm", f"buffer_load_dwordx4 v{t}, s[{SX}:{SX+3}], s{sT0} offen lds", "rx"), "s_mov_b64 exec, -1",
            f"v_lshlrev_b32 v{t+2}, 4, v{vLANE}", f"s_and_b32 s{sT0}, s{sW}, 1", f"s_lshl_b32 s{sT0}, s{sT0}, 10",
            f"s_lshl_b32 s{sT0+1}, s{sTG}, 10", f"s_add_u32 m0, s{sT0+1}, {LD}", "s_nop 0",
            ("vm", f"buffer_load_dwordx4 v{t+2}, s[{SD}:{SD+3}], s{sT0} offen lds", "rx")]

def one(op): return ["s_mov_b64 exec, 1", op, "s_mov_b64 exec, -1"]
def raw(r, name, sreg):
    if TK[0] != 1 or name[1] == "k": return []
    r.names.append(name)
    return [f"v_writelane_b32 v15, s{sreg}, {len(r.names)-1}"]
def spin(r, nm, tag, ld, test, ex=["s_mov_b64 exec, 1"]):
    l = r.lbl()
    return tick(r, nm + "a") + [("wv", [tag])] + tick(r, nm + "b") + [f"s_movk_i32 s{sT0+1}, 0x4000"] + test + raw(r, "R" + nm + "f", sT0) + [f"s_cbranch_scc0 {l}d",
            f"{l}:"] + raw(r, "R" + nm + "l", sT0) + ex + [ld, "s_mov_b64 exec, -1"] + ["s_waitcnt vmcnt(0)", f"s_sub_u32 s{sT0+1}, s{sT0+1}, 1", f"s_cbranch_scc1 {l}d"] + test + [
            f"s_cbranch_scc1 {l}", f"{l}d:"] + raw(r, "R" + nm + "n", sT0 + 1) + tick(r, nm + "c")
def fl(r): return f"buffer_load_dword v{r.vF+2}, off, s[{SWS}:{SWS+3}], s{sFLG} offset:12{SC}"
def fload(r): return one(("vm", fl(r), "rf"))
def check(r):
    return spin(r, "cf", "rf", fl(r), [f"v_readfirstlane_b32 s{sT0}, v{r.vF+2}", f"s_andn2_b32 s{sT0}, 0x01010101, s{sT0}"])
def cl(r): return f"buffer_load_dword v{r.vC}, off, s[{SWS}:{SWS+3}], s{sCP}{SC}"
def ccheck(r, j):
    return spin(r, f"k{j}", "rc", cl(r), [f"v_readfirstlane_b32 s{sT0}, v{r.vC}", f"s_and_b32 s{sT0}, s{sT0}, 15", f"s_cmp_lt_u32 s{sT0}, {j-2}"])
def dual(r, ins, tag):
    l = r.lbl()
    return ("grp", [f"s_cmp_lg_u32 s{sLOC}, 0", f"s_cbranch_scc1 {l}", ("vm", ins, tag), f"s_branch {l}e", f"{l}:", ins + SC, f"{l}e:"])
def pload(r, c):
    o = [f"s_lshl_b32 s{sT0}, s{sDB+c}, 8", f"s_add_u32 s{sT0+1}, s{sT0}, 8192"]
    for i in range(4):
        o.append(("vm", f"buffer_load_dwordx4 {vr(r.buf(c,i),4)}, v{r.vPL}, s[{SWS}:{SWS+3}], s{sT0+(i>>1)} offen offset:{(i&1)*1024}{SC}", ("rp", c, i)))
    return o
def scheck(r, c):
    b = r.buf(c, 0); t = r.vF; l = r.lbl()
    test = [f"v_max3_u32 v{t}, v{b}, v{b+1}, v{b+2}", f"v_max3_u32 v{t+1}, v{b+3}, v{b+4}, v{b+5}"]
    for i in range(6, 16 if c == 2 else 8, 2): test.append(f"v_max3_u32 v{t+(i>>1&1)}, v{t+(i>>1&1)}, v{b+i}, v{b+i+1}")
    test += [f"v_max_u32 v{t}, v{t}, v{t+1}", f"v_cmp_eq_u32 vcc, -1, v{t}"]
    pl = pload(r, c)
    return tick(r, f"c{c}a") + [("wv", [("rp", c, 3)])] + tick(r, f"c{c}b") + test + [f"s_movk_i32 s{sT0+4}, 0x4000", f"s_cbranch_vccz {l}d"] + pl[:2] + [
        f"{l}:", "s_mov_b64 exec, vcc"] + [o[1] for o in pl[2:(6 if c == 2 else 4)]] + ["s_mov_b64 exec, -1", "s_waitcnt vmcnt(0)",
        f"s_sub_u32 s{sT0+4}, s{sT0+4}, 1", f"s_cbranch_scc1 {l}d"] + test + [f"s_cbranch_vccnz {l}", f"{l}d:"] + raw(r, f"Rc{c}n", sT0 + 4) + tick(r, f"c{c}c")
def publish(r, b):
    return [f"v_mov_b32 v{r.vFV}, 1", ("wv", [("st", b)])] + one(("vm", f"buffer_store_byte v{r.vFV}, off, s[{SWS}:{SWS+3}], s{sMYF}{SC}", "fl"))
def cpublish(r, b):
    return [f"s_add_u32 s{sT0}, s{sXID}, {b+1}", f"v_mov_b32 v{r.vFV}, s{sT0}", ("wv", [("st", b)])] + \
        one(dual(r, f"buffer_store_dword v{r.vFV}, off, s[{SWS}:{SWS+3}], s{sCF}", "fl"))
def store_ops(r, j, acc, SREG):
    ops = []
    for hf in range(2):
        if j >= 3: ops += [f"v_add_f32 v{acc+i}, v{acc+i}, v{r.PU+i}" for i in range(8 * hf, 8 * hf + 8)]
        ops += [f"v_cvt_pk_bf16_f32 v{SREG+i}, v{acc+2*i}, v{acc+2*i+1}" for i in range(4 * hf, 4 * hf + 4)]
        ins = f"buffer_store_dwordx4 {vr(SREG+4*hf,4)}, v{vXA}, s[{SWS}:{SWS+3}], s{G.sST2 if j < 6 else sST} offen offset:{1024*hf}"
        ops.append(dual(r, ins, ("st", j)) if j < 6 else ("vm", ins + SC, ("st", j)))
    return ops

def pre(r):
    A = L()
    A(("wv", ["raff"]))
    for k in range(3):
        x = 40 + 8 * k
        A(f"v_add_u32 v{x+6}, s{sDB+k}, v{r.vD}")
        A(("lds", f"ds_read_b64 {vr(x,2)}, v{r.vTK} offset:{512*k}", ("xd", k)))
        A(("lds", f"ds_read_b64 {vr(x+2,2)}, v{x+6}", ("xd", k)))
        A(("lds", f"ds_read_b64 {vr(x+4,2)}, v{x+6} offset:2048", ("xd", k)))
    for k in range(3):
        X, Dd, x = 72 + 12 * k, 76 + 12 * k, 40 + 8 * k
        A(("wl", [("xd", k)]))
        for j in range(6):
            A(f"v_lshlrev_b32 v{X+2*j}, 16, v{x+j}"); A(f"v_and_b32 v{X+2*j+1}, 0xffff0000, v{x+j}")
        for e in range(4): A(f"v_sub_f32 v{x+e}, v{X+e}, v{r.AFF}")
        for e in range(4): A(f"v_mul_f32 v{x+e}, v{x+e}, v{r.AFF+1}")
        for e in range(4): A(f"v_mul_f32 v{Dd+e}, v{Dd+e}, v{x+e}")
    return list(A)

def epi(r, k, ow):
    A = L()
    X, S, B, O = 72 + 12 * k, 76 + 12 * k, 80 + 12 * k, 16 + 4 * k
    A.extend(tick(r, f"m{k}a"))
    for i in range(4):
        A(("wv", [("rp", k, i)]))
        a = O if i < 2 else S
        A(f"v_mfma_f32_16x16x32_bf16 {vr(a,4)}, {vr(r.SEL[i&1],4)}, {vr(r.buf(k,i),4)}, {'0' if i == 0 else vr(a,4)}")
    A.extend(tick(r, f"m{k}b"))
    E = range(4)
    A(f"s_lshl_b32 s{sT0}, s{sDB+k}, 1")
    for e in E: A(f"v_fma_f32 v{O+e}, v{O+e}, s{sT0+2}, v{B+e}")
    for e in E: A(f"v_mul_f32 v{B+e}, s{sT0+3}, v{O+e}")
    for e in E: A(f"v_exp_f32 v{B+e}, v{B+e}")
    for e in E: A(f"v_mul_f32 v{O+e}, v{O+e}, v{S+e}")
    for e in E: A(f"v_add_f32 v{B+e}, 1.0, v{B+e}")
    for e in E: A(f"v_rcp_f32 v{B+e}, v{B+e}")
    for e in E: A(f"v_fma_f32 v{O+e}, v{O+e}, v{B+e}, v{X+e}")
    A(("vm", f"buffer_store_dwordx4 {vr(O,4)}, v{r.vO}, s[{SO}:{SO+3}], s{sT0} offen{ow}", "out"))
    return list(A)

def plan(r, slots, P2, NK, opt):
    def put(j, k, ops, key="x"): slots[P2 + j * NK + k].setdefault(key, []).extend(ops)
    TK[0] = opt.stamps
    for j in range(9): put(j, 0, tick(r, f"S{j}"), "pre")
    if r.tag == "s":
        put(7, 1, publish(r, 5))
        return
    put(8, opt.ff, fload(r))
    G.spread(slots, P2 + 2 * NK + 2, P2 + 2 * NK + 14, setup(r), "x")
    put(2, 20, xload(r))
    for j in range(6): put(j + 1, opt.cp, cpublish(r, j))
    nxt = lambda d, n: [f"s_add_u32 s{d}, s{sST}, {32768*n}", f"s_cmp_ge_u32 s{d}, {9*32768}", f"s_cselect_b32 s{d+1}, {9*32768}, 0", f"s_sub_u32 s{d}, s{d}, s{d+1}", f"s_add_u32 s{d}, s{d}, {CH}"]
    for j in range(3, 9):
        P = r.P if j < 8 else r.LB
        put(j - 1, 9 if j < 8 else 8, one(("vm", cl(r), "rc")))
        ld = [("vm", f"buffer_load_dwordx4 {vr(P+4*h,4)}, v{vXA}, s[{SWS}:{SWS+3}], s{sT0+2} offen offset:{1024*h}{SC}", ("P", j)) for h in range(2)]
        if j < 8: put(j, 0, ccheck(r, j) + nxt(sT0 + 2, 1) + ld)
        else: put(7, 13, ccheck(r, j) + nxt(sT0 + 2, 2) + ld)
        u = [("wv", [("P", j)])]
        for i in range(8): u += [f"v_lshlrev_b32 v{r.PU+2*i}, 16, v{P+i}", f"v_and_b32 v{r.PU+2*i+1}, 0xffff0000, v{P+i}"]
        G.spread(slots, P2 + j * NK + 12, P2 + j * NK + 24, u)

def tail(A, r, opt):
    ow = SC if opt.owt else ""
    def E(ops):
        for o in ops: A.op(o)
    if r.tag == "m":
        E(tick(r, "p1a"))
        A(f"s_mov_b32 s{sT0+2}, {hexf(1.0/KSC)}"); A(f"s_mov_b32 s{sT0+3}, {hexf(-math.log2(math.e))}")
        E(check(r))
        E(pload(r, 0)); E(pload(r, 1))
        E(pre(r))
        A.op(("wv", [("st", 8)]))
        E(tick(r, "p2b"))
        E(pload(r, 2))
        for c in range(3):
            E(scheck(r, c)); E(epi(r, c, ow))
    if opt.stamps:
        E(tick(r, "end"))
        A(f"s_sub_u32 s{sT0}, s65, {G.WS_STAMP}"); A(f"s_lshl_b32 s{sT0}, s{sT0}, 1"); A(f"s_add_u32 s{sT0}, s{sT0}, {G.WS_STAMP + 262144}")
        A(f"v_lshlrev_b32 v14, 2, v{vLANE}")
        A(f"buffer_store_dword v15, v14, s[{SWS}:{SWS+3}], s{sT0} offen")
        open(f"names_{r.tag}.txt", "w").write(" ".join(r.names))
```

```python
import sys, math
from asmlib import *

NAME = "recurrent_scan__ssm_conv_s5__mixer_channel_mlp__prompt"
HDR = open("cdna_kernels/" + NAME + ".s.ref").read().split("; Override launch")[0]

C0 = -2.0 * math.log2(math.e) * math.sqrt(2.0 / math.pi)
C1 = C0 * 0.044715
KSC = -((-C1) ** (1.0 / 3.0))
C0K = C0 / KSC
PLANE = 2048 * 576 * 2
WS_AFF = 16 * PLANE
WS_E = WS_AFF + 256 * 1024
EROW = 1280
WS_FLAG = WS_E + 4 * 16 * EROW
FSTR = 4352
WS_STAMP = WS_FLAG + 128 * FSTR + 4096
WS_F2 = WS_STAMP + 65536 * 16
WS_SIZE = WS_F2 + 128 * 24576
BUFSZ = 73728
LDS_Y = 73728
LDS_B1 = 155648
LDS_ET = 147456
LDS_KT = 156672

sW, sTG, sFG, sMT, sSL = 3, 4, 5, 6, 7
SX, SA, SB, SWS, SM = 8, 12, 16, 20, 24
sT0 = 28
sD1 = 40
sD2 = 50
sROT, sROT2, sCOL, sM0A, sST, sDP, sC0K, sONE, sM0W = 56, 57, 58, 59, 60, 61, 62, 63, 64
sFLG = 39
sLOC, sCF, sCP, sXID, sG = 70, 71, 72, 73, 74
sST2 = 75
sMYF = 63
sPTR = 66
def kp(i): return sPTR + 2 * i

vLANE = 1
vDMA, vDMA2 = 2, 3
vTR = 4
vB1 = 7
vXA = 8
ACC = [16, 32]
ABUF = 48
TMP = 64
HOWN = 72
YB = 112

class Opt:
    stamps = False
    ssm = True
    nost = False
    newmap = 1
    owt = 0
    pf = 1
    ff = 1
    fu = 50
    f7 = 22
    f6 = 23
    forcefb = 0
    cp = 15
    cpos = [8, 20, 36 + 22, 72 + 22, 108 + 22, 144 + 22]

def stamp(A, opt, idx):
    if not opt.stamps: return
    A(f"s_memtime s[100:101]")
    A("s_waitcnt lgkmcnt(0)")
    A.lq = []
    A(f"v_mov_b32 v0, s100")
    A(f"s_memrealtime s[100:101]")
    A.vm(f"buffer_store_dword v0, off, s[{SWS}:{SWS+3}], s65 offset:{4*idx}", "stamp")
    A("s_waitcnt lgkmcnt(0)")
    A(f"v_mov_b32 v0, s100")
    A.vm(f"buffer_store_dword v0, off, s[{SWS}:{SWS+3}], s65 offset:{4*idx+64}", "stamp")

PST = []
def pstamp(A, opt, idx):
    if not opt.stamps: return
    A(f"s_memtime s[100:101]")
    A("s_waitcnt lgkmcnt(0)")
    A.lq = []
    A(f"v_mov_b32 v{56+idx-5}, s100")

def pflush(A, opt, idxs):
    if not opt.stamps: return
    for idx in idxs:
        A.vm(f"buffer_store_dword v{56+idx-5}, off, s[{SWS}:{SWS+3}], s65 offset:{4*idx}", "stamp")

def rstamp(A, opt, idx, srdr=SWS, soff="s65", drain=True):
    if not opt.stamps: return
    if drain: A("s_waitcnt vmcnt(0)")
    A(f"s_memrealtime s[100:101]")
    A("s_waitcnt lgkmcnt(0)")
    A.lq = []
    A(f"v_mov_b32 v0, s100")
    A.vm(f"buffer_store_dword v0, off, s[{srdr}:{srdr+3}], {soff} offset:{4*idx}", "stamp")

def srd(A, d, p, nrec, lower=0):
    if lower:
        A(f"s_sub_u32 s{d}, s{p}, {lower}")
        A(f"s_subb_u32 s{d+1}, s{p+1}, 0")
    else:
        A(f"s_mov_b32 s{d}, s{p}")
        A(f"s_mov_b32 s{d+1}, s{p+1}")
    A(f"s_mov_b32 s{d+2}, {nrec + lower}")
    A(f"s_mov_b32 s{d+3}, 0x20000")

def Rreg(e, c):
    if c < 5: return 216 + (c * 2 + e) * 4
    return 72 + ((c - 5) * 2 + e) * 4

def bf16r(A, d, s):
    A(f"v_cvt_pk_bf16_f32 v{d}, v{s}, v{s}")
    A(f"v_and_b32 v{d}, 0xffff0000, v{d}")

def x_loads(A):
    A(f"v_lshrrev_b32 v8, 3, v{vLANE}")
    A(f"s_lshl_b32 s{sT0}, s{sW}, 4")
    A(f"v_add_u32 v8, s{sT0}, v8")
    A(f"v_mul_u32_u24 v8, 1152, v8")
    A(f"v_and_b32 v9, 7, v{vLANE}")
    A(f"v_lshl_add_u32 v8, v9, 4, v8")
    A(f"s_mul_i32 s{sT0}, s{sMT}, 147456")
    A(f"s_add_u32 s{sT0+1}, s{sT0}, 9216")
    for c in range(9):
        for e in range(2):
            A.vm(f"buffer_load_dwordx4 {vr(Rreg(e,c),4)}, v8, s[{SX}:{SX+3}], s{sT0+e} offen offset:{c*128}", ("x", c, e))

def dma1(A, stage, i):
    ops = []
    if i % 4 == 0:
        ops.append(f"s_add_u32 m0, s{sM0W}, {(stage & 1) * BUFSZ + i * 1024}")
        ops.append("s_nop 0")
    ops.append(("vm", f"buffer_load_dwordx4 v{vDMA2}, s[{SA}:{SA+3}], s{sD1+i} offen offset:{(i % 4) * 1024} lds", ("d1", stage)))
    return ops

def ln_prologue(A, opt, mlp):
    SUM = [16, 17]; SQ = [18, 19]
    for r in SUM + SQ: A(f"v_mov_b32 v{r}, 0")
    for e in range(2):
        d = 10 + e
        A(f"v_lshrrev_b32 v20, 3, v{vLANE}")
        A(f"s_lshl_b32 s{sT0+2}, s{sW}, 4")
        A(f"s_add_u32 s{sT0+2}, s{sT0+2}, {8*e}")
        A(f"v_add_u32 v20, s{sT0+2}, v20")
        if not mlp:
            A(f"v_and_b32 v21, 0x63, v20")
            A(f"v_bfe_u32 v22, v20, 2, 2")
            A(f"v_lshl_or_b32 v21, v22, 3, v21")
            A(f"v_bfe_u32 v22, v20, 4, 1")
            A(f"v_lshl_or_b32 v20, v22, 2, v21")
        A(f"v_bfe_u32 v21, v20, 1, 3")
        A(f"v_and_b32 v22, 7, v{vLANE}")
        A(f"v_xor_b32 v21, v21, v22")
        A(f"v_lshlrev_b32 v21, 4, v21")
        A(f"v_lshl_add_u32 v{d}, v20, 7, v21")
        A(f"v_add_u32 v{d}, {LDS_Y}, v{d}")
    A(f"v_and_b32 v20, 31, v{vLANE}")
    A(f"v_bfe_u32 v21, v20, 1, 3")
    A(f"v_lshrrev_b32 v22, 5, v{vLANE}")
    A(f"v_xor_b32 v21, v21, v22")
    A(f"v_lshlrev_b32 v21, 4, v21")
    A(f"s_lshl_b32 s{sT0+2}, s{sTG}, 5")
    A(f"v_add_u32 v20, s{sT0+2}, v20")
    A(f"v_lshl_add_u32 v12, v20, 7, v21")
    A(f"v_add_u32 v12, {LDS_Y}, v12")
    for i in range(1, 4): A(f"v_xor_b32 v{12+i}, {32*i}, v12")
    pstamp(A, opt, 10)
    for c in range(9):
        A.wait(vm=[("x", c, 1)])
        if c == 0: pstamp(A, opt, 11)
        if c == 8: pstamp(A, opt, 12)
        for j in range(4):
            for e in range(2):
                r = Rreg(e, c) + j
                A(f"v_dot2c_f32_bf16 v{SUM[e]}, s{sONE}, v{r}")
                A(f"v_dot2c_f32_bf16 v{SQ[e]}, v{r}, v{r}")
    A("s_nop 2")
    for mode in ("quad_perm:[1,0,3,2]", "quad_perm:[2,3,0,1]", "row_half_mirror"):
        for r in SUM + SQ:
            A(f"v_add_f32_dpp v{r}, v{r}, v{r} {mode} row_mask:0xf bank_mask:0xf")
    inv = hexf(1.0 / 576.0); eps = hexf(1e-5)
    def both(f):
        for e in range(2): A(f(e))
    both(lambda e: f"v_mul_f32 v{20+e}, {inv}, v{SUM[e]}")
    both(lambda e: f"v_mul_f32 v{22+e}, {inv}, v{SQ[e]}")
    both(lambda e: f"v_fma_f32 v{22+e}, -v{20+e}, v{20+e}, v{22+e}")
    both(lambda e: f"v_max_f32 v{22+e}, 0, v{22+e}")
    def rnd(d, s):
        both(lambda e: f"v_cvt_pk_bf16_f32 v{d+e}, v{s+e}, v{s+e}")
        both(lambda e: f"v_and_b32 v{d+e}, 0xffff0000, v{d+e}")
    rnd(24, 20)
    rnd(26, 22)
    both(lambda e: f"v_add_f32 v{26+e}, {eps}, v{26+e}")
    rnd(26, 26)
    both(lambda e: f"v_sqrt_f32 v{26+e}, v{26+e}")
    rnd(26, 26)
    both(lambda e: f"v_rcp_f32 v{28+e}, v{26+e}")
    A(f"v_lshrrev_b32 v34, 3, v{vLANE}")
    A(f"s_lshl_b32 s{sT0+3}, s{sW}, 4")
    A(f"v_add_u32 v34, s{sT0+3}, v34")
    A(f"v_lshlrev_b32 v34, 3, v34")
    A(f"v_mov_b32 v36, v24"); A(f"v_mov_b32 v38, v25"); A(f"v_mov_b32 v37, v28"); A(f"v_mov_b32 v39, v29")
    A(f"s_lshl_b32 s{sT0+2}, s2, 10"); A(f"s_add_u32 s{sT0+2}, s{sT0+2}, {WS_AFF}")
    A.vm(f"buffer_store_dwordx2 v[36:37], v34, s[{SWS}:{SWS+3}], s{sT0+2} offen", "aff")
    A.vm(f"buffer_store_dwordx2 v[38:39], v34, s[{SWS}:{SWS+3}], s{sT0+2} offen offset:64", "aff")
    A("s_nop 1")
    if mlp:
        both(lambda e: f"v_sub_f32 v{30+e}, v{20+e}, v{24+e}")
        both(lambda e: f"v_mul_f32 v{30+e}, v{30+e}, v{28+e}")
        rnd(30, 30)
        both(lambda e: f"v_mul_f32 v{32+e}, v{28+e}, v{28+e}")
        both(lambda e: f"v_mul_f32 v{32+e}, v{32+e}, v{22+e}")
        rnd(32, 32)
        both(lambda e: f"v_add_f32 v{32+e}, {eps}, v{32+e}")
        rnd(32, 32)
        both(lambda e: f"v_sqrt_f32 v{32+e}, v{32+e}")
        rnd(32, 32)
        both(lambda e: f"v_rcp_f32 v{32+e}, v{32+e}")
        both(lambda e: f"v_fma_f32 v{24+e}, v{30+e}, v{26+e}, v{24+e}")
        both(lambda e: f"v_mul_f32 v{28+e}, v{28+e}, v{32+e}")
        both(lambda e: f"v_mul_f32 v{28+e}, {hexf(KSC)}, v{28+e}")
    rnd(34, 28)
    both(lambda e: f"v_lshrrev_b32 v{36+e}, 16, v{34+e}")
    both(lambda e: f"v_mul_f32 v{38+e}, v{34+e}, v{24+e}")
    both(lambda e: f"v_sub_f32 v{38+e}, 0, v{38+e}")
    def norm(e, c):
        b = Rreg(e, c)
        T = 40
        for j in range(4):
            A(f"v_dot2_f32_bf16 v{T+2*j}, v{b+j}, v{36+e}, v{38+e}")
            A(f"v_dot2_f32_bf16 v{T+2*j+1}, v{b+j}, v{34+e}, v{38+e}")
        A("s_nop 0")
        for j in range(4):
            if j == 3: A("s_nop 0")
            A(f"v_cvt_pk_bf16_f32 v{b+j}, v{T+2*j}, v{T+2*j+1}")
    def ywrite(e, c, slot):
        if slot < 4:
            A.lds(f"ds_write_b128 v{10+e}, {vr(Rreg(e,c),4)} offset:{slot*16384}", "yw")
        else:
            A(f"v_add_u32 v48, 0x10000, v{10+e}")
            A.lds(f"ds_write_b128 v48, {vr(Rreg(e,c),4)}", "yw")
    def yread(s, slot):
        if slot < 4:
            A.lds(f"ds_read_b128 {vr(YB+4*s,4)}, v{12+(s&3)} offset:{slot*16384}", ("y", s))
        else:
            A(f"v_add_u32 v48, 0x10000, v{12+(s&3)}")
            A.lds(f"ds_read_b128 {vr(YB+4*s,4)}, v48", ("y", s))
    stamp(A, opt, 1)
    for c in range(5):
        for e in range(2):
            norm(e, c); ywrite(e, c, c)
    A.wait_all(); A("s_barrier")
    for s in range(20): yread(s, s >> 2)
    for c in range(5, 9):
        for e in range(2): norm(e, c)
    A.wait_all(); A("s_barrier")
    for c in range(5, 9):
        for e in range(2): ywrite(e, c, c - 5)
    A.wait_all(); A("s_barrier")
    for s in range(20, 36): yread(s, (s >> 2) - 5)
    A.wait_all(); A("s_barrier")
    stamp(A, opt, 2)
    pflush(A, opt, [8, 9, 10, 11, 12])

def cost(o):
    s = o if isinstance(o, str) else o[1]
    if isinstance(s, str) and s.startswith(("v_exp", "v_rcp")): return 8
    if isinstance(s, str) and s.startswith(("v_cvt", "v_dot")) or "dpp" in str(s): return 4
    return 3

def spread(slots, lo, hi, ops, key="valu"):
    tot = sum(cost(o) for o in ops)
    acc = 0
    glue = False
    for o in ops:
        if not glue: j = lo + int(acc * (hi - lo) / tot)
        glue = isinstance(o, str) and o.startswith(("s_cmp", "v_cmp"))
        slots[j].setdefault(key, []).append(o)
        acc += cost(o)

def gelu_ops(acc, dst, grp=4):
    ops = []
    for g0 in range(0, 16, grp):
        es = range(g0, g0 + grp)
        T = lambda e: TMP + (e % 8)
        for e in es: ops.append(f"v_fma_f32 v{T(e)}, v{acc+e}, v{acc+e}, s{sC0K}")
        for e in es: ops.append(f"v_mul_f32 v{T(e)}, v{T(e)}, v{acc+e}")
        for e in es: ops.append(f"v_exp_f32 v{T(e)}, v{T(e)}")
        for e in es: ops.append(f"v_add_f32 v{T(e)}, 1.0, v{T(e)}")
        for e in es: ops.append(f"v_rcp_f32 v{T(e)}, v{T(e)}")
        for e in es: ops.append(f"v_mul_f32 v{T(e)}, v{T(e)}, v{acc+e}")
        for e in es[::2]: ops.append(f"v_cvt_pk_bf16_f32 v{dst + e//2}, v{T(e)}, v{T(e+1)}")
    return ops

def emit_slots(A, slots):
    for s in slots:
        for k in ("pre",):
            for o in s.get(k, []): A.op(o)
        if s.get("mfma"): A(s["mfma"])
        for k in ("bar", "rd", "dma", "x", "valu"):
            for o in s.get(k, []): A.op(o)

WT = " sc0 sc1"
def store_ops(acc, SREG, tag):
    ops = [f"v_cvt_pk_bf16_f32 v{SREG+i}, v{acc+2*i}, v{acc+2*i+1}" for i in range(8)]
    ops.insert(4, ("vm", f"buffer_store_dwordx4 {vr(SREG,4)}, v{vXA}, s[{SWS}:{SWS+3}], s{sST} offen{WT}", tag))
    ops.append(("vm", f"buffer_store_dwordx4 {vr(SREG+4,4)}, v{vXA}, s[{SWS}:{SWS+3}], s{sST} offen offset:1024{WT}", tag))
    return ops

def announce(lbl, val=1):
    return [f"s_cmp_lg_u32 s{sW}, 0", f"s_cbranch_scc1 {lbl}",
            f"s_lshl_b32 s{sT0}, s{sMT}, 4", f"s_add_u32 s{sT0}, s{sT0}, s{sSL}",
            f"v_mov_b32 v0, {val}", "s_mov_b64 exec, 1",
            f"buffer_store_byte v0, off, s[{SM}:{SM+3}], s{sT0} sc0 sc1", "s_mov_b64 exec, -1", f"{lbl}:"]

def clear_flag(A, mlp=False):
    A(f"s_lshl_b32 s{sT0}, s{sMT}, 3"); A(f"s_add_u32 s{sT0}, s{sT0}, s{sW}")
    A(f"s_mul_i32 s{sFLG}, s{sT0}, {FSTR}"); A(f"s_add_u32 s{sFLG}, s{sFLG}, {WS_FLAG}")
    if mlp: return
    A(f"s_add_u32 s{sMYF}, s{sSL}, s{sFLG}")
    A(f"v_mov_b32 v9, 0")
    A("s_mov_b64 exec, 1")
    A.vm(f"buffer_store_byte v9, off, s[{SWS}:{SWS+3}], s{sMYF} sc0 sc1", "clr")
    A("s_mov_b64 exec, -1")

def check_all(A, lbl, vt, pat="0x01010101"):
    A(f"v_lshlrev_b32 v{vt}, 2, v{vLANE}")
    A(f"s_movk_i32 s{sT0}, 0x4000")
    A(f"{lbl}:")
    A(f"buffer_load_dword v{vt+1}, v{vt}, s[{SM}:{SM+3}], 0 offen sc0 sc1")
    A(f"s_sub_u32 s{sT0}, s{sT0}, 1")
    A(f"s_cbranch_scc1 {lbl}_d")
    A("s_waitcnt vmcnt(0)")
    A(f"v_and_b32 v{vt+1}, {pat}, v{vt+1}")
    A(f"v_cmp_ne_u32 vcc, {pat}, v{vt+1}")
    A(f"s_cbranch_vccnz {lbl}")
    A(f"{lbl}_d:")
    A("s_waitcnt vmcnt(0)")

def mlp_path(A, opt):
    D = 3
    srd(A, SA, kp(10), 5308416)
    srd(A, SB, kp(12), 5308416, lower=4096)
    srd(A, SM, kp(11), 9216)
    A(f"s_mul_i32 s{sT0+2}, s{sMT}, 43"); A(f"s_lshr_b32 s{sT0+2}, s{sT0+2}, 8")
    A(f"s_mul_i32 s{sT0+2}, s{sT0+2}, 6"); A(f"s_sub_u32 s{sROT}, s{sMT}, s{sT0+2}")
    A(f"s_mul_i32 s{sG}, s{sSL}, 11"); A(f"s_lshr_b32 s{sG}, s{sG}, 5")
    A(f"s_mul_i32 s{sT0+2}, s{sG}, 3"); A(f"s_sub_u32 s{sCF}, s{sSL}, s{sT0+2}")
    A(f"s_mul_i32 s{sT0+2}, s{sCF}, 3"); A(f"s_add_u32 s{sROT2}, s{sMT}, 9"); A(f"s_sub_u32 s{sROT2}, s{sROT2}, s{sT0+2}")
    for _ in range(2):
        A(f"s_cmp_ge_u32 s{sROT2}, 9"); A(f"s_cselect_b32 s{sT0+2}, 9, 0"); A(f"s_sub_u32 s{sROT2}, s{sROT2}, s{sT0+2}")
    A(f"s_sub_u32 s{sCP}, s{sCF}, 1"); A(f"s_cselect_b32 s{sCP}, 2, s{sCP}")
    A(f"s_getreg_b32 s{sXID}, hwreg(HW_REG_XCC_ID, 0, 4)"); A(f"s_lshl_b32 s{sXID}, s{sXID}, 8")
    if opt.forcefb: A(f"s_lshl_b32 s{sXID}, s{sCF}, 8")
    for i in range(9): A(f"s_mov_b32 s{sD1+i}, {i*73728 - (i%4)*1024}")
    A(f"s_mul_i32 s{sM0W}, s{sW}, 9216")
    A(f"v_bfe_u32 v9, v{vLANE}, 2, 3")
    A(f"v_lshrrev_b32 v10, 5, v{vLANE}")
    A(f"v_and_b32 v11, 3, v{vLANE}")
    A(f"v_lshlrev_b32 v11, 4, v11")
    A(f"v_lshl_add_u32 v10, v10, 6, v11")
    A(f"v_mul_u32_u24 v{vDMA}, 9216, v9")
    A(f"v_add_u32 v{vDMA}, v{vDMA}, v10")
    A(f"s_mul_i32 s{sT0+2}, s{sW}, {72*9216}")
    A(f"s_mul_i32 s{sT0+3}, s{sSL}, 768")
    A(f"s_add_u32 s{sT0+2}, s{sT0+2}, s{sT0+3}")
    A(f"v_add_u32 v{vDMA}, s{sT0+2}, v{vDMA}")
    A(f"s_lshl_b32 s{sCOL}, s{sROT}, 7")
    A(f"v_add_u32 v{vDMA2}, s{sCOL}, v{vDMA}")
    for i in range(9):
        for o in dma1(A, 0, i): A.op(o)
    def nextcol():
        return [f"s_add_u32 s{sCOL}, s{sCOL}, 128", f"s_cmp_ge_u32 s{sCOL}, 768", f"s_cselect_b32 s{sCOL}, 0, s{sCOL}",
                f"v_add_u32 v{vDMA2}, s{sCOL}, v{vDMA}"]
    A(f"v_lshlrev_b32 v9, 1, v0")
    A(f"s_mul_i32 s{sT0+2}, s{sSL}, 768")
    A.vm(f"buffer_load_ushort v49, v9, s[{SM}:{SM+3}], s{sT0+2} offen", "b1")
    A(f"v_lshrrev_b32 v9, 5, v{vLANE}"); A("v_lshlrev_b32 v9, 10, v9")
    A(f"v_bfe_u32 v10, v{vLANE}, 2, 2"); A("v_lshl_add_u32 v9, v10, 6, v9")
    A(f"v_bfe_u32 v10, v{vLANE}, 4, 1"); A("v_lshl_add_u32 v9, v10, 5, v9")
    A(f"v_and_b32 v10, 3, v{vLANE}"); A("v_lshl_add_u32 v9, v10, 3, v9")
    A(f"s_lshl_b32 s{sT0+2}, s{sFG}, 9")
    A(f"v_add_u32 v{vTR}, s{sT0+2}, v9")
    A(f"v_add_u32 v{vTR+1}, 0x10000, v{vTR}")
    A(f"v_add_u32 v{vTR+2}, 0x20000, v{vTR}")
    A(f"v_lshrrev_b32 v9, 5, v{vLANE}")
    A(f"s_lshl_b32 s{sT0+2}, s{sFG}, 7"); A(f"s_add_u32 s{sT0+2}, s{sT0+2}, {LDS_B1}")
    A(f"v_lshl_add_u32 v{vB1}, v9, 4, s{sT0+2}")
    A(f"s_mov_b32 s{sC0K}, {hexf(C0K)}")
    A(f"s_mul_i32 s{sT0+2}, s{sW}, 6")
    A(f"s_mul_i32 s{sT0+6}, s{sSL}, {384*1152}")
    for i in range(6):
        A(f"s_add_u32 s{sT0+3}, s{sT0+2}, {i}")
        A(f"s_lshr_b32 s{sT0+4}, s{sT0+3}, 3")
        A(f"s_add_u32 s{sT0+4}, s{sT0+4}, s{sROT}")
        A(f"s_cmp_ge_u32 s{sT0+4}, 6"); A(f"s_cselect_b32 s{sT0+5}, 6, 0"); A(f"s_sub_u32 s{sT0+4}, s{sT0+4}, s{sT0+5}")
        A(f"s_lshl_b32 s{sT0+4}, s{sT0+4}, 3")
        A(f"s_and_b32 s{sT0+3}, s{sT0+3}, 7")
        A(f"s_add_u32 s{sT0+4}, s{sT0+4}, s{sT0+3}")
        A(f"s_mul_i32 s{sT0+4}, s{sT0+4}, 9216")
        A(f"s_add_u32 s{sT0+4}, s{sT0+4}, s{sT0+6}")
        A(f"s_add_u32 s{sD2+i}, s{sT0+4}, {4096 - (i%4)*1024}")
    A(f"s_sub_u32 s{sT0+2}, s{sW}, s{sROT}")
    A(f"s_cmp_lt_i32 s{sT0+2}, 0"); A(f"s_cselect_b32 s{sT0+3}, 6, 0"); A(f"s_add_u32 s{sT0+2}, s{sT0+2}, s{sT0+3}")
    A(f"s_lshl_b32 s{sT0+2}, s{sT0+2}, 8"); A(f"s_add_u32 s{sT0+2}, s{sT0+2}, {LDS_B1}")
    A(f"s_cmp_ge_u32 s{sW}, 6"); A(f"s_cselect_b32 s{sT0+2}, {LDS_B1 + 2048}, s{sT0+2}")
    A(f"v_lshl_add_u32 v50, v{vLANE}, 2, s{sT0+2}")

    ln_prologue_pre = len(A.L)
    ln_prologue(A, opt, True)
    A.wait(vm=["b1"])
    A("v_lshlrev_b32 v49, 16, v49")
    A(f"v_mul_f32 v49, {hexf(KSC)}, v49")
    A.lds("ds_write_b32 v50, v49", "b1w")
    srd(A, SM, kp(15), 256)
    clear_flag(A, True)
    A(f"s_lshl_b32 s{sT0}, s{sG}, 7"); A(f"s_add_u32 s{sT0}, s{sT0}, 128"); A(f"s_add_u32 s{sLOC}, s{sT0}, s{sFLG}")
    A(f"s_lshl_b32 s{sCF}, s{sCF}, 2"); A(f"s_add_u32 s{sCF}, s{sCF}, s{sLOC}")
    A(f"s_lshl_b32 s{sCP}, s{sCP}, 2"); A(f"s_add_u32 s{sCP}, s{sCP}, s{sLOC}")
    A(f"v_mov_b32 v9, s{sXID}"); A("s_mov_b64 exec, 1")
    A.vm(f"buffer_store_dword v9, off, s[{SWS}:{SWS+3}], s{sCF} sc0 sc1", "clr")
    A("s_mov_b64 exec, -1")
    for o in nextcol(): A.op(o)
    for i in range(9):
        for o in dma1(A, 1, i): A.op(o)
    A.wait(lds=["b1w"], vm=[("d1", 0)])
    A("s_barrier")

    HP = YB
    H5 = YB + 48
    SREG = YB + 56
    vP2 = YB + 64
    vHX = YB + 70
    def hown(t): return HOWN + 8 * t if t < 5 else H5
    korder = [("o", t, kk) for t in range(5) for kk in range(2)] + [("p", t, kk) for t in range(4) for kk in range(2)] + \
             [("o", 5, 0), ("o", 5, 1)] + [("p", t, kk) for t in (4, 5) for kk in range(2)]
    units = []
    for s in range(6):
        for k in range(36): units.append((1, s, k))
    for j in range(9):
        for k in range(24): units.append((2, j, k))
    NU = len(units)
    def rd(u):
        ph, s, k = units[u]
        b = ABUF + 4 * (u % 4)
        if ph == 1:
            pos = (s & 1) * BUFSZ + k * 2048
            return [("lds", f"ds_read_b64_tr_b16 {vr(b+2*r,2)}, v{vTR + ((pos + r*256) >> 16)} offset:{(pos + r*256) & 0xffff}", ("a", u)) for r in range(2)]
        who, t, kk = korder[k]
        areg = vP2 + (s % 3) * 2 + (0 if who == "o" else 1)
        return [("lds", f"ds_read_b64_tr_b16 {vr(b+2*r,2)}, v{areg} offset:{(8*t + 2*kk + r) * 1024}", ("a", u)) for r in range(2)]
    def b1rd(s):
        return [("lds", f"ds_read_b128 {vr(ACC[s&1] + 4*j, 4)}, v{vB1} offset:{s*256 + j*32}", ("b1", s)) for j in range(4)]
    slots = []
    for u, (ph, s, k) in enumerate(units):
        b = ABUF + 4 * (u % 4)
        acc = ACC[s & 1]
        sl = {}
        w = [("a", u)]
        if ph == 1:
            if k == 0: w.append(("b1", s))
            sl["mfma"] = f"v_mfma_f32_32x32x16_bf16 {vr(acc,16)}, {vr(b,4)}, {vr(YB+4*k,4)}, {vr(acc,16)}"
        else:
            who, t, kk = korder[k]
            hb = (hown(t) if who == "o" else HP + 8 * t) + 4 * kk
            if who == "p": w.append(("hx", t))
            sl["mfma"] = f"v_mfma_f32_32x32x16_bf16 {vr(acc,16)}, {vr(b,4)}, {vr(hb,4)}, {'0' if k == 0 else vr(acc,16)}"
        sl["pre"] = [("wl", w)]
        slots.append(sl)
    for u in range(NU - D):
        ph, s, k = units[u + D]
        if k == 0:
            slots[u]["bar"] = [("wv", [("d1", s) if ph == 1 else ("d2", s)]), "s_barrier"]
        slots[u]["rd"] = rd(u + D)
    P2 = 216
    slots[36 - D]["bar"] += announce("L_ann_m")
    for s in range(2, 6):
        base = (s - 1) * 36 - 2
        slots[base].setdefault("dma", []).extend(nextcol())
        for i in range(9): slots[base + 1 + 2 * i].setdefault("dma", []).extend(dma1(A, s, i))
    def dma2(j, i):
        ops = []
        if i % 4 == 0:
            ops += [f"s_add_u32 m0, s{sM0A}, {(j % 3) * 49152 + i * 1024}", "s_nop 0"]
        ops.append(("vm", f"buffer_load_dwordx4 v{vDMA2}, s[{SB}:{SB+3}], s{sD2+i} offen offset:{(i%4)*1024} lds", ("d2", j)))
        return ops
    def nextdp(first):
        if first:
            return [f"s_mul_i32 s{sM0A}, s{sW}, 6144",
                    f"v_bfe_u32 v9, v{vLANE}, 2, 3", f"v_lshrrev_b32 v10, 5, v{vLANE}", f"v_and_b32 v11, 3, v{vLANE}",
                    "v_lshlrev_b32 v11, 4, v11", "v_lshl_add_u32 v10, v10, 6, v11",
                    f"v_mul_u32_u24 v{vDMA}, 1152, v9", f"v_add_u32 v{vDMA}, v{vDMA}, v10",
                    f"s_lshl_b32 s{sCOL}, s{sROT2}, 7", f"v_add_u32 v{vDMA2}, s{sCOL}, v{vDMA}"]
        return [f"s_add_u32 s{sCOL}, s{sCOL}, 128", f"s_cmp_ge_u32 s{sCOL}, 1152", f"s_cselect_b32 s{sCOL}, 0, s{sCOL}",
                f"v_add_u32 v{vDMA2}, s{sCOL}, v{vDMA}"]
    d2base = {0: 5 * 36 - 2, 1: P2 - 2, 2: P2 + 24 - 2, 3: P2 + 24 + 10}
    for j in range(4, 9): d2base[j] = P2 + (j - 2) * 24 + 9
    for j in range(9):
        base = d2base[j]
        slots[base].setdefault("dma", []).extend(nextdp(j == 0))
        for i in range(6): slots[base + 1 + (2 if j < 4 else 1) * i].setdefault("dma", []).extend(dma2(j, i))
    for s in range(1, 6):
        spread(slots, s * 36 + 2, s * 36 + 31, gelu_ops(ACC[(s - 1) & 1], hown(s - 1)))
    for s in range(1, 6):
        slots[s * 36 - 5].setdefault("x", []).extend(b1rd(s))
    spread(slots, P2 + 2, P2 + 15, gelu_ops(ACC[1], H5))
    S5 = 5 * 36
    setup = [f"v_lshlrev_b32 v9, 4, v{vLANE}",
             f"s_lshl_b32 s{sT0+2}, s{sW}, 11", f"s_add_u32 s{sT0+2}, s{sT0+2}, 49152",
             f"v_add_u32 v{vHX}, s{sT0+2}, v9", f"v_add_u32 v{vHX+1}, {147456-49152}, v{vHX}",
             f"v_xor_b32 v{vHX+2}, 0x2000, v{vHX}", f"v_add_u32 v{vHX+3}, {147456-49152}, v{vHX+2}",
             f"v_lshrrev_b32 v9, 5, v{vLANE}", "v_lshlrev_b32 v9, 8, v9",
             f"v_bfe_u32 v10, v{vLANE}, 2, 2", "v_lshl_add_u32 v9, v10, 6, v9",
             f"v_and_b32 v10, 1, v{vLANE}", "v_lshl_add_u32 v9, v10, 5, v9",
             f"v_bfe_u32 v10, v{vLANE}, 1, 1", "v_lshl_add_u32 v9, v10, 3, v9",
             f"v_bfe_u32 v10, v{vLANE}, 4, 1", "v_lshl_add_u32 v9, v10, 4, v9",
             f"s_mul_i32 s{sT0+2}, s{sFG}, {4096+512}",
             f"v_add_u32 v{vP2}, s{sT0+2}, v9", f"v_xor_b32 v{vP2+1}, 0x1000, v{vP2}",
             f"v_add_u32 v{vP2+2}, 49152, v{vP2}", f"v_add_u32 v{vP2+3}, 49152, v{vP2+1}",
             f"v_add_u32 v{vP2+4}, 98304, v{vP2}", f"v_add_u32 v{vP2+5}, 98304, v{vP2+1}",
             f"v_and_b32 v9, 31, v{vLANE}", f"v_lshrrev_b32 v10, 5, v{vLANE}", "v_lshlrev_b32 v9, 5, v9",
             f"v_lshl_add_u32 v{vXA}, v10, 4, v9",
             f"s_lshl_b32 s{sT0+2}, s{sMT}, 2", f"s_add_u32 s{sT0+2}, s{sT0+2}, s{sTG}",
             f"s_mul_i32 s{sT0+2}, s{sT0+2}, {18*16384}", f"s_mul_i32 s{sT0+3}, s{sG}, 2048",
             f"s_add_u32 s{sT0+2}, s{sT0+2}, s{sT0+3}", f"s_lshl_b32 s{sT0+3}, s{sFG}, 14",
             f"s_add_u32 s{sT0+2}, s{sT0+2}, s{sT0+3}", f"v_add_u32 v{vXA}, s{sT0+2}, v{vXA}",
             f"s_lshl_b32 s{sST}, s{sROT2}, 15", f"s_add_u32 s{sST2}, s{sST}, {8*PLANE}"]
    spread(slots, S5 + 19, S5 + 23, setup[:7], "x")
    spread(slots, S5 + 25, S5 + 32, setup[7:], "x")
    def hw(t):
        a, off = (vHX, t * 16384) if t < 3 else ((vHX + 1, 0) if t == 3 else (vHX, 49152 + (t - 4) * 16384))
        if off + 1024 > 65535: return None
        return [("lds", f"ds_write_b128 v{a}, {vr(hown(t)+4*kk,4)} offset:{off + kk*1024}", ("hw", t)) for kk in range(2)]
    def hr(t):
        a, off = (vHX + 2, t * 16384) if t < 3 else ((vHX + 3, 0) if t == 3 else (vHX + 2, 49152 + (t - 4) * 16384))
        return [("lds", f"ds_read_b128 {vr(HP+8*t+4*kk,4)}, v{a} offset:{off + kk*1024}", ("hx", t)) for kk in range(2)]
    slots[S5 + 22].setdefault("bar", []).append("s_barrier")
    for t in range(4): slots[S5 + 23 + t].setdefault("x", []).extend(hw(t))
    slots[S5 + 29].setdefault("bar", []).extend([("wl", [("hw", 3)]), "s_barrier"])
    for t in range(4): slots[S5 + 29 + t].setdefault("x", []).extend(hr(t))
    slots[S5 + 33]["bar"].insert(0, ("wl", [("hx", 3)]))
    slots[P2 + 1].setdefault("x", []).extend(hw(4))
    slots[P2 + 2].setdefault("x", []).extend([f"v_add_u32 v{vHX+1}, 0x10000, v{vHX}", f"v_add_u32 v{vHX+3}, 0x10000, v{vHX+2}"])
    slots[P2 + 15].setdefault("x", []).extend(
        [("lds", f"ds_write_b128 v{vHX+1}, {vr(H5+4*kk,4)} offset:{kk*1024}", ("hw", 5)) for kk in range(2)])
    slots[P2 + 17].setdefault("bar", []).extend([("wl", [("hw", 5)]), "s_barrier"])
    slots[P2 + 17].setdefault("x", []).extend(hr(4) +
        [("lds", f"ds_read_b128 {vr(HP+40+4*kk,4)}, v{vHX+3} offset:{kk*1024}", ("hx", 5)) for kk in range(2)])
    slots[P2 + 21]["bar"].insert(0, ("wl", [("hx", 5)]))
    import red
    rr = red.R("m")
    nextst = [f"s_add_u32 s{sST}, s{sST}, 32768", f"s_cmp_ge_u32 s{sST}, {9*32768}", f"s_cselect_b32 s{sST}, 0, s{sST}", f"s_add_u32 s{sST2}, s{sST}, {8*PLANE}"]
    for j in range(1, 9):
        so = red.store_ops(rr, j - 1, ACC[(j - 1) & 1], SREG)
        if j == 7:
            late = [o for o in so if not isinstance(o, str)]
            so = [o for o in so if isinstance(o, str)]
            slots[P2 + j * 24 + 14].setdefault("valu", []).append(late[0])
            slots[P2 + j * 24 + 15].setdefault("valu", []).extend([late[1]] + nextst)
            spread(slots, P2 + j * 24 + 2, P2 + j * 24 + 9, so)
        else:
            spread(slots, P2 + j * 24 + 2, P2 + j * 24 + (6 if j < 4 else 9), so + nextst)
    red.plan(rr, slots, P2, 24, opt)
    slots[4 * 36 + 20].setdefault("dma", []).extend(red.one(("vm", f"buffer_load_dwordx4 v[12:15], off, s[{SWS}:{SWS+3}], s{sLOC} sc0 sc1", "xid")))
    slots[5 * 36 + 12].setdefault("x", []).extend([("wv", ["xid"]), "v_xor_b32 v13, v12, v13", "v_xor_b32 v14, v12, v14", "v_or_b32 v13, v13, v14",
        "s_nop 0", f"v_readfirstlane_b32 s{sLOC}, v13", f"s_and_b32 s{sLOC}, s{sLOC}, 0xf00"])
    if opt.pf:
        pf = [f"s_and_b32 s{sT0}, s{sMT}, 7", f"s_lshl_b32 s{sT0}, s{sT0}, 3", f"s_add_u32 s{sT0}, s{sT0}, s{sW}",
              f"s_mul_i32 s{sT0}, s{sT0}, {54*128}", f"s_mul_i32 s{sT0+1}, s{sSL}, {384*1152}", f"s_add_u32 s{sT0}, s{sT0}, s{sT0+1}",
              f"s_add_u32 s{sT0}, s{sT0}, 4096", f"v_lshlrev_b32 v14, 6, v{vLANE}",
              ("vm", f"buffer_load_dword v15, v14, s[{SB}:{SB+3}], s{sT0} offen", "pf")]
        slots[2 * 36 + 18].setdefault("dma", []).extend(pf)
        pf[-3] = f"s_add_u32 s{sT0}, s{sT0}, 8192"
        slots[3 * 36 + 18].setdefault("dma", []).extend(pf)
    slots[3 * 36 - 2]["dma"] = [f"s_cmp_lg_u32 s{sW}, 0", "s_cbranch_scc1 L_hs0", f"v_lshlrev_b32 v12, 2, v{vLANE}",
        f"buffer_load_dword v13, v12, s[{SM}:{SM+3}], 0 offen sc0 sc1", "L_hs0:"] + slots[3 * 36 - 2]["dma"]
    B = Asm(); check_all(B, "L_hs2", 12)
    slots[4 * 36 - D]["bar"][1:1] = [f"s_cmp_lg_u32 s{sW}, 0", "s_cbranch_scc1 L_hs1",
        "v_and_b32 v13, 0x01010101, v13", "v_cmp_ne_u32 vcc, 0x01010101, v13", "s_cbranch_vccz L_hs1"] + B.L + ["L_hs1:"]
    cs = [f"v_and_b32 v104, 31, v{vLANE}", f"v_lshrrev_b32 v105, 5, v{vLANE}", "v_lshlrev_b32 v104, 5, v104", "v_lshl_add_u32 v108, v105, 4, v104",
          f"s_lshl_b32 s{sT0+2}, s{sMT}, 2", f"s_add_u32 s{sT0+2}, s{sT0+2}, s{sTG}",
          f"s_mul_i32 s{sT0+2}, s{sT0+2}, {18*16384}", f"s_mul_i32 s{sT0+3}, s{sG}, 2048",
          f"s_add_u32 s{sT0+2}, s{sT0+2}, s{sT0+3}", f"s_lshl_b32 s{sT0+3}, s{sFG}, 14",
          f"s_add_u32 s{sT0+2}, s{sT0+2}, s{sT0+3}", f"v_add_u32 v108, s{sT0+2}, v108"] + [f"v_mov_b32 v{104+i}, -1" for i in range(4)]
    spread(slots, 1, 6, cs, "x")
    for i, pos in enumerate(opt.cpos):
        slots[pos].setdefault("dma", []).extend([f"s_add_u32 s{sT0+8}, s{sROT2}, {6 + i//2}", f"s_cmp_ge_u32 s{sT0+8}, 9", f"s_cselect_b32 s{sT0+9}, 9, 0",
            f"s_sub_u32 s{sT0+8}, s{sT0+8}, s{sT0+9}", f"s_lshl_b32 s{sT0+8}, s{sT0+8}, 15",
            ("vm", f"buffer_store_dwordx4 v[104:107], v108, s[{SWS}:{SWS+3}], s{sT0+8} offen offset:{(i&1)*1024} sc0 sc1", "clr2")])
    slots[S5 + 33]["bar"] += announce("L_ann_m2", 3)
    q = P2 + 4 * 24 + 9
    B = Asm(); srd(B, SM, kp(15), 256)
    slots[q - 1].setdefault("x", []).extend(B.L)
    slots[q]["dma"] = [f"s_cmp_lg_u32 s{sW}, 0", "s_cbranch_scc1 L_hs3", f"v_lshlrev_b32 v12, 2, v{vLANE}",
        f"buffer_load_dword v13, v12, s[{SM}:{SM+3}], 0 offen sc0 sc1", "L_hs3:"] + slots[q]["dma"]
    B = Asm(); check_all(B, "L_hs5", 12, "0x02020202")
    slots[P2 + 6 * 24 - D]["bar"][1:1] = [f"s_cmp_lg_u32 s{sW}, 0", "s_cbranch_scc1 L_hs4",
        "v_and_b32 v13, 0x02020202, v13", "v_cmp_ne_u32 vcc, 0x02020202, v13", "s_cbranch_vccz L_hs4"] + B.L + ["L_hs4:"]
    for o in b1rd(0): A.op(o)
    for u in range(D):
        for o in rd(u): A.op(o)
    emit_slots(A, slots[:P2])
    stamp(A, opt, 3)
    emit_slots(A, slots[P2:])
    A("s_nop 7"); A("s_nop 3")
    for o in red.store_ops(rr, 8, ACC[0], SREG): A.op(o)
    stamp(A, opt, 4)
    red.tail(A, rr, opt)
    rstamp(A, opt, 14)
    A("s_endpgm")

def main_kernel(A, opt):
    K = NAME + "_kernel"
    A(f".globl {K}"); A(".p2align 8"); A(f".type {K},@function"); A(f"{K}:")
    A("s_cmp_ge_u32 s2, 256")
    A("s_cbranch_scc1 L_exit")
    A(f"s_load_dwordx16 s[{68}:{83}], s[0:1], 0")
    A(f"s_load_dwordx16 s[{84}:{99}], s[0:1], 64")
    A(f"s_load_dwordx2 s[{66}:{67}], s[0:1], 128")
    if opt.stamps: A("s_memtime s[100:101]"); A("s_memrealtime s[44:45]")
    A(f"v_lshrrev_b32 v2, 6, v0")
    A(f"v_and_b32 v{vLANE}, 63, v0")
    A(f"v_readfirstlane_b32 s{sW}, v2")
    A(f"s_and_b32 s{sT0}, s2, 7"); A(f"s_lshr_b32 s{sT0+1}, s2, 3")
    if opt.newmap:
        A(f"s_lshr_b32 s{sT0+2}, s{sT0}, 1")
        A(f"s_and_b32 s{sT0+3}, s{sT0+1}, 3")
        A(f"s_mul_i32 s{sSL}, s{sT0+2}, 3"); A(f"s_add_u32 s{sSL}, s{sSL}, s{sT0+3}")
        A(f"s_add_u32 s{sT0+2}, s{sT0+2}, 12")
        A(f"s_cmp_eq_u32 s{sT0+3}, 3"); A(f"s_cselect_b32 s{sSL}, s{sT0+2}, s{sSL}")
        A(f"s_and_b32 s{sT0}, s{sT0}, 1"); A(f"s_lshl_b32 s{sT0}, s{sT0}, 3")
        A(f"s_lshr_b32 s{sMT}, s{sT0+1}, 2"); A(f"s_add_u32 s{sMT}, s{sMT}, s{sT0}")
    else:
        A(f"s_lshl_b32 s{sSL}, s{sT0}, 1"); A(f"s_and_b32 s{sT0+2}, s{sT0+1}, 1"); A(f"s_add_u32 s{sSL}, s{sSL}, s{sT0+2}")
        A(f"s_lshr_b32 s{sMT}, s{sT0+1}, 1")
    A(f"s_and_b32 s{sTG}, s{sW}, 3"); A(f"s_lshr_b32 s{sFG}, s{sW}, 2")
    A(f"s_mov_b32 s{sONE}, 0x3f803f80")
    A("s_waitcnt lgkmcnt(0)")
    if opt.stamps: A("v_mov_b32 v15, s100")
    pstamp(A, opt, 8)
    srd(A, SX, kp(0), 2359296)
    srd(A, SWS, 66, WS_SIZE)
    x_loads(A)
    pstamp(A, opt, 9)
    if opt.stamps:
        A(f"s_lshl_b32 s65, s2, 3"); A(f"s_add_u32 s65, s65, s{sW}"); A("s_lshl_b32 s65, s65, 7"); A(f"s_add_u32 s65, s65, {WS_STAMP}")
        A.vm(f"buffer_store_dword v15, off, s[{SWS}:{SWS+3}], s65", "stamp")
        A(f"v_mov_b32 v15, s44")
        A.vm(f"buffer_store_dword v15, off, s[{SWS}:{SWS+3}], s65 offset:64", "stamp")
    A(f"s_cmp_ge_u32 s{sSL}, 12")
    A("s_cbranch_scc1 L_ssm")
    saved = (list(A.lq), list(A.vq))
    mlp_path(A, opt)
    A("L_ssm:")
    A.lq, A.vq = saved
    if opt.ssm:
        import gen2_ssm
        gen2_ssm.ssm_path(A, opt)
        rstamp(A, opt, 14)
    A("L_exit:")
    A("s_endpgm")

def kp(i):
    return 68 + 2 * i

def kdesc(A, K, nv):
    A(".p2align 6")
    A(f".amdhsa_kernel {K}")
    A(f"  .amdhsa_next_free_vgpr {nv}")
    A("  .amdhsa_next_free_sgpr 102")
    A(f"  .amdhsa_accum_offset {nv}")
    A("  .amdhsa_group_segment_fixed_size 0")
    A("  .amdhsa_kernarg_size 136")
    A("  .amdhsa_user_sgpr_count 2")
    A("  .amdhsa_user_sgpr_kernarg_segment_ptr 1")
    A("  .amdhsa_system_sgpr_workgroup_id_x 1")
    A(".end_amdhsa_kernel")

def build(opt):
    A = Asm()
    A(HDR.rstrip("\n"))
    A("; @launch grid=(256,1,1) block=(512,1,1) lds=163840")
    A('.amdgcn_target "amdgcn-amd-amdhsa--gfx950"')
    A(".text")
    n0 = len(A.L)
    main_kernel(A, opt)
    A.lq = []; A.vq = []
    A.L[n0:], errs = check_hazards(A.L[n0:], fix=True)
    for e in errs[:0]: print(e, file=sys.stderr)
    A('.section .rodata,"a"')
    kdesc(A, NAME + "_kernel", 256)
    return A.text(), errs

if __name__ == "__main__":
    sys.modules["gen2"] = sys.modules["__main__"]
    opt = Opt()
    out = sys.argv[1] if len(sys.argv) > 1 else "k.s"
    for a in sys.argv[2:]:
        k, v = a.split("=")
        setattr(opt, k, int(v))
    t, errs = build(opt)
    open(out, "w").write(t)
    print(out, len(t.splitlines()), "lines", len(errs), "hazards")
```

```python
import math
from asmlib import *
from gen2 import *
import gen2 as G

DPP = "quad_perm:[1,0,3,2] row_mask:0xf bank_mask:0xf"
U = [16 + 16 * t for t in range(5)]
SBUF = 96
sQ = 49
sER = 38

def sel_srd(A, d, pa, pb, nrec, lower):
    A(f"s_cselect_b32 s{d}, s{pb}, s{pa}")
    A(f"s_cselect_b32 s{d+1}, s{pb+1}, s{pa+1}")
    A(f"s_sub_u32 s{d}, s{d}, {lower}")
    A(f"s_subb_u32 s{d+1}, s{d+1}, 0")
    A(f"s_mov_b32 s{d+2}, {nrec + lower}")
    A(f"s_mov_b32 s{d+3}, 0x20000")

def pass1_ops(t):
    u = U[t]
    ops = [("wl", [("k", t)])]
    def coef(i, tmp=2):
        return [f"v_mul_f32_dpp v{tmp}, v{u+i}, v15 {DPP}", f"v_fma_f32 v{u+i}, v{u+i}, v14, v{tmp}"]
    ops += coef(0) + coef(1, 10)
    e = u
    for i in range(1, 16):
        ne = 10 + (i & 1)
        ops += [f"v_fma_f32 v{ne}, v12, v{e}, v{u+i}"]
        if i + 1 < 16: ops += coef(i + 1)
        else: ops += ["s_nop 1"]
        ops += [f"v_fmac_f32_dpp v{ne}, v{e}, v13 {DPP}"]
        e = ne
    ops.append(("lds", f"ds_write_b32 v9, v{e} offset:{t*256}", "ew"))
    return ops

def adv(s, unit, j):
    return [("grp", [f"s_add_u32 s{s}, s{s}, {unit * (4 if j % 3 == 2 else 3)}", f"s_cmp_ge_u32 s{s}, {9*unit}",
            f"s_cselect_b32 s{sT0+7}, {9*unit}, 0", f"s_sub_u32 s{s}, s{s}, s{sT0+7}"])]

def kread(t):
    return [("lds", f"ds_read_b128 v[12:15], v8 offset:{t*1024}", ("k", t))]

def ssm_path(A, opt):
    D = 3
    A(f"s_sub_u32 s{sQ}, s{sSL}, 12")
    A("v_lshrrev_b32 v9, 5, v0"); A("v_bfe_u32 v10, v0, 1, 4"); A("v_lshl_add_u32 v9, v9, 4, v10")
    A(f"s_mul_i32 s{sT0+2}, s{sQ}, 288")
    A(f"v_lshl_add_u32 v54, v9, 1, s{sT0+2}")
    par = []
    for i, pi in enumerate((1, 2, 7)):
        B = Asm(); srd(B, SM, kp(pi), 1152)
        par += B.L + [("vm", f"buffer_load_ushort v{49+i}, v54, s[{SM}:{SM+3}], 0 offen", "par")]
    B = Asm(); srd(B, SM, kp(15), 256); par += B.L
    A("v_mov_b32 v52, v0")
    A(f"s_bitcmp1_b32 s{sW}, 1")
    sel_srd(A, SA, kp(3), kp(4), 663552, 4096)
    A(f"s_cmp_ge_u32 s{sW}, 4")
    sel_srd(A, SB, kp(5), kp(6), 663552, 4096)
    A(f"s_cmp_ge_u32 s{sMT}, 9"); A(f"s_cselect_b32 s{sT0+2}, 9, 0"); A(f"s_sub_u32 s{sROT2}, s{sMT}, s{sT0+2}")
    for i in range(9): A(f"s_mov_b32 s{sD1+i}, {4096 + i*128 - (i%4)*1024}")
    A(f"s_mul_i32 s{sM0W}, s{sW}, 9216")
    A(f"v_lshrrev_b32 v9, 3, v{vLANE}")
    A(f"s_and_b32 s{sT0+2}, s{sW}, 1"); A(f"s_lshl_b32 s{sT0+2}, s{sT0+2}, 3")
    A(f"v_add_u32 v9, s{sT0+2}, v9")
    A(f"v_lshrrev_b32 v10, 1, v9")
    A(f"s_bfe_u32 s{sT0+3}, s{sW}, 0x10001")
    A(f"v_xor_b32 v10, s{sT0+3}, v10")
    A(f"v_and_b32 v11, 7, v{vLANE}")
    A(f"v_xor_b32 v10, v10, v11")
    A(f"s_mul_i32 s{sT0+2}, s{sQ}, 144"); A(f"s_lshl_b32 s{sT0+3}, s{sFG}, 4"); A(f"s_add_u32 s{sT0+2}, s{sT0+2}, s{sT0+3}")
    A(f"v_add_u32 v9, s{sT0+2}, v9")
    A(f"v_mul_u32_u24 v9, 1152, v9")
    A(f"v_lshl_add_u32 v{vDMA2}, v10, 4, v9")
    late = [dma1(A, 0, i) for i in range(9)]
    if not opt.lsp:
        for l in late:
            for o in l: A.op(o)
        late = []
    if opt.pfb:
        A(f"s_and_b32 s{sT0+2}, s{sMT}, 7"); A(f"s_lshl_b32 s{sT0+2}, s{sT0+2}, 2")
        A(f"s_and_b32 s{sT0+3}, s{sW}, 1"); A(f"s_add_u32 s{sT0+2}, s{sT0+2}, s{sT0+3}")
        A(f"s_lshl_b32 s{sT0+3}, s{sFG}, 1"); A(f"s_add_u32 s{sT0+2}, s{sT0+2}, s{sT0+3}")
        A(f"s_mul_i32 s{sT0+2}, s{sT0+2}, 4032"); A(f"s_mul_i32 s{sT0+3}, s{sQ}, {144*1152}")
        A(f"s_add_u32 s{sT0+2}, s{sT0+2}, s{sT0+3}"); A(f"s_add_u32 s{sT0+2}, s{sT0+2}, {4096 + 32*1152}")
        A(f"v_lshl_add_u32 v53, v{vLANE}, 6, s{sT0+2}")
        par.append(("vm", f"buffer_load_dword v53, v53, s[{SA}:{SA+3}], 0 offen", "par"))
    late.append(par)
    nextrow = [f"v_add_u32 v{vDMA2}, {32*1152}, v{vDMA2}"]
    A(f"v_and_b32 v9, 1, v{vLANE}")
    A(f"v_bfe_u32 v10, v{vLANE}, 1, 4")
    A(f"v_lshrrev_b32 v11, 3, v10"); A("v_lshl_add_u32 v11, v9, 1, v11")
    A(f"s_lshl_b32 s{sT0+2}, s{sFG}, 2"); A(f"v_add_u32 v11, s{sT0+2}, v11")
    A("v_mul_u32_u24 v11, 9216, v11")
    A("v_and_b32 v12, 7, v10"); A("v_lshl_add_u32 v11, v12, 7, v11")
    A("v_lshrrev_b32 v10, 1, v10"); A("v_xor_b32 v10, v10, v9")
    A(f"v_lshrrev_b32 v9, 5, v{vLANE}"); A("v_xor_b32 v10, v10, v9")
    A("v_lshl_add_u32 v4, v10, 4, v11")
    for i in range(1, 4): A(f"v_xor_b32 v{4+i}, {32*i}, v4")

    R = Rec(); K = Rec()
    R(("wv", ["par"]))
    clear_flag(R)
    R(f"s_lshl_b32 s{sT0+2}, s{sQ}, 4"); R(f"s_add_u32 s{sT0+2}, s{sT0+2}, 15"); R(f"s_sub_u32 s{sT0+2}, s{sT0+2}, s{sMT}")
    R(f"s_mul_i32 s{sER}, s{sT0+2}, {EROW}"); R(f"s_add_u32 s{sER}, s{sER}, {WS_E}")
    R(f"s_cmp_ge_u32 s{sW}, 5"); R("s_cbranch_scc1 L_noclr")
    R("v_lshlrev_b32 v55, 2, v52"); R("v_mov_b32 v53, -1")
    R(f"buffer_store_dword v53, v55, s[{SWS}:{SWS+3}], s{sER} offen sc0 sc1")
    R("L_noclr:")
    for o in nextrow: R.op(o)

    for r in (49, 50, 51): K(f"v_lshlrev_b32 v{r}, 16, v{r}")
    L2E = hexf(math.log2(math.e))
    K(f"v_mul_f32 v51, {L2E}, v51"); K("v_exp_f32 v51, v51"); K("s_nop 0")
    bf16r(K, 51, 51)
    K("v_mul_f32 v53, v51, v49"); K("v_mul_f32 v54, v51, v50")
    K(f"v_mul_f32 v53, {L2E}, v53"); K("v_mul_f32 v54, 0.15915494, v54")
    K("v_exp_f32 v53, v53"); K("v_fract_f32 v54, v54")
    K("v_cos_f32 v56, v54"); K("v_sin_f32 v57, v54")
    K("v_mul_f32 v58, v49, v49"); K("v_fma_f32 v58, v50, v50, v58")
    K("v_mul_f32 v56, v56, v53"); K("v_mul_f32 v57, v57, v53")
    K("v_rcp_f32 v58, v58")
    K("v_add_f32 v59, -1.0, v56")
    K("v_mul_f32 v60, v59, v49"); K("v_fma_f32 v60, v57, v50, v60")
    K("v_mul_f32 v61, v57, v49"); K("v_fma_f32 v61, -v59, v50, v61")
    K("v_add_f32 v58, v58, v58")
    K("v_and_b32 v55, 1, v52"); K("v_lshlrev_b32 v55, 31, v55")
    K("v_mul_f32 v60, v60, v58"); K("v_mul_f32 v59, v61, v58")
    K("v_xor_b32 v57, v57, v55")
    K("v_xor_b32 v58, v60, v55")
    K("v_sub_f32 v59, 0, v59")
    K(f"v_lshlrev_b32 v55, 4, v52"); K(f"v_add_u32 v55, {LDS_KT}, v55")
    K("v_cmp_gt_u32 vcc, 288, v52")
    K(f"s_and_saveexec_b64 s[{sT0+4}:{sT0+5}], vcc")
    K.lds("ds_write_b128 v55, v[56:59]", "kw")
    K(f"s_mov_b64 exec, s[{sT0+4}:{sT0+5}]")
    K(f"v_and_b32 v10, 31, v{vLANE}")
    K(f"s_lshl_b32 s{sT0+2}, s{sFG}, 5"); K(f"v_add_u32 v10, s{sT0+2}, v10")
    K(f"v_lshlrev_b32 v8, 4, v10"); K(f"v_add_u32 v8, {LDS_KT}, v8")
    K(f"v_lshrrev_b32 v11, 5, v{vLANE}"); K(f"s_lshl_b32 s{sT0+2}, s{sTG}, 1"); K(f"v_add_u32 v11, s{sT0+2}, v11")
    K("v_mul_u32_u24 v11, 288, v11"); K("v_add_u32 v10, v10, v11")
    K(f"v_lshlrev_b32 v9, 2, v10"); K(f"v_add_u32 v9, {LDS_ET}, v9")
    ln_prologue(A, opt, False, late, R)
    if not opt.ov:
        for o in R: A.op(o)
        for i in range(9):
            for o in dma1(A, 1, i): A.op(o)
        for o in K: A.op(o)
        A.wait(lds=["kw"], vm=[("d1", 0)])
        A("s_barrier")

    units = [(s, k) for s in range(5) for k in range(36)]
    NU = len(units)
    def rd(u):
        s, k = units[u]
        return [("lds", f"ds_read_b128 {vr(SBUF + 4*(u%4), 4)}, v{4+(k&3)} offset:{(k>>2)*1024}", ("a", u))]
    slots = []
    for u, (s, k) in enumerate(units):
        slots.append({"pre": [("wl", [("a", u)])],
                      "mfma": f"v_mfma_f32_32x32x16_bf16 {vr(U[s],16)}, {vr(YB+4*k,4)}, {vr(SBUF+4*(u%4),4)}, {'0' if k == 0 else vr(U[s],16)}"})
    for u in range(NU - D):
        s, k = units[u + D]
        if k == 0:
            op = "v_add_u32" if s & 1 else "v_subrev_u32"
            slots[u]["bar"] = [f"{op} v{4+i}, {BUFSZ}, v{4+i}" for i in range(4)] + [("wv", [("d1", s)]), "s_barrier"]
        slots[u]["rd"] = rd(u + D)
    slots[36 + 16].setdefault("x", []).extend(announce("L_ann_s"))
    if opt.ov:
        overlap0(slots, opt, [dma1(A, 1, i) for i in range(9)])
        i = [k for k, o in enumerate(K) if isinstance(o, str) and o.startswith("v_cmp_gt_u32")][0]
        K[i:i+4] = [("grp", K[i:i+4])]
        spread(slots, 5, 24, K)
        slots[33]["bar"].insert(0, ("wl", ["kw"]))
    for s in range(2, 5):
        base = (s - 1) * 36 - 2
        slots[base].setdefault("dma", []).extend(nextrow)
        for i in range(9): slots[base + 1 + 2 * i].setdefault("dma", []).extend(dma1(A, s, i))
    for s in range(1, 5):
        slots[s * 36 - 1].setdefault("x", []).extend(kread(s - 1))
        spread(slots, s * 36 + 3, s * 36 + 30, pass1_ops(s - 1))
    if opt.pf in (1, 3):
        pf = [f"s_and_b32 s{sT0}, s{sMT}, 7", f"s_lshl_b32 s{sT0}, s{sT0}, 2", f"s_add_u32 s{sT0}, s{sT0}, s{sTG}",
              f"s_mul_i32 s{sT0}, s{sT0}, {18*1152}", f"s_lshl_b32 s{sT0+1}, s{sQ}, 8", f"s_add_u32 s{sT0}, s{sT0}, s{sT0+1}",
              f"s_add_u32 s{sT0}, s{sT0}, 4096", f"v_mul_u32_u24 v0, 86, v{vLANE}", "v_lshrrev_b32 v0, 8, v0",
              f"v_mul_u32_u24 v0, 6, v0", f"v_add_u32 v0, v0, v{vLANE}", "v_lshlrev_b32 v0, 7, v0",
              ("vm", f"buffer_load_dword v0, v0, s[{SB}:{SB+3}], s{sT0} offen", "pf")]
        slots[1 * 36 + 18].setdefault("dma", []).extend(pf)
        pf[6] = f"s_add_u32 s{sT0}, s{sT0}, 4160"
        slots[2 * 36 + 18].setdefault("dma", []).extend([("wv", ["pf"])] + pf)
    cs = [f"v_and_b32 v80, 31, v{vLANE}", f"v_lshrrev_b32 v81, 5, v{vLANE}", "v_lshlrev_b32 v80, 5, v80", "v_lshl_add_u32 v84, v81, 4, v80",
          f"s_lshl_b32 s{sT0+2}, s{sMT}, 2", f"s_add_u32 s{sT0+2}, s{sT0+2}, s{sTG}",
          f"s_mul_i32 s{sT0+2}, s{sT0+2}, {18*16384}", f"s_mul_i32 s{sT0+3}, s{sQ}, 2048", f"s_add_u32 s{sT0+3}, s{sT0+3}, 8192",
          f"s_add_u32 s{sT0+2}, s{sT0+2}, s{sT0+3}", f"s_lshl_b32 s{sT0+3}, s{sFG}, 14",
          f"s_add_u32 s{sT0+2}, s{sT0+2}, s{sT0+3}", f"v_add_u32 v84, s{sT0+2}, v84"] + [f"v_mov_b32 v{80+i}, -1" for i in range(4)]
    spread(slots, 24, 27, cs, "x")
    for i, pos in enumerate([28, 31, 36 + 19, 36 + 23, 72 + 19, 72 + 23]):
        slots[pos].setdefault("dma", []).extend([f"s_add_u32 s{sT0+8}, s{sROT2}, {2 + 3 * (i//2)}", f"s_cmp_ge_u32 s{sT0+8}, 9", f"s_cselect_b32 s{sT0+9}, 9, 0",
            f"s_sub_u32 s{sT0+8}, s{sT0+8}, s{sT0+9}", f"s_lshl_b32 s{sT0+8}, s{sT0+8}, 15",
            ("vm", f"buffer_store_dwordx4 v[80:83], v84, s[{SWS}:{SWS+3}], s{sT0+8} offen offset:{(i&1)*1024} sc0 sc1", "clr2")])
    slots[3 * 36 - 2]["dma"] = [f"s_cmp_lg_u32 s{sW}, 7", "s_cbranch_scc1 L_ss0", f"v_lshlrev_b32 v85, 2, v{vLANE}",
        f"buffer_load_dword v86, v85, s[{SM}:{SM+3}], 0 offen sc0 sc1", "L_ss0:"] + slots[3 * 36 - 2]["dma"]
    B = Asm(); check_all(B, "L_ss2", 85)
    slots[4 * 36 - D]["bar"][-1:-1] = [f"s_cmp_lg_u32 s{sW}, 7", "s_cbranch_scc1 L_ss1",
        "v_and_b32 v86, 0x01010101, v86", "v_cmp_ne_u32 vcc, 0x01010101, v86", "s_cbranch_vccz L_ss1"] + B.L + ["L_ss1:"]
    vC = YB
    SLOT = [73728, 110592, 0, 36864]
    csetup = [f"s_and_b32 s{sT0+2}, s{sW}, 1", f"s_lshl_b32 s{sT0+2}, s{sT0+2}, 8",
              f"s_bfe_u32 s{sT0+3}, s{sW}, 0x10001", f"s_mul_i32 s{sT0+3}, s{sT0+3}, {32*1152}",
              f"s_mul_i32 s{sT0+4}, s{sQ}, 288", f"s_add_u32 s{sT0+3}, s{sT0+3}, s{sT0+4}",
              f"s_lshr_b32 s{sM0A}, s{sW}, 1", f"s_mul_i32 s{sM0A}, s{sM0A}, 9216",
              f"s_lshl_b32 s{sT0+4}, s{sT0+2}, 4", f"s_add_u32 s{sM0A}, s{sM0A}, s{sT0+4}",
              f"s_mul_i32 s{sDP}, s{sROT2}, 73728", f"s_movk_i32 s{sT0+5}, 3641"]
    for i in range(5):
        a, b, c = vC + 5, vC + 6, vC + 7
        csetup += [f"v_add_u32 v{a}, s{sT0+2}, v{vLANE}", f"v_add_u32 v{a}, {64*i}, v{a}",
                   f"v_mul_u32_u24 v{b}, s{sT0+5}, v{a}", f"v_lshrrev_b32 v{b}, 16, v{b}",
                   f"v_mul_u32_u24 v{c}, 18, v{b}", f"v_sub_u32 v{a}, v{a}, v{c}",
                   f"v_lshrrev_b32 v{c}, 4, v{b}", f"v_xor_b32 v{a}, v{a}, v{c}",
                   f"v_and_b32 v{vC+i}, 3, v{b}",
                   f"v_lshrrev_b32 v{c}, 3, v{b}", f"v_lshl_add_u32 v{vC+i}, v{c}, 2, v{vC+i}",
                   f"v_bfe_u32 v{c}, v{b}, 2, 1", f"v_lshl_add_u32 v{vC+i}, v{c}, 4, v{vC+i}",
                   f"v_mul_u32_u24 v{vC+i}, 1152, v{vC+i}", f"v_lshl_add_u32 v{vC+i}, v{a}, 4, v{vC+i}",
                   f"v_add_u32 v{vC+i}, s{sT0+3}, v{vC+i}", f"v_add_u32 v{vC+i}, {4096 - (i%4)*1024}, v{vC+i}"]
    def dmac(j, i):
        ops = []
        if i % 4 == 0: ops += [f"s_add_u32 m0, s{sM0A}, {SLOT[j%4] + i*1024}", "s_nop 0"]
        ops.append(("vm", f"buffer_load_dwordx4 v{vC+i}, s[{SB}:{SB+3}], s{sDP} offen offset:{(i%4)*1024} lds", ("d2", j)))
        if i == 4: ops += adv(sDP, 73728, j)
        return ops
    S4 = 4 * 36
    spread(slots, S4 + 2, S4 + 20, csetup, "x")
    n = 0
    for j in range(2):
        for i in range(5):
            slots[S4 + 21 + n].setdefault("dma", []).extend(dmac(j, i)); n += 1
    slots[S4 + 34].setdefault("x", []).extend(kread(4))
    for u in range(D):
        for o in rd(u): A.op(o)
    emit_slots(A, slots[:S4])
    A(f"s_cmp_lg_u32 s{sFG}, 0")
    A("s_cbranch_scc1 L_s4b")
    saved = (list(A.lq), list(A.vq))
    emit_slots(A, slots[S4:])
    A("s_nop 7"); A("s_nop 3")
    for o in pass1_ops(4): A.op(o)
    A.wait_all()
    A("s_branch L_s4j")
    vq_a = list(A.vq)
    A("L_s4b:")
    A.lq, A.vq = saved
    for o in csetup: A.op(o)
    for j in range(2):
        for i in range(5):
            for o in dmac(j, i): A.op(o)
    for o in pass1_ops(3): A.op(o)
    A.wait_all()
    assert len(A.vq) == len(vq_a), (A.vq, vq_a)
    A("L_s4j:")
    stamp(A, opt, 3)
    A("s_barrier")

    T = 120
    A(f"s_cmp_ge_u32 s{sW}, 5")
    A("s_cbranch_scc1 L_carry_done")
    saved = (list(A.lq), list(A.vq))
    A(f"s_lshl_b32 s{sT0+2}, s{sW}, 6")
    A(f"v_add_u32 v{T}, s{sT0+2}, v{vLANE}")
    A(f"v_cmp_gt_u32 vcc, 288, v{T}")
    A(f"s_and_saveexec_b64 s[{sT0+8}:{sT0+9}], vcc")
    A(f"v_lshlrev_b32 v{T+1}, 4, v{T}"); A(f"v_add_u32 v{T+1}, {LDS_KT}, v{T+1}")
    A(f"v_lshlrev_b32 v{T}, 2, v{T}"); A(f"v_add_u32 v{T+2}, {LDS_ET}, v{T}")
    A.lds(f"ds_read_b64 v[{T+4}:{T+5}], v{T+1}", "kk")
    EI = T + 12
    for i in range(8): A.lds(f"ds_read_b32 v{EI+i}, v{T+2} offset:{i*1152}", ("e", i))
    A.wait(lds=["kk"])
    def sq(dr, ds_, r, s):
        A(f"v_mul_f32 v{T+3}, v{s}, v{s}")
        A(f"v_mul_f32 v{ds_}, v{r}, v{s}")
        A(f"v_fma_f32 v{dr}, v{r}, v{r}, -v{T+3}")
        A(f"v_add_f32 v{ds_}, v{ds_}, v{ds_}")
    for _ in range(4): sq(T + 4, T + 5, T + 4, T + 5)
    A.wait(lds=[("e", 7)])
    def step(new, old, add, lr, ls):
        A(f"v_fma_f32 v{new}, v{lr}, v{old}, v{add}")
        A("s_nop 1")
        A(f"v_fmac_f32_dpp v{new}, v{old}, v{ls} {DPP}")
    p = EI
    for i in range(1, 8):
        n_ = T + 8 + (i & 1)
        step(n_, p, EI + i, T + 4, T + 5); p = n_
    A.vm(f"buffer_store_dword v{p}, v{T}, s[{SWS}:{SWS+3}], s{sER} offen sc0 sc1", "pub")
    A(f"s_add_u32 s{sT0+2}, s{sQ}, 1"); A(f"s_mul_i32 s{sT0+2}, s{sT0+2}, {16*EROW}"); A(f"s_add_u32 s{SX+2}, s{sT0+2}, {WS_E}")
    A(f"s_mov_b32 s{SX}, s{SWS}"); A(f"s_mov_b32 s{SX+1}, s{SWS+1}")
    for r in range(4): A(f"s_add_u32 s{sT0+2+r}, s{sER}, {EROW*(1+4*r)}")
    A(f"s_movk_i32 s{sT0+6}, 0x4000")
    EC = T + 24
    A("L_poll:")
    for c in range(15):
        A(f"buffer_load_dword v{EC+c}, v{T}, s[{SX}:{SX+3}], s{sT0+2+c//4} offen offset:{(c%4)*EROW} sc0 sc1")
    sq(T + 6, T + 7, T + 4, T + 5)
    for _ in range(2): sq(T + 6, T + 7, T + 6, T + 7)
    A(f"s_sub_u32 s{sT0+6}, s{sT0+6}, 1")
    A("s_cbranch_scc1 L_poll_done")
    A("s_waitcnt vmcnt(0)")
    A(f"v_max3_u32 v{T+8}, v{EC}, v{EC+1}, v{EC+2}")
    for c in range(3, 15, 2): A(f"v_max3_u32 v{T+8}, v{T+8}, v{EC+c}, v{EC+c+1}")
    A(f"v_cmp_eq_u32 vcc, -1, v{T+8}")
    A("s_cbranch_vccnz L_poll")
    A("L_poll_done:")
    A.wait_all(lds=False, vm=True)
    stamp(A, opt, 4)
    p = EC + 14
    for c in range(13, -1, -1):
        n_ = T + 8 + (c & 1)
        step(n_, p, EC + c, T + 6, T + 7); p = n_
    A("s_nop 1")
    p = T + 8
    for i in range(8):
        A.lds(f"ds_write_b32 v{T+2}, v{p} offset:{i*1152}", "gw")
        if i < 7:
            n_ = T + 8 + ((i + 1) & 1)
            step(n_, p, EI + i, T + 4, T + 5); p = n_
    A(f"s_mov_b64 exec, s[{sT0+8}:{sT0+9}]")
    A.wait_all()
    A("L_carry_done:")
    A.lq, A.vq = saved
    A("s_barrier")
    stamp(A, opt, 5)

    KK = 120
    A(f"v_and_b32 v10, 1, v{vLANE}"); A(f"v_bfe_u32 v11, v{vLANE}, 1, 4")
    A("v_lshl_add_u32 v11, v10, 4, v11"); A("v_lshlrev_b32 v11, 6, v11")
    A(f"v_lshrrev_b32 v12, 5, v{vLANE}"); A("v_xor_b32 v10, v10, v12")
    A(f"v_bfe_u32 v12, v{vLANE}, 2, 1"); A("v_lshl_add_u32 v10, v10, 1, v12")
    A("v_lshl_add_u32 v136, v10, 4, v11")
    A(f"s_mul_i32 s{sT0+2}, s{sTG}, 18432"); A(f"s_lshl_b32 s{sT0+3}, s{sFG}, 11"); A(f"s_add_u32 s{sT0+3}, s{sT0+3}, s{sT0+2}")
    A(f"v_add_u32 v136, s{sT0+3}, v136"); A("v_xor_b32 v137, 16, v136")
    def pass2(nt):
        for t in range(nt):
            A.lds(f"ds_read_b64 v[{KK+2*t}:{KK+2*t+1}], v8 offset:{t*1024}", "k2")
            A.lds(f"ds_read_b32 v{130+t}, v9 offset:{t*256}", "k2")
        A.wait_all()
        for i in range(16):
            for t in range(nt):
                prev = 130 + t if i == 0 else U[t] + i - 1
                A(f"v_fmac_f32 v{U[t]+i}, v{KK+2*t}, v{prev}")
            for t in range(nt):
                prev = 130 + t if i == 0 else U[t] + i - 1
                A(f"v_fmac_f32_dpp v{U[t]+i}, v{prev}, v{KK+2*t+1} {DPP}")
        for t in range(nt):
            for j in range(8):
                A(f"v_cvt_pk_bf16_f32 v{U[t]+j}, v{U[t]+2*j}, v{U[t]+2*j+1}")
                if j % 4 == 3:
                    A.lds(f"ds_write_b128 v{136 + j//4}, {vr(U[t]+j-3,4)} offset:{t*4096}", "hw")
        A.wait_all()
    A(f"s_cmp_lg_u32 s{sFG}, 0")
    A("s_cbranch_scc1 L_p2b")
    pass2(5)
    A("s_branch L_p2j")
    A("L_p2b:")
    pass2(4)
    A("L_p2j:")
    A(f"v_lshrrev_b32 v10, 5, v{vLANE}"); A(f"v_bfe_u32 v11, v{vLANE}, 2, 2")
    A("v_lshl_add_u32 v10, v10, 3, v11"); A("v_lshlrev_b32 v10, 6, v10")
    A(f"v_bfe_u32 v11, v{vLANE}, 1, 1"); A(f"v_bfe_u32 v12, v{vLANE}, 3, 1"); A("v_xor_b32 v11, v11, v12")
    A(f"v_bfe_u32 v12, v{vLANE}, 4, 1"); A("v_lshl_add_u32 v11, v12, 1, v11")
    A("v_lshl_add_u32 v10, v11, 4, v10")
    A(f"v_and_b32 v11, 1, v{vLANE}"); A("v_lshl_add_u32 v10, v11, 3, v10")
    A(f"v_add_u32 v4, s{sT0+2}, v10"); A("v_xor_b32 v5, 32, v4")
    A(f"v_and_b32 v10, 31, v{vLANE}"); A("v_mul_u32_u24 v11, 288, v10")
    A(f"v_lshrrev_b32 v10, 4, v10"); A(f"v_lshrrev_b32 v12, 5, v{vLANE}"); A("v_xor_b32 v10, v10, v12")
    A("v_lshl_add_u32 v6, v10, 4, v11")
    A(f"s_mul_i32 s{sT0+3}, s{sFG}, 9216"); A(f"v_add_u32 v6, s{sT0+3}, v6"); A(f"v_add_u32 v7, 73728, v6")
    A(f"v_and_b32 v10, 31, v{vLANE}"); A(f"v_lshrrev_b32 v11, 5, v{vLANE}"); A("v_lshlrev_b32 v10, 5, v10")
    A(f"v_lshl_add_u32 v{vXA}, v11, 4, v10")
    A(f"s_lshl_b32 s{sT0+2}, s{sMT}, 2"); A(f"s_add_u32 s{sT0+2}, s{sT0+2}, s{sTG}")
    A(f"s_mul_i32 s{sT0+2}, s{sT0+2}, {18*16384}"); A(f"s_mul_i32 s{sT0+3}, s{sQ}, 2048"); A(f"s_add_u32 s{sT0+3}, s{sT0+3}, 8192")
    A(f"s_add_u32 s{sT0+2}, s{sT0+2}, s{sT0+3}"); A(f"s_lshl_b32 s{sT0+3}, s{sFG}, 14")
    A(f"s_add_u32 s{sT0+2}, s{sT0+2}, s{sT0+3}"); A(f"v_add_u32 v{vXA}, s{sT0+2}, v{vXA}")
    A(f"s_lshl_b32 s{sST}, s{sROT2}, 15")
    A.wait(vm=[("d2", 0)])
    A("s_barrier")
    stamp(A, opt, 6)
    GF = 184
    for ks in range(18):
        tile, kk = ks >> 1, ks & 1
        for rr in range(2):
            A.lds(f"ds_read_b64_tr_b16 {vr(GF+4*ks+2*rr,2)}, v{4+kk} offset:{tile*2048 + kk*1024 + rr*256}", "g")
    units = [(j, k) for j in range(9) for k in range(18)]
    NU = len(units)
    def rd2(u):
        j, k = units[u]
        so = SLOT[j % 4]
        a = 7 if so >= 73728 else 6
        off = so % 73728 + (k & 1) * 18432 + (k >> 1) * 32
        return [("lds", f"ds_read_b128 {vr(SBUF + 4*(u%4), 4)}, v{a} offset:{off}", ("a", u))]
    slots = []
    for u, (j, k) in enumerate(units):
        acc = ACC[j & 1]
        slots.append({"pre": [("wl", [("a", u)])],
                      "mfma": f"v_mfma_f32_32x32x16_bf16 {vr(acc,16)}, {vr(SBUF+4*(u%4),4)}, {vr(GF+4*k,4)}, {'0' if k == 0 else vr(acc,16)}"})
    for u in range(NU - D):
        j, k = units[u + D]
        if k == 0: slots[u]["bar"] = [("wv", [("d2", j)]), "s_barrier"]
        slots[u]["rd"] = rd2(u + D)
    slots[0]["bar"] = ["s_barrier"]
    slots[11].setdefault("x", []).extend(announce("L_ann_s2", 3))
    n = 1
    for j in (2, 3):
        for i in range(5):
            slots[n].setdefault("dma", []).extend(dmac(j, i)); n += 1
    for j in range(4, 9):
        base = (j - 3) * 18 + 6
        for i in range(5): slots[base + 2 * i].setdefault("dma", []).extend(dmac(j, i))
    SREG = 48
    for j in range(1, 9):
        spread(slots, j * 18 + 2, j * 18 + 6, store_ops(ACC[(j - 1) & 1], SREG, ("st", j - 1)) + adv(sST, 32768, j - 1))
    import red
    rr = red.R("s")
    red.plan(rr, slots, 0, 18, opt)
    for u in range(D):
        for o in rd2(u): A.op(o)
    emit_slots(A, slots)
    A("s_nop 7"); A("s_nop 3")
    for o in store_ops(ACC[0], SREG, ("st", 8)): A.op(o)
    stamp(A, opt, 7)
    red.tail(A, rr, opt)
```

```python
import math
from asmlib import *
import gen2 as G
from gen2 import sW, sTG, sFG, sMT, sSL, SX, SA, SM, SWS, sT0, sROT2, sFLG, sMYF, sST, vXA, vLANE, WS_AFF, KSC, kp, srd, stamp
from gen2 import sLOC, sCF, sCP, sXID

sDB = 44
SD, SO = SM, SA
SC = " sc0 sc1"
LX = 147456
LD = LX + 12288
class R:
    def __init__(s, tag):
        s.SEL = [192, 196]
        s.vPL, s.vTK, s.vD, s.vO = 200, 201, 202, 203
        s.vFV = 204 if tag == "m" else 60
        s.vC = 205
        s.vFA = 191 if tag == "m" else 61
        s.AFF = 206
        s.vF = 188
        s.P, s.PU = 208, 216
        s.LB = 232
        s.tag = tag; s.n = 0; s.names = []
    def buf(s, c, i): return (s.LB if c == 0 else 112 + 16 * c) + 4 * i
    def lbl(s):
        s.n += 1; return f"L_r{s.tag}{s.n}"
class L(list):
    def __call__(s, x): s.append(x)
TK = [0]
def tick(r, name):
    if not TK[0] or (TK[0] == 2 and name[0] not in "SZe") or name[0] == "k": return []
    r.names.append(name)
    return ["s_memrealtime s[100:101]", "s_waitcnt lgkmcnt(0)", f"v_writelane_b32 v15, s100, {len(r.names)-1}"]

CH = 8 * G.PLANE
def dbs(A, dst, stride, sh):
    A(f"s_lshr_b32 s{sT0}, s{sSL}, 2"); A(f"s_mul_i32 s{sT0}, s{sT0}, 3"); A(f"s_add_u32 s{sT0}, s{sT0}, s{sMT}")
    A(f"s_cmp_ge_u32 s{sT0}, 9"); A(f"s_cselect_b32 s{sT0+1}, 9, 0"); A(f"s_sub_u32 s{sT0}, s{sT0}, s{sT0+1}")
    for c in range(3):
        A(f"s_cmp_ge_u32 s{sT0}, 9"); A(f"s_cselect_b32 s{sT0+1}, 9, 0"); A(f"s_sub_u32 s{sT0}, s{sT0}, s{sT0+1}")
        A(f"s_lshl_b32 s{dst+stride*c}, s{sT0}, {sh}"); A(f"s_add_u32 s{sT0}, s{sT0}, 1")
def sent_clear():
    A = L()
    dbs(A, sT0 + 4, 2, 15)
    for c in range(3): A(f"s_add_u32 s{sT0+5+2*c}, s{sT0+4+2*c}, 8192")
    A(f"v_lshrrev_b32 v52, 4, v{vLANE}"); A(f"v_and_b32 v53, 15, v{vLANE}"); A(f"v_lshlrev_b32 v53, 4, v53")
    A(f"v_lshl_add_u32 v51, v52, 11, v53")
    A(f"s_lshl_b32 s{sT0}, s{sMT}, 2"); A(f"s_add_u32 s{sT0}, s{sT0}, s{sTG}")
    A(f"s_mul_i32 s{sT0+1}, s{sT0}, 18"); A(f"s_add_u32 s{sT0+1}, s{sT0+1}, s{sFG}"); A(f"s_lshl_b32 s{sT0+1}, s{sT0+1}, 6")
    A(f"s_and_b32 s{sT0}, s{sSL}, 3"); A(f"s_add_u32 s{sT0+1}, s{sT0+1}, s{sT0}"); A(f"s_lshl_b32 s{sT0+1}, s{sT0+1}, 8")
    A(f"v_add_u32 v51, s{sT0+1}, v51")
    for i in range(4): A(f"v_mov_b32 v{52+i}, -1")
    st = [("vm", f"buffer_store_dwordx4 v[52:55], v51, s[{SWS}:{SWS+3}], s{sT0+4+(i>>1)} offen offset:{(i&1)*1024}{SC}", "clr") for i in range(12)]
    return list(A), st

def setup(r):
    A = L(); t = r.LB
    srd(A, SO, kp(14), 4718592)
    A(f"s_cmp_ge_u32 s{sTG}, 2"); A(f"s_cselect_b64 s[{SD}:{SD+1}], s[{kp(13)}:{kp(13)+1}], s[{kp(8)}:{kp(8)+1}]")
    A(f"s_movk_i32 s{SD+2}, 1152")
    dbs(A, sDB, 1, 7)
    A(f"v_and_b32 v{t}, 1, v{vLANE}"); A(f"v_lshlrev_b32 v{t}, 4, v{t}")
    A(f"s_movk_i32 s{sT0}, 0x3f80"); A(f"v_lshlrev_b32 v{t}, v{t}, s{sT0}")
    A(f"v_bfe_u32 v{t+1}, v{vLANE}, 1, 3")
    for i in range(8):
        A(f"v_cmp_eq_u32 vcc, {i}, v{t+1}"); A(f"v_cndmask_b32 v{r.SEL[0]+i}, 0, v{t}, vcc")
    A(f"v_lshrrev_b32 v{t+2}, 4, v{vLANE}"); A(f"v_and_b32 v{t+3}, 15, v{vLANE}"); A(f"v_lshlrev_b32 v{t+3}, 4, v{t+3}")
    A(f"v_lshl_add_u32 v{r.vPL}, v{t+2}, 11, v{t+3}")
    A(f"s_lshl_b32 s{sT0}, s{sMT}, 2"); A(f"s_add_u32 s{sT0}, s{sT0}, s{sTG}")
    A(f"s_mul_i32 s{sT0+1}, s{sT0}, 18"); A(f"s_add_u32 s{sT0+1}, s{sT0+1}, s{sFG}"); A(f"s_lshl_b32 s{sT0+1}, s{sT0+1}, 6")
    A(f"s_and_b32 s{sT0+2}, s{sSL}, 3"); A(f"s_add_u32 s{sT0+1}, s{sT0+1}, s{sT0+2}"); A(f"s_lshl_b32 s{sT0+1}, s{sT0+1}, 8")
    A(f"v_add_u32 v{r.vPL}, s{sT0+1}, v{r.vPL}")
    A(f"v_and_b32 v{t+3}, 1, v{vLANE}"); A(f"v_lshlrev_b32 v{t+3}, 5, v{t+3}"); A(f"v_lshl_add_u32 v{t+3}, v{t+2}, 3, v{t+3}")
    A(f"v_lshl_add_u32 v{r.vTK}, v{t+1}, 6, v{t+3}")
    A(f"s_mul_i32 s{sT0+1}, s{sW}, 1536"); A(f"s_add_u32 s{sT0+1}, s{sT0+1}, {LX}"); A(f"v_add_u32 v{r.vTK}, s{sT0+1}, v{r.vTK}")
    A(f"s_lshl_b32 s{sT0+1}, s{sFG}, 6"); A(f"v_add_u32 v{t+3}, s{sT0+1}, v{t+3}"); A(f"v_add_u32 v{r.vD}, {LD}, v{t+3}")
    A(f"s_lshl_b32 s{sT0}, s{sT0}, 2"); A(f"s_add_u32 s{sT0}, s{sT0}, s{sT0+2}"); A(f"s_lshl_b32 s{sT0}, s{sT0}, 3")
    A(f"v_add_u32 v{t+1}, s{sT0}, v{t+1}"); A(f"v_mul_u32_u24 v{r.vO}, 1152, v{t+1}")
    A(f"v_add_u32 v{r.vO}, v{r.vO}, v{t+3}"); A(f"v_lshlrev_b32 v{r.vO}, 1, v{r.vO}")
    A(f"v_and_b32 v{t+1}, 127, v{t+1}"); A(f"v_lshlrev_b32 v{t+1}, 3, v{t+1}")
    A(f"s_mul_i32 s{sT0+3}, s{sT0}, 1152"); A(f"s_add_u32 s{sT0+3}, s{sT0+3}, s{sT0+1}")
    A(f"s_lshl_b32 s{sT0}, s2, 10"); A(f"s_add_u32 s{sT0}, s{sT0}, {WS_AFF}")
    A(("vm", f"buffer_load_dwordx2 {vr(r.AFF,2)}, v{t+1}, s[{SWS}:{SWS+3}], s{sT0} offen", "raff"))
    return list(A)

def xload(r):
    t = r.LB + 4
    return [f"v_bfe_u32 v{t}, v{vLANE}, 2, 3", f"v_mul_u32_u24 v{t}, 1152, v{t}",
            f"v_and_b32 v{t+1}, 3, v{vLANE}", f"v_lshl_add_u32 v{t}, v{t+1}, 4, v{t}",
            f"s_sub_u32 s{sT0}, s{sDB+1}, s{sDB}", f"v_lshrrev_b32 v{t+1}, 5, v{vLANE}", f"v_mul_i32_i24 v{t+1}, s{sT0}, v{t+1}",
            f"v_add3_u32 v{t+1}, v{t+1}, s{sDB}, v{t}",
            f"s_mul_i32 s{sT0+1}, s{sW}, 1536", f"s_add_u32 m0, s{sT0+1}, {LX}", "s_nop 0",
            ("vm", f"buffer_load_dwordx4 v{t+1}, s[{SX}:{SX+3}], s{sT0+3} offen lds", "rx"),
            f"s_add_u32 s{sT0}, s{sT0+3}, s{sDB+2}", f"s_add_u32 m0, s{sT0+1}, {LX+1024}", "s_mov_b32 exec_hi, 0",
            ("vm", f"buffer_load_dwordx4 v{t}, s[{SX}:{SX+3}], s{sT0} offen lds", "rx"), "s_mov_b64 exec, -1",
            f"v_lshlrev_b32 v{t+2}, 4, v{vLANE}", f"s_and_b32 s{sT0}, s{sW}, 1", f"s_lshl_b32 s{sT0}, s{sT0}, 10",
            f"s_lshl_b32 s{sT0+1}, s{sTG}, 10", f"s_add_u32 m0, s{sT0+1}, {LD}", "s_nop 0",
            ("vm", f"buffer_load_dwordx4 v{t+2}, s[{SD}:{SD+3}], s{sT0} offen lds", "rx")]

def one(op): return ["s_mov_b64 exec, 1", op, "s_mov_b64 exec, -1"]
def raw(r, name, sreg):
    if TK[0] != 1 or name[1] == "k": return []
    r.names.append(name)
    return [f"v_writelane_b32 v15, s{sreg}, {len(r.names)-1}"]
def spin(r, nm, tag, ld, test, ex=["s_mov_b64 exec, 1"]):
    l = r.lbl()
    return tick(r, nm + "a") + [("wv", [tag])] + tick(r, nm + "b") + [f"s_movk_i32 s{sT0+1}, 0x4000"] + test + raw(r, "R" + nm + "f", sT0) + [f"s_cbranch_scc0 {l}d",
            f"{l}:"] + raw(r, "R" + nm + "l", sT0) + ex + [ld, "s_mov_b64 exec, -1"] + ["s_waitcnt vmcnt(0)", f"s_sub_u32 s{sT0+1}, s{sT0+1}, 1", f"s_cbranch_scc1 {l}d"] + test + [
            f"s_cbranch_scc1 {l}", f"{l}d:"] + raw(r, "R" + nm + "n", sT0 + 1) + tick(r, nm + "c")
def fl(r): return f"buffer_load_dword v{r.vF+2}, off, s[{SWS}:{SWS+3}], s{sFLG} offset:12{SC}"
def fload(r): return one(("vm", fl(r), "rf"))
def check(r):
    return spin(r, "cf", "rf", fl(r), [f"v_readfirstlane_b32 s{sT0}, v{r.vF+2}", f"s_andn2_b32 s{sT0}, 0x01010101, s{sT0}"])
def cl(r): return f"buffer_load_dword v{r.vC}, off, s[{SWS}:{SWS+3}], s{sCP}{SC}"
def ccheck(r, j):
    return spin(r, f"k{j}", "rc", cl(r), [f"v_readfirstlane_b32 s{sT0}, v{r.vC}", f"s_and_b32 s{sT0}, s{sT0}, 15", f"s_cmp_lt_u32 s{sT0}, {j-2}"])
def dual(r, ins, tag):
    l = r.lbl()
    return ("grp", [f"s_cmp_lg_u32 s{sLOC}, 0", f"s_cbranch_scc1 {l}", ("vm", ins, tag), f"s_branch {l}e", f"{l}:", ins + SC, f"{l}e:"])
def pload(r, c):
    o = [f"s_lshl_b32 s{sT0}, s{sDB+c}, 8", f"s_add_u32 s{sT0+1}, s{sT0}, 8192"]
    for i in range(4):
        o.append(("vm", f"buffer_load_dwordx4 {vr(r.buf(c,i),4)}, v{r.vPL}, s[{SWS}:{SWS+3}], s{sT0+(i>>1)} offen offset:{(i&1)*1024}{SC}", ("rp", c, i)))
    return o
def scheck(r, c):
    b = r.buf(c, 0); t = r.vF; l = r.lbl()
    test = [f"v_max3_u32 v{t}, v{b}, v{b+1}, v{b+2}", f"v_max3_u32 v{t+1}, v{b+3}, v{b+4}, v{b+5}"]
    for i in range(6, 16 if c == 2 else 8, 2): test.append(f"v_max3_u32 v{t+(i>>1&1)}, v{t+(i>>1&1)}, v{b+i}, v{b+i+1}")
    test += [f"v_max_u32 v{t}, v{t}, v{t+1}", f"v_cmp_eq_u32 vcc, -1, v{t}"]
    pl = pload(r, c)
    return tick(r, f"c{c}a") + [("wv", [("rp", c, 3)])] + tick(r, f"c{c}b") + test + [f"s_movk_i32 s{sT0+4}, 0x4000", f"s_cbranch_vccz {l}d"] + pl[:2] + [
        f"{l}:", "s_mov_b64 exec, vcc"] + [o[1] for o in pl[2:(6 if c == 2 else 4)]] + ["s_mov_b64 exec, -1", "s_waitcnt vmcnt(0)",
        f"s_sub_u32 s{sT0+4}, s{sT0+4}, 1", f"s_cbranch_scc1 {l}d"] + test + [f"s_cbranch_vccnz {l}", f"{l}d:"] + raw(r, f"Rc{c}n", sT0 + 4) + tick(r, f"c{c}c")
def publish(r, b):
    return [f"v_mov_b32 v{r.vFV}, 1", ("wv", [("st", b)])] + one(("vm", f"buffer_store_byte v{r.vFV}, off, s[{SWS}:{SWS+3}], s{sMYF}{SC}", "fl"))
def cpublish(r, b):
    return [f"s_add_u32 s{sT0}, s{sXID}, {b+1}", f"v_mov_b32 v{r.vFV}, s{sT0}", ("wv", [("st", b)])] + \
        one(dual(r, f"buffer_store_dword v{r.vFV}, off, s[{SWS}:{SWS+3}], s{sCF}", "fl"))
def store_ops(r, j, acc, SREG):
    ops = []
    for hf in range(2):
        ops += [f"v_cvt_pk_bf16_f32 v{SREG+i}, v{acc+2*i}, v{acc+2*i+1}" for i in range(4 * hf, 4 * hf + 4)]
        ins = f"buffer_store_dwordx4 {vr(SREG+4*hf,4)}, v{vXA}, s[{SWS}:{SWS+3}], s{G.sST2 if j < 6 else sST} offen offset:{1024*hf}"
        ops.append(dual(r, ins, ("st", j)) if j < 6 else ("vm", ins + SC, ("st", j)))
    return ops

def pre(r):
    A = L()
    A(("wv", ["raff"]))
    for k in range(3):
        x = 40 + 8 * k
        A(f"v_add_u32 v{x+6}, s{sDB+k}, v{r.vD}")
        A(("lds", f"ds_read_b64 {vr(x,2)}, v{r.vTK} offset:{512*k}", ("xd", k)))
        A(("lds", f"ds_read_b64 {vr(x+2,2)}, v{x+6}", ("xd", k)))
        A(("lds", f"ds_read_b64 {vr(x+4,2)}, v{x+6} offset:2048", ("xd", k)))
    for k in range(3):
        X, Dd, x = 72 + 12 * k, 76 + 12 * k, 40 + 8 * k
        A(("wl", [("xd", k)]))
        for j in range(6):
            A(f"v_lshlrev_b32 v{X+2*j}, 16, v{x+j}"); A(f"v_and_b32 v{X+2*j+1}, 0xffff0000, v{x+j}")
        for e in range(4): A(f"v_sub_f32 v{x+e}, v{X+e}, v{r.AFF}")
        for e in range(4): A(f"v_mul_f32 v{x+e}, v{x+e}, v{r.AFF+1}")
        for e in range(4): A(f"v_mul_f32 v{Dd+e}, v{Dd+e}, v{x+e}")
    return list(A)

def epi(r, k, ow):
    A = L()
    X, S, B, O = 72 + 12 * k, 76 + 12 * k, 80 + 12 * k, 16 + 4 * k
    A.extend(tick(r, f"m{k}a"))
    for i in range(4):
        A(("wv", [("rp", k, i)]))
        a = O if i < 2 else S
        A(f"v_mfma_f32_16x16x32_bf16 {vr(a,4)}, {vr(r.SEL[i&1],4)}, {vr(r.buf(k,i),4)}, {'0' if i == 0 else vr(a,4)}")
    A.extend(tick(r, f"m{k}b"))
    E = range(4)
    A(f"s_lshl_b32 s{sT0}, s{sDB+k}, 1")
    for e in E: A(f"v_fma_f32 v{O+e}, v{O+e}, s{sT0+2}, v{B+e}")
    for e in E: A(f"v_mul_f32 v{B+e}, s{sT0+3}, v{O+e}")
    for e in E: A(f"v_exp_f32 v{B+e}, v{B+e}")
    for e in E: A(f"v_mul_f32 v{O+e}, v{O+e}, v{S+e}")
    for e in E: A(f"v_add_f32 v{B+e}, 1.0, v{B+e}")
    for e in E: A(f"v_rcp_f32 v{B+e}, v{B+e}")
    for e in E: A(f"v_fma_f32 v{O+e}, v{O+e}, v{B+e}, v{X+e}")
    A(("vm", f"buffer_store_dwordx4 {vr(O,4)}, v{r.vO}, s[{SO}:{SO+3}], s{sT0} offen{ow}", "out"))
    return list(A)

def plan(r, slots, P2, NK, opt):
    def put(j, k, ops, key="x"): slots[P2 + j * NK + k].setdefault(key, []).extend(ops)
    TK[0] = opt.stamps % 3
    CH = opt.ch * G.PLANE
    for j in range(9): put(j, 0, tick(r, f"S{j}"), "pre")
    if r.tag == "s":
        put(7, 1, publish(r, 5))
        return
    put(8, opt.ff, fload(r))
    G.spread(slots, P2 + 2 * NK + 2, P2 + 2 * NK + 14, setup(r), "x")
    put(2, 20, xload(r))
    for j in range(6): put(j + 1, opt.cp, cpublish(r, j))
    nxt = lambda d, n: [f"s_add_u32 s{d}, s{sST}, {32768*n}", f"s_cmp_ge_u32 s{d}, {9*32768}", f"s_cselect_b32 s{d+1}, {9*32768}, 0", f"s_sub_u32 s{d}, s{d}, s{d+1}", f"s_add_u32 s{d}, s{d}, {CH}"]
    for j in range(3, 9):
        P = r.P if j < 8 else r.LB
        put(j - 1, 9 if j < 8 else 8, one(("vm", cl(r), "rc")))
        ld = [("vm", f"buffer_load_dwordx4 {vr(P+4*h,4)}, v{vXA}, s[{SWS}:{SWS+3}], s{sT0+2} offen offset:{1024*h}{SC}", ("P", j)) for h in range(2)]
        if j < 8: put(j, 0, ccheck(r, j) + nxt(sT0 + 2, 1) + ld[:1]); put(j, opt.p2, ld[1:])
        else: put(7, 13, ccheck(r, j) + nxt(sT0 + 2, 2) + ld)
        acc = G.ACC[j & 1]
        for h in range(2):
            put(j, opt.pm + 2 * h, [("wv", [("P", j)]), f"v_mfma_f32_32x32x16_bf16 {vr(acc,16)}, {vr(r.PU+4*h,4)}, {vr(P+4*h,4)}, {vr(acc,16)}"], "valu")
    t = r.PU + 8
    sel = [f"v_bfe_u32 v{t}, v{vLANE}, 3, 2", f"v_bfe_u32 v{t+1}, v{vLANE}, 1, 1", f"v_lshl_add_u32 v{t}, v{t}, 1, v{t+1}",
           f"v_lshrrev_b32 v{t+1}, 3, v{vLANE}", f"v_xor_b32 v{t+1}, v{t+1}, v{vLANE}", f"v_and_b32 v{t+1}, 4, v{t+1}",
           f"v_lshl_add_u32 v{t}, v{t+1}, 2, v{t}",
           f"v_and_b32 v{t+1}, 1, v{vLANE}", f"v_lshlrev_b32 v{t+1}, 4, v{t+1}", f"v_mov_b32 v{t+2}, 0x3f80", f"v_lshlrev_b32 v{t+1}, v{t+1}, v{t+2}"]
    for i in range(8): sel += [f"v_cmp_eq_u32 vcc, {i}, v{t}", f"v_cndmask_b32 v{r.PU+i}, 0, v{t+1}, vcc"]
    G.spread(slots, P2 + NK + 7, P2 + NK + 20, sel)
    if opt.prio: put(8, 0, [f"s_setprio {opt.prio}"])

def tail(A, r, opt):
    ow = SC if opt.owt else ""
    def E(ops):
        for o in ops: A.op(o)
    if r.tag == "m":
        E(tick(r, "p1a"))
        if opt.prio: A("s_setprio 0")
        A(f"s_mov_b32 s{sT0+2}, {hexf(1.0/KSC)}"); A(f"s_mov_b32 s{sT0+3}, {hexf(-math.log2(math.e))}")
        E(check(r))
        E(pload(r, 0)); E(pload(r, 1))
        E(pre(r))
        A.op(("wv", [("st", 8)]))
        E(tick(r, "p2b"))
        E(pload(r, 2))
        for c in range(3):
            E(scheck(r, c)); E(epi(r, c, ow))
    if opt.stamps % 3:
        E(tick(r, "end"))
        A(f"s_sub_u32 s{sT0}, s65, {G.WS_STAMP}"); A(f"s_lshl_b32 s{sT0}, s{sT0}, 1"); A(f"s_add_u32 s{sT0}, s{sT0}, {G.WS_STAMP + 262144}")
        A(f"v_lshlrev_b32 v14, 2, v{vLANE}")
        A(f"buffer_store_dword v15, v14, s[{SWS}:{SWS+3}], s{sT0} offen")
        open(f"names_{r.tag}.txt", "w").write(" ".join(r.names))
```

```python
import sys, math
from asmlib import *

NAME = "recurrent_scan__ssm_conv_s5__mixer_channel_mlp__prompt"
HDR = open("cdna_kernels/" + NAME + ".s.ref").read().split("; Override launch")[0]

C0 = -2.0 * math.log2(math.e) * math.sqrt(2.0 / math.pi)
C1 = C0 * 0.044715
KSC = -((-C1) ** (1.0 / 3.0))
C0K = C0 / KSC
PLANE = 2048 * 576 * 2
WS_AFF = 16 * PLANE
WS_E = WS_AFF + 256 * 1024
EROW = 1280
WS_FLAG = WS_E + 4 * 16 * EROW
FSTR = 4352
WS_STAMP = WS_FLAG + 128 * FSTR + 4096
WS_F2 = WS_STAMP + 65536 * 16
WS_SIZE = WS_F2 + 128 * 24576
BUFSZ = 73728
LDS_Y = 73728
LDS_B1 = 155648
LDS_ET = 147456
LDS_KT = 156672

sW, sTG, sFG, sMT, sSL = 3, 4, 5, 6, 7
SX, SA, SB, SWS, SM = 8, 12, 16, 20, 24
sT0 = 28
sD1 = 40
sD2 = 50
sROT, sROT2, sCOL, sM0A, sST, sDP, sC0K, sONE, sM0W = 56, 57, 58, 59, 60, 61, 62, 63, 64
sFLG = 39
sLOC, sCF, sCP, sXID, sG = 70, 71, 72, 73, 74
sST2 = 75
sMYF = 63
sPTR = 66
def kp(i): return sPTR + 2 * i

vLANE = 1
vDMA, vDMA2 = 2, 3
vTR = 4
vB1 = 7
vXA = 8
ACC = [16, 32]
ABUF = 48
TMP = 64
HOWN = 72
YB = 112

class Opt:
    stamps = False
    ssm = True
    nost = False
    newmap = 1
    owt = 0
    pf = 1
    ff = 1
    fu = 50
    f7 = 22
    f6 = 23
    forcefb = 0
    cp = 15
    po = 0
    clk = 0
    yw = 2
    ov = 1
    b3 = 3
    b4 = 9
    yr = 4
    la = 1
    xl = 1
    xr = 1
    pst = 0
    lsp = 4
    ds = 4
    sp = 6
    p2 = 0
    pm = 17
    prio = 0
    pfb = 1
    ch = 8
    cpos = [27, 31, 36 + 22, 72 + 22, 108 + 22, 144 + 22]

def stamp(A, opt, idx):
    if not opt.stamps or opt.stamps == 3: return
    if opt.stamps == 2:
        A(f"s_memrealtime s[100:101]"); A("s_waitcnt lgkmcnt(0)"); A.lq = []
        A(f"s_mov_b32 s{SB0[0]+idx}, s100"); return
    A(f"s_memtime s[100:101]")
    A("s_waitcnt lgkmcnt(0)")
    A.lq = []
    A(f"v_mov_b32 v0, s100")
    A(f"s_memrealtime s[100:101]")
    A.vm(f"buffer_store_dword v0, off, s[{SWS}:{SWS+3}], s65 offset:{4*idx}", "stamp")
    A("s_waitcnt lgkmcnt(0)")
    A(f"v_mov_b32 v0, s100")
    A.vm(f"buffer_store_dword v0, off, s[{SWS}:{SWS+3}], s65 offset:{4*idx+64}", "stamp")

PST = []
SB0 = [76]
def pstamp(A, opt, idx):
    if not opt.stamps or opt.stamps >= 2: return
    A(f"s_memtime s[100:101]")
    A("s_waitcnt lgkmcnt(0)")
    A.lq = []
    A(f"v_mov_b32 v{56+idx-5}, s100")

def pflush(A, opt, idxs):
    if not opt.stamps or opt.stamps >= 2: return
    for idx in idxs:
        A.vm(f"buffer_store_dword v{56+idx-5}, off, s[{SWS}:{SWS+3}], s65 offset:{4*idx}", "stamp")

def rstamp(A, opt, idx, srdr=SWS, soff="s65", drain=True):
    if not opt.stamps: return
    if drain: A("s_waitcnt vmcnt(0)")
    A(f"s_memrealtime s[100:101]")
    A("s_waitcnt lgkmcnt(0)")
    A.lq = []
    A(f"v_mov_b32 v0, s100")
    A.vm(f"buffer_store_dword v0, off, s[{srdr}:{srdr+3}], {soff} offset:{4*idx}", "stamp")
    if opt.stamps >= 2:
        for i in range(0, 8 if opt.stamps == 2 else 1):
            A(f"v_mov_b32 v{2+i}, s{SB0[0]+i}")
            A(f"buffer_store_dword v{2+i}, off, s[{srdr}:{srdr+3}], {soff} offset:{4*i+64}")

def srd(A, d, p, nrec, lower=0):
    if lower:
        A(f"s_sub_u32 s{d}, s{p}, {lower}")
        A(f"s_subb_u32 s{d+1}, s{p+1}, 0")
    else:
        A(f"s_mov_b32 s{d}, s{p}")
        A(f"s_mov_b32 s{d+1}, s{p+1}")
    A(f"s_mov_b32 s{d+2}, {nrec + lower}")
    A(f"s_mov_b32 s{d+3}, 0x20000")

def Rreg(e, c):
    if c < 5: return 216 + (c * 2 + e) * 4
    return 72 + ((c - 5) * 2 + e) * 4

def bf16r(A, d, s):
    A(f"v_cvt_pk_bf16_f32 v{d}, v{s}, v{s}")
    A(f"v_and_b32 v{d}, 0xffff0000, v{d}")

sWX = 61
def x_issue(A, track):
    for c in range(9):
        for e in range(2):
            ins = f"buffer_load_dwordx4 {vr(Rreg(e,c),4)}, v8, s[{SX}:{SX+3}], s{sT0+e} offen offset:{c*128}"
            if track: A.vm(ins, ("x", c, e))
            else: A(ins)

def x_loads(A, opt):
    A(f"v_lshrrev_b32 v8, 3, v{vLANE}")
    A(f"s_lshl_b32 s{sT0}, s{sWX}, 4")
    A(f"v_add_u32 v8, s{sT0}, v8")
    A(f"v_mul_u32_u24 v8, 1152, v8")
    A(f"v_and_b32 v9, 7, v{vLANE}")
    A(f"v_lshl_add_u32 v8, v9, 4, v8")
    A(f"s_mul_i32 s{sT0}, s{sMT}, 147456")
    A(f"s_add_u32 s{sT0+1}, s{sT0}, 9216")
    if opt.xl:
        A(f"s_cmp_lg_u32 s{sFG}, 0"); A("s_cbranch_scc1 L_x0")
        x_issue(A, False)
        A("L_x0:")
    else: x_issue(A, True)

def dma1(A, stage, i):
    ops = []
    if i % 4 == 0:
        ops.append(f"s_add_u32 m0, s{sM0W}, {(stage & 1) * BUFSZ + i * 1024}")
        ops.append("s_nop 0")
    ops.append(("vm", f"buffer_load_dwordx4 v{vDMA2}, s[{SA}:{SA+3}], s{sD1+i} offen offset:{(i % 4) * 1024} lds", ("d1", stage)))
    return ops

class Rec(list):
    def __call__(s, x): s.append(x)
    def op(s, x): s.append(x)
    def vm(s, x, t=None): s.append(("vm", x, t))
    def lds(s, x, t=None): s.append(("lds", x, t))

def overlap0(slots, opt, dma):
    n = 0
    for c in range(5, 9 - opt.yw):
        for e in range(2):
            slots[n // 2].setdefault("x", []).append(("lds", f"ds_write_b128 v{10+e}, {vr(Rreg(e,c),4)} offset:{(c-5)*16384}", "yw")); n += 1
    b3, b4 = opt.b3, opt.b4
    slots[b3].setdefault("bar", []).extend([("wl", ["yw"]), "s_barrier"])
    for i, s in enumerate(range(20, 36)):
        slots[b3 + i // opt.yr].setdefault("x", []).append(("lds", f"ds_read_b128 {vr(YB+4*s,4)}, v{12+(s&3)} offset:{((s>>2)-5)*16384}", ("y", s)))
    slots[b4].setdefault("bar", []).extend([("wl", [("y", 35)]), "s_barrier"])
    for i, d in enumerate(dma): slots[b4 + i].setdefault("dma", []).extend(d)

def ln_prologue(A, opt, mlp, late=(), pre2=()):
    SUM = [16, 17]; SQ = [18, 19]
    for r in SUM + SQ: A(f"v_mov_b32 v{r}, 0")
    for e in range(2):
        d = 10 + e
        A(f"v_lshrrev_b32 v20, 3, v{vLANE}")
        A(f"s_lshl_b32 s{sT0+2}, s{sWX}, 4")
        A(f"s_add_u32 s{sT0+2}, s{sT0+2}, {8*e}")
        A(f"v_add_u32 v20, s{sT0+2}, v20")
        if not mlp:
            A(f"v_and_b32 v21, 0x63, v20")
            A(f"v_bfe_u32 v22, v20, 2, 2")
            A(f"v_lshl_or_b32 v21, v22, 3, v21")
            A(f"v_bfe_u32 v22, v20, 4, 1")
            A(f"v_lshl_or_b32 v20, v22, 2, v21")
        A(f"v_bfe_u32 v21, v20, 1, 3")
        A(f"v_and_b32 v22, 7, v{vLANE}")
        A(f"v_xor_b32 v21, v21, v22")
        A(f"v_lshlrev_b32 v21, 4, v21")
        A(f"v_lshl_add_u32 v{d}, v20, 7, v21")
        A(f"v_add_u32 v{d}, {LDS_Y}, v{d}")
    A(f"v_and_b32 v20, 31, v{vLANE}")
    A(f"v_bfe_u32 v21, v20, 1, 3")
    A(f"v_lshrrev_b32 v22, 5, v{vLANE}")
    A(f"v_xor_b32 v21, v21, v22")
    A(f"v_lshlrev_b32 v21, 4, v21")
    A(f"s_lshl_b32 s{sT0+2}, s{sTG}, 5")
    A(f"v_add_u32 v20, s{sT0+2}, v20")
    A(f"v_lshl_add_u32 v12, v20, 7, v21")
    A(f"v_add_u32 v12, {LDS_Y}, v12")
    for i in range(1, 4): A(f"v_xor_b32 v{12+i}, {32*i}, v12")
    pstamp(A, opt, 10)
    if opt.xl:
        A(f"s_cmp_eq_u32 s{sFG}, 0"); A(f"s_cbranch_scc1 L_x1{int(mlp)}")
        x_issue(A, True)
        A(f"L_x1{int(mlp)}:")
    for c in range(9):
        A.wait(vm=[("x", c, 1)])
        if c == 0: pstamp(A, opt, 11)
        if c == 8: pstamp(A, opt, 12)
        if mlp and opt.pst == 1 and c in (0, 8): stamp(A, opt, 6 + c // 8)
        for j in range(4):
            for e in range(2):
                r = Rreg(e, c) + j
                A(f"v_dot2c_f32_bf16 v{SUM[e]}, s{sONE}, v{r}")
                A(f"v_dot2c_f32_bf16 v{SQ[e]}, v{r}, v{r}")
    A("s_nop 2")
    for mode in ("quad_perm:[1,0,3,2]", "quad_perm:[2,3,0,1]", "row_half_mirror"):
        for r in SUM + SQ:
            A(f"v_add_f32_dpp v{r}, v{r}, v{r} {mode} row_mask:0xf bank_mask:0xf")
    inv = hexf(1.0 / 576.0); eps = hexf(1e-5)
    late = list(late); cnt = [0]
    def both(f):
        for e in range(2): A(f(e))
        cnt[0] += 1
        if late and not opt.la and cnt[0] % opt.lsp == 0:
            for o in late.pop(0): A.op(o)
    both(lambda e: f"v_mul_f32 v{20+e}, {inv}, v{SUM[e]}")
    both(lambda e: f"v_mul_f32 v{22+e}, {inv}, v{SQ[e]}")
    both(lambda e: f"v_fma_f32 v{22+e}, -v{20+e}, v{20+e}, v{22+e}")
    both(lambda e: f"v_max_f32 v{22+e}, 0, v{22+e}")
    def rnd(d, s):
        both(lambda e: f"v_cvt_pk_bf16_f32 v{d+e}, v{s+e}, v{s+e}")
        both(lambda e: f"v_and_b32 v{d+e}, 0xffff0000, v{d+e}")
    rnd(24, 20)
    rnd(26, 22)
    both(lambda e: f"v_add_f32 v{26+e}, {eps}, v{26+e}")
    rnd(26, 26)
    both(lambda e: f"v_sqrt_f32 v{26+e}, v{26+e}")
    rnd(26, 26)
    both(lambda e: f"v_rcp_f32 v{28+e}, v{26+e}")
    A(f"v_lshrrev_b32 v34, 3, v{vLANE}")
    A(f"s_lshl_b32 s{sT0+3}, s{sWX}, 4")
    A(f"v_add_u32 v34, s{sT0+3}, v34")
    A(f"v_lshlrev_b32 v34, 3, v34")
    A(f"v_mov_b32 v36, v24"); A(f"v_mov_b32 v38, v25"); A(f"v_mov_b32 v37, v28"); A(f"v_mov_b32 v39, v29")
    A(f"s_lshl_b32 s{sT0+2}, s2, 10"); A(f"s_add_u32 s{sT0+2}, s{sT0+2}, {WS_AFF}")
    A.vm(f"buffer_store_dwordx2 v[36:37], v34, s[{SWS}:{SWS+3}], s{sT0+2} offen", "aff")
    A.vm(f"buffer_store_dwordx2 v[38:39], v34, s[{SWS}:{SWS+3}], s{sT0+2} offen offset:64", "aff")
    A("s_nop 1")
    if mlp:
        both(lambda e: f"v_sub_f32 v{30+e}, v{20+e}, v{24+e}")
        both(lambda e: f"v_mul_f32 v{30+e}, v{30+e}, v{28+e}")
        rnd(30, 30)
        both(lambda e: f"v_mul_f32 v{32+e}, v{28+e}, v{28+e}")
        both(lambda e: f"v_mul_f32 v{32+e}, v{32+e}, v{22+e}")
        rnd(32, 32)
        both(lambda e: f"v_add_f32 v{32+e}, {eps}, v{32+e}")
        rnd(32, 32)
        both(lambda e: f"v_sqrt_f32 v{32+e}, v{32+e}")
        rnd(32, 32)
        both(lambda e: f"v_rcp_f32 v{32+e}, v{32+e}")
        both(lambda e: f"v_fma_f32 v{24+e}, v{30+e}, v{26+e}, v{24+e}")
        both(lambda e: f"v_mul_f32 v{28+e}, v{28+e}, v{32+e}")
        both(lambda e: f"v_mul_f32 v{28+e}, {hexf(KSC)}, v{28+e}")
    rnd(34, 28)
    both(lambda e: f"v_lshrrev_b32 v{36+e}, 16, v{34+e}")
    both(lambda e: f"v_mul_f32 v{38+e}, v{34+e}, v{24+e}")
    both(lambda e: f"v_sub_f32 v{38+e}, 0, v{38+e}")
    def norm(e, c):
        b = Rreg(e, c)
        T = 40
        for j in range(4):
            A(f"v_dot2_f32_bf16 v{T+2*j}, v{b+j}, v{36+e}, v{38+e}")
            A(f"v_dot2_f32_bf16 v{T+2*j+1}, v{b+j}, v{34+e}, v{38+e}")
        A("s_nop 0")
        for j in range(4):
            if j == 3: A("s_nop 0")
            A(f"v_cvt_pk_bf16_f32 v{b+j}, v{T+2*j}, v{T+2*j+1}")
    def ywrite(e, c, slot):
        if slot < 4:
            A.lds(f"ds_write_b128 v{10+e}, {vr(Rreg(e,c),4)} offset:{slot*16384}", "yw")
        else:
            A(f"v_add_u32 v48, 0x10000, v{10+e}")
            A.lds(f"ds_write_b128 v48, {vr(Rreg(e,c),4)}", "yw")
    def yread(s, slot):
        if slot < 4:
            A.lds(f"ds_read_b128 {vr(YB+4*s,4)}, v{12+(s&3)} offset:{slot*16384}", ("y", s))
        else:
            A(f"v_add_u32 v48, 0x10000, v{12+(s&3)}")
            A.lds(f"ds_read_b128 {vr(YB+4*s,4)}, v48", ("y", s))
    def pop(n=99):
        while late and n > 0:
            n -= 1
            for o in late.pop(0): A.op(o)
    if not opt.la: pop()
    stamp(A, opt, 1)
    for c in range(5):
        for e in range(2):
            norm(e, c); ywrite(e, c, c)
            if opt.la == 1: pop(1)
    if opt.la in (1, 2): pop()
    A.wait_all()
    if mlp and opt.pst == 2 and 0 < 3: stamp(A, opt, 5)
    A("s_barrier")
    for s in range(20): yread(s, s >> 2)
    for c in range(5, 9):
        for e in range(2): norm(e, c); pop(1)
    pop()
    if opt.ov:
        for o in pre2: A.op(o)
        A.wait(vm=[("d1", 0)])
    A.wait_all()
    if mlp and opt.pst == 2 and 1 < 3: stamp(A, opt, 6)
    A("s_barrier")
    if opt.ov:
        stamp(A, opt, 2)
        for c in range(9 - opt.yw, 9):
            for e in range(2): ywrite(e, c, c - 5)
        return
    for c in range(5, 9):
        for e in range(2): ywrite(e, c, c - 5)
    A.wait_all()
    if mlp and opt.pst == 2 and 2 < 3: stamp(A, opt, 7)
    A("s_barrier")
    for s in range(20, 36): yread(s, (s >> 2) - 5)
    A.wait_all()
    if mlp and opt.pst == 2 and 3 < 3: stamp(A, opt, 8)
    A("s_barrier")
    stamp(A, opt, 2)
    pflush(A, opt, [8, 9, 10, 11, 12])

def cost(o):
    s = o if isinstance(o, str) else o[1]
    if isinstance(s, str) and s.startswith(("v_exp", "v_rcp")): return 8
    if isinstance(s, str) and s.startswith(("v_cvt", "v_dot")) or "dpp" in str(s): return 4
    return 3

def spread(slots, lo, hi, ops, key="valu"):
    tot = sum(cost(o) for o in ops)
    acc = 0
    glue = False
    for o in ops:
        if not glue: j = lo + int(acc * (hi - lo) / tot)
        glue = isinstance(o, str) and o.startswith(("s_cmp", "v_cmp"))
        slots[j].setdefault(key, []).append(o)
        acc += cost(o)

def gelu_ops(acc, dst, grp=4):
    ops = []
    for g0 in range(0, 16, grp):
        es = range(g0, g0 + grp)
        T = lambda e: TMP + (e % 8)
        for e in es: ops.append(f"v_fma_f32 v{T(e)}, v{acc+e}, v{acc+e}, s{sC0K}")
        for e in es: ops.append(f"v_mul_f32 v{T(e)}, v{T(e)}, v{acc+e}")
        for e in es: ops.append(f"v_exp_f32 v{T(e)}, v{T(e)}")
        for e in es: ops.append(f"v_add_f32 v{T(e)}, 1.0, v{T(e)}")
        for e in es: ops.append(f"v_rcp_f32 v{T(e)}, v{T(e)}")
        for e in es: ops.append(f"v_mul_f32 v{T(e)}, v{T(e)}, v{acc+e}")
        for e in es[::2]: ops.append(f"v_cvt_pk_bf16_f32 v{dst + e//2}, v{T(e)}, v{T(e+1)}")
    return ops

def emit_slots(A, slots):
    for s in slots:
        for k in ("pre",):
            for o in s.get(k, []): A.op(o)
        if s.get("mfma"): A(s["mfma"])
        for k in ("bar", "rd", "dma", "x", "valu"):
            for o in s.get(k, []): A.op(o)

WT = " sc0 sc1"
def store_ops(acc, SREG, tag):
    ops = [f"v_cvt_pk_bf16_f32 v{SREG+i}, v{acc+2*i}, v{acc+2*i+1}" for i in range(8)]
    ops.insert(4, ("vm", f"buffer_store_dwordx4 {vr(SREG,4)}, v{vXA}, s[{SWS}:{SWS+3}], s{sST} offen{WT}", tag))
    ops.append(("vm", f"buffer_store_dwordx4 {vr(SREG+4,4)}, v{vXA}, s[{SWS}:{SWS+3}], s{sST} offen offset:1024{WT}", tag))
    return ops

def announce(lbl, val=1):
    return [f"s_cmp_lg_u32 s{sW}, 0", f"s_cbranch_scc1 {lbl}",
            f"s_lshl_b32 s{sT0}, s{sMT}, 4", f"s_add_u32 s{sT0}, s{sT0}, s{sSL}",
            f"v_mov_b32 v0, {val}", "s_mov_b64 exec, 1",
            f"buffer_store_byte v0, off, s[{SM}:{SM+3}], s{sT0} sc0 sc1", "s_mov_b64 exec, -1", f"{lbl}:"]

def clear_flag(A, mlp=False):
    A(f"s_lshl_b32 s{sT0}, s{sMT}, 3"); A(f"s_add_u32 s{sT0}, s{sT0}, s{sW}")
    A(f"s_mul_i32 s{sFLG}, s{sT0}, {FSTR}"); A(f"s_add_u32 s{sFLG}, s{sFLG}, {WS_FLAG}")
    if mlp: return
    A(f"s_add_u32 s{sMYF}, s{sSL}, s{sFLG}")
    A(f"v_mov_b32 v9, 0")
    A("s_mov_b64 exec, 1")
    A.vm(f"buffer_store_byte v9, off, s[{SWS}:{SWS+3}], s{sMYF} sc0 sc1", "clr")
    A("s_mov_b64 exec, -1")

def check_all(A, lbl, vt, pat="0x01010101"):
    A(f"v_lshlrev_b32 v{vt}, 2, v{vLANE}")
    A(f"s_movk_i32 s{sT0}, 0x4000")
    A(f"{lbl}:")
    A(f"buffer_load_dword v{vt+1}, v{vt}, s[{SM}:{SM+3}], 0 offen sc0 sc1")
    A(f"s_sub_u32 s{sT0}, s{sT0}, 1")
    A(f"s_cbranch_scc1 {lbl}_d")
    A("s_waitcnt vmcnt(0)")
    A(f"v_and_b32 v{vt+1}, {pat}, v{vt+1}")
    A(f"v_cmp_ne_u32 vcc, {pat}, v{vt+1}")
    A(f"s_cbranch_vccnz {lbl}")
    A(f"{lbl}_d:")
    A("s_waitcnt vmcnt(0)")

def mlp_path(A, opt):
    D = 3
    if opt.pst == 1: stamp(A, opt, 5)
    srd(A, SA, kp(10), 5308416)
    srd(A, SB, kp(12), 5308416, lower=4096)
    srd(A, SM, kp(11), 9216)
    A(f"s_mul_i32 s{sT0+2}, s{sMT}, 43"); A(f"s_lshr_b32 s{sT0+2}, s{sT0+2}, 8")
    A(f"s_mul_i32 s{sT0+2}, s{sT0+2}, 6"); A(f"s_sub_u32 s{sROT}, s{sMT}, s{sT0+2}")
    A(f"s_mul_i32 s{sG}, s{sSL}, 11"); A(f"s_lshr_b32 s{sG}, s{sG}, 5")
    A(f"s_mul_i32 s{sT0+2}, s{sG}, 3"); A(f"s_sub_u32 s{sCF}, s{sSL}, s{sT0+2}")
    A(f"s_mul_i32 s{sT0+2}, s{sCF}, 3"); A(f"s_add_u32 s{sROT2}, s{sMT}, 9"); A(f"s_sub_u32 s{sROT2}, s{sROT2}, s{sT0+2}")
    for _ in range(2):
        A(f"s_cmp_ge_u32 s{sROT2}, 9"); A(f"s_cselect_b32 s{sT0+2}, 9, 0"); A(f"s_sub_u32 s{sROT2}, s{sROT2}, s{sT0+2}")
    A(f"s_sub_u32 s{sCP}, s{sCF}, 1"); A(f"s_cselect_b32 s{sCP}, 2, s{sCP}")
    A(f"s_getreg_b32 s{sXID}, hwreg(HW_REG_XCC_ID, 0, 4)"); A(f"s_lshl_b32 s{sXID}, s{sXID}, 8")
    if opt.forcefb: A(f"s_lshl_b32 s{sXID}, s{sCF}, 8")
    for i in range(9): A(f"s_mov_b32 s{sD1+i}, {i*73728 - (i%4)*1024}")
    A(f"s_mul_i32 s{sM0W}, s{sW}, 9216")
    A(f"v_bfe_u32 v9, v{vLANE}, 2, 3")
    A(f"v_lshrrev_b32 v10, 5, v{vLANE}")
    A(f"v_and_b32 v11, 3, v{vLANE}")
    A(f"v_lshlrev_b32 v11, 4, v11")
    A(f"v_lshl_add_u32 v10, v10, 6, v11")
    A(f"v_mul_u32_u24 v{vDMA}, 9216, v9")
    A(f"v_add_u32 v{vDMA}, v{vDMA}, v10")
    A(f"s_mul_i32 s{sT0+2}, s{sW}, {72*9216}")
    A(f"s_mul_i32 s{sT0+3}, s{sSL}, 768")
    A(f"s_add_u32 s{sT0+2}, s{sT0+2}, s{sT0+3}")
    A(f"v_add_u32 v{vDMA}, s{sT0+2}, v{vDMA}")
    A(f"s_lshl_b32 s{sCOL}, s{sROT}, 7")
    A(f"v_add_u32 v{vDMA2}, s{sCOL}, v{vDMA}")
    late = [dma1(A, 0, i) for i in range(9)]
    if not opt.lsp:
        for l in late:
            for o in l: A.op(o)
        late = []
    def nextcol():
        return [f"s_add_u32 s{sCOL}, s{sCOL}, 128", f"s_cmp_ge_u32 s{sCOL}, 768", f"s_cselect_b32 s{sCOL}, 0, s{sCOL}",
                f"v_add_u32 v{vDMA2}, s{sCOL}, v{vDMA}"]
    A(f"s_mul_i32 s{sT0+2}, s{sSL}, 768")
    A(f"v_lshl_add_u32 v49, v0, 1, s{sT0+2}")
    late.append([("vm", f"buffer_load_ushort v49, v49, s[{SM}:{SM+3}], 0 offen", "b1")])
    A(f"v_lshrrev_b32 v9, 5, v{vLANE}"); A("v_lshlrev_b32 v9, 10, v9")
    A(f"v_bfe_u32 v10, v{vLANE}, 2, 2"); A("v_lshl_add_u32 v9, v10, 6, v9")
    A(f"v_bfe_u32 v10, v{vLANE}, 4, 1"); A("v_lshl_add_u32 v9, v10, 5, v9")
    A(f"v_and_b32 v10, 3, v{vLANE}"); A("v_lshl_add_u32 v9, v10, 3, v9")
    A(f"s_lshl_b32 s{sT0+2}, s{sFG}, 9")
    A(f"v_add_u32 v{vTR}, s{sT0+2}, v9")
    A(f"v_add_u32 v{vTR+1}, 0x10000, v{vTR}")
    A(f"v_add_u32 v{vTR+2}, 0x20000, v{vTR}")
    A(f"v_lshrrev_b32 v9, 5, v{vLANE}")
    A(f"s_lshl_b32 s{sT0+2}, s{sFG}, 7"); A(f"s_add_u32 s{sT0+2}, s{sT0+2}, {LDS_B1}")
    A(f"v_lshl_add_u32 v{vB1}, v9, 4, s{sT0+2}")
    A(f"s_mov_b32 s{sC0K}, {hexf(C0K)}")
    A(f"s_mul_i32 s{sT0+2}, s{sW}, 6")
    A(f"s_mul_i32 s{sT0+6}, s{sSL}, {384*1152}")
    for i in range(6):
        A(f"s_add_u32 s{sT0+3}, s{sT0+2}, {i}")
        A(f"s_lshr_b32 s{sT0+4}, s{sT0+3}, 3")
        A(f"s_add_u32 s{sT0+4}, s{sT0+4}, s{sROT}")
        A(f"s_cmp_ge_u32 s{sT0+4}, 6"); A(f"s_cselect_b32 s{sT0+5}, 6, 0"); A(f"s_sub_u32 s{sT0+4}, s{sT0+4}, s{sT0+5}")
        A(f"s_lshl_b32 s{sT0+4}, s{sT0+4}, 3")
        A(f"s_and_b32 s{sT0+3}, s{sT0+3}, 7")
        A(f"s_add_u32 s{sT0+4}, s{sT0+4}, s{sT0+3}")
        A(f"s_mul_i32 s{sT0+4}, s{sT0+4}, 9216")
        A(f"s_add_u32 s{sT0+4}, s{sT0+4}, s{sT0+6}")
        A(f"s_add_u32 s{sD2+i}, s{sT0+4}, {4096 - (i%4)*1024}")
    A(f"s_sub_u32 s{sT0+2}, s{sW}, s{sROT}")
    A(f"s_cmp_lt_i32 s{sT0+2}, 0"); A(f"s_cselect_b32 s{sT0+3}, 6, 0"); A(f"s_add_u32 s{sT0+2}, s{sT0+2}, s{sT0+3}")
    A(f"s_lshl_b32 s{sT0+2}, s{sT0+2}, 8"); A(f"s_add_u32 s{sT0+2}, s{sT0+2}, {LDS_B1}")
    A(f"s_cmp_ge_u32 s{sW}, 6"); A(f"s_cselect_b32 s{sT0+2}, {LDS_B1 + 2048}, s{sT0+2}")
    A(f"v_lshl_add_u32 v50, v{vLANE}, 2, s{sT0+2}")

    ln_prologue_pre = len(A.L)
    R = Rec()
    R(("wv", ["b1"]))
    R("v_lshlrev_b32 v49, 16, v49")
    R(f"v_mul_f32 v49, {hexf(KSC)}, v49")
    R.lds("ds_write_b32 v50, v49", "b1w")
    srd(R, SM, kp(15), 256)
    clear_flag(R, True)
    R(f"s_lshl_b32 s{sT0}, s{sG}, 7"); R(f"s_add_u32 s{sT0}, s{sT0}, 128"); R(f"s_add_u32 s{sLOC}, s{sT0}, s{sFLG}")
    R(f"s_lshl_b32 s{sCF}, s{sCF}, 2"); R(f"s_add_u32 s{sCF}, s{sCF}, s{sLOC}")
    R(f"s_lshl_b32 s{sCP}, s{sCP}, 2"); R(f"s_add_u32 s{sCP}, s{sCP}, s{sLOC}")
    R(f"v_mov_b32 v9, s{sXID}"); R("s_mov_b64 exec, 1")
    R.vm(f"buffer_store_dword v9, off, s[{SWS}:{SWS+3}], s{sCF} sc0 sc1", "clr")
    R("s_mov_b64 exec, -1")
    for o in nextcol(): R.op(o)
    ln_prologue(A, opt, True, late, R)
    if not opt.ov:
        for o in R: A.op(o)
        for i in range(9):
            for o in dma1(A, 1, i): A.op(o)
        A.wait(lds=["b1w"], vm=[("d1", 0)])
        A("s_barrier")

    HP = YB
    H5 = YB + 48
    SREG = YB + 56
    vP2 = YB + 64
    vHX = YB + 70
    def hown(t): return HOWN + 8 * t if t < 5 else H5
    korder = [("o", t, kk) for t in range(5) for kk in range(2)] + [("p", t, kk) for t in range(4) for kk in range(2)] + \
             [("o", 5, 0), ("o", 5, 1)] + [("p", t, kk) for t in (4, 5) for kk in range(2)]
    units = []
    for s in range(6):
        for k in range(36): units.append((1, s, k))
    for j in range(9):
        for k in range(24): units.append((2, j, k))
    NU = len(units)
    def rd(u):
        ph, s, k = units[u]
        b = ABUF + 4 * (u % 4)
        if ph == 1:
            pos = (s & 1) * BUFSZ + k * 2048
            return [("lds", f"ds_read_b64_tr_b16 {vr(b+2*r,2)}, v{vTR + ((pos + r*256) >> 16)} offset:{(pos + r*256) & 0xffff}", ("a", u)) for r in range(2)]
        who, t, kk = korder[k]
        areg = vP2 + (s % 3) * 2 + (0 if who == "o" else 1)
        return [("lds", f"ds_read_b64_tr_b16 {vr(b+2*r,2)}, v{areg} offset:{(8*t + 2*kk + r) * 1024}", ("a", u)) for r in range(2)]
    def b1rd(s):
        return [("lds", f"ds_read_b128 {vr(ACC[s&1] + 4*j, 4)}, v{vB1} offset:{s*256 + j*32}", ("b1", s)) for j in range(4)]
    slots = []
    for u, (ph, s, k) in enumerate(units):
        b = ABUF + 4 * (u % 4)
        acc = ACC[s & 1]
        sl = {}
        w = [("a", u)]
        if ph == 1:
            if k == 0: w.append(("b1", s))
            sl["mfma"] = f"v_mfma_f32_32x32x16_bf16 {vr(acc,16)}, {vr(b,4)}, {vr(YB+4*k,4)}, {vr(acc,16)}"
        else:
            who, t, kk = korder[k]
            hb = (hown(t) if who == "o" else HP + 8 * t) + 4 * kk
            if who == "p": w.append(("hx", t))
            sl["mfma"] = f"v_mfma_f32_32x32x16_bf16 {vr(acc,16)}, {vr(b,4)}, {vr(hb,4)}, {'0' if k == 0 else vr(acc,16)}"
        sl["pre"] = [("wl", w)]
        slots.append(sl)
    for u in range(NU - D):
        ph, s, k = units[u + D]
        if k == 0:
            slots[u]["bar"] = [("wv", [("d1", s) if ph == 1 else ("d2", s)]), "s_barrier"]
        slots[u]["rd"] = rd(u + D)
    P2 = 216
    if opt.ov: overlap0(slots, opt, [dma1(A, 1, i) for i in range(9)])
    slots[36 + 16].setdefault("x", []).extend(announce("L_ann_m"))
    for s in range(2, 6):
        base = (s - 1) * 36 - 2
        slots[base].setdefault("dma", []).extend(nextcol())
        for i in range(9): slots[base + 1 + 2 * i].setdefault("dma", []).extend(dma1(A, s, i))
    def dma2(j, i):
        ops = []
        if i % 4 == 0:
            ops += [f"s_add_u32 m0, s{sM0A}, {(j % 3) * 49152 + i * 1024}", "s_nop 0"]
        ops.append(("vm", f"buffer_load_dwordx4 v{vDMA2}, s[{SB}:{SB+3}], s{sD2+i} offen offset:{(i%4)*1024} lds", ("d2", j)))
        return ops
    def nextdp(first):
        if first:
            return [f"s_mul_i32 s{sM0A}, s{sW}, 6144",
                    f"v_bfe_u32 v9, v{vLANE}, 2, 3", f"v_lshrrev_b32 v10, 5, v{vLANE}", f"v_and_b32 v11, 3, v{vLANE}",
                    "v_lshlrev_b32 v11, 4, v11", "v_lshl_add_u32 v10, v10, 6, v11",
                    f"v_mul_u32_u24 v{vDMA}, 1152, v9", f"v_add_u32 v{vDMA}, v{vDMA}, v10",
                    f"s_lshl_b32 s{sCOL}, s{sROT2}, 7", f"v_add_u32 v{vDMA2}, s{sCOL}, v{vDMA}"]
        return [f"s_add_u32 s{sCOL}, s{sCOL}, 128", f"s_cmp_ge_u32 s{sCOL}, 1152", f"s_cselect_b32 s{sCOL}, 0, s{sCOL}",
                f"v_add_u32 v{vDMA2}, s{sCOL}, v{vDMA}"]
    d2base = {0: 5 * 36 - 2, 1: P2 - 2, 2: P2 + 24 - 2, 3: P2 + 24 + 10}
    for j in range(4, 9): d2base[j] = P2 + (j - 2) * 24 + 9
    for j in range(9):
        base = d2base[j]
        slots[base].setdefault("dma", []).extend(nextdp(j == 0))
        for i in range(6): slots[base + 1 + (2 * i if j < 4 else (opt.ds * i) // 4)].setdefault("dma", []).extend(dma2(j, i))
    for s in range(1, 6):
        spread(slots, s * 36 + 2, s * 36 + 31, gelu_ops(ACC[(s - 1) & 1], hown(s - 1)))
    for s in range(1, 6):
        slots[s * 36 - 5].setdefault("x", []).extend(b1rd(s))
    spread(slots, P2 + 2, P2 + 15, gelu_ops(ACC[1], H5))
    S5 = 5 * 36
    setup = [f"v_lshlrev_b32 v9, 4, v{vLANE}",
             f"s_lshl_b32 s{sT0+2}, s{sW}, 11", f"s_add_u32 s{sT0+2}, s{sT0+2}, 49152",
             f"v_add_u32 v{vHX}, s{sT0+2}, v9", f"v_add_u32 v{vHX+1}, {147456-49152}, v{vHX}",
             f"v_xor_b32 v{vHX+2}, 0x2000, v{vHX}", f"v_add_u32 v{vHX+3}, {147456-49152}, v{vHX+2}",
             f"v_lshrrev_b32 v9, 5, v{vLANE}", "v_lshlrev_b32 v9, 8, v9",
             f"v_bfe_u32 v10, v{vLANE}, 2, 2", "v_lshl_add_u32 v9, v10, 6, v9",
             f"v_and_b32 v10, 1, v{vLANE}", "v_lshl_add_u32 v9, v10, 5, v9",
             f"v_bfe_u32 v10, v{vLANE}, 1, 1", "v_lshl_add_u32 v9, v10, 3, v9",
             f"v_bfe_u32 v10, v{vLANE}, 4, 1", "v_lshl_add_u32 v9, v10, 4, v9",
             f"s_mul_i32 s{sT0+2}, s{sFG}, {4096+512}",
             f"v_add_u32 v{vP2}, s{sT0+2}, v9", f"v_xor_b32 v{vP2+1}, 0x1000, v{vP2}",
             f"v_add_u32 v{vP2+2}, 49152, v{vP2}", f"v_add_u32 v{vP2+3}, 49152, v{vP2+1}",
             f"v_add_u32 v{vP2+4}, 98304, v{vP2}", f"v_add_u32 v{vP2+5}, 98304, v{vP2+1}",
             f"v_and_b32 v9, 31, v{vLANE}", f"v_lshrrev_b32 v10, 5, v{vLANE}", "v_lshlrev_b32 v9, 5, v9",
             f"v_lshl_add_u32 v{vXA}, v10, 4, v9",
             f"s_lshl_b32 s{sT0+2}, s{sMT}, 2", f"s_add_u32 s{sT0+2}, s{sT0+2}, s{sTG}",
             f"s_mul_i32 s{sT0+2}, s{sT0+2}, {18*16384}", f"s_mul_i32 s{sT0+3}, s{sG}, 2048",
             f"s_add_u32 s{sT0+2}, s{sT0+2}, s{sT0+3}", f"s_lshl_b32 s{sT0+3}, s{sFG}, 14",
             f"s_add_u32 s{sT0+2}, s{sT0+2}, s{sT0+3}", f"v_add_u32 v{vXA}, s{sT0+2}, v{vXA}",
             f"s_lshl_b32 s{sST}, s{sROT2}, 15", f"s_add_u32 s{sST2}, s{sST}, {opt.ch*PLANE}"]
    spread(slots, S5 + 19, S5 + 23, setup[:7], "x")
    spread(slots, S5 + 25, S5 + 32, setup[7:], "x")
    def hw(t):
        a, off = (vHX, t * 16384) if t < 3 else ((vHX + 1, 0) if t == 3 else (vHX, 49152 + (t - 4) * 16384))
        if off + 1024 > 65535: return None
        return [("lds", f"ds_write_b128 v{a}, {vr(hown(t)+4*kk,4)} offset:{off + kk*1024}", ("hw", t)) for kk in range(2)]
    def hr(t):
        a, off = (vHX + 2, t * 16384) if t < 3 else ((vHX + 3, 0) if t == 3 else (vHX + 2, 49152 + (t - 4) * 16384))
        return [("lds", f"ds_read_b128 {vr(HP+8*t+4*kk,4)}, v{a} offset:{off + kk*1024}", ("hx", t)) for kk in range(2)]
    slots[S5 + 22].setdefault("bar", []).append("s_barrier")
    for t in range(4): slots[S5 + 23 + t].setdefault("x", []).extend(hw(t))
    slots[S5 + 29].setdefault("bar", []).extend([("wl", [("hw", 3)]), "s_barrier"])
    for t in range(4): slots[S5 + 29 + t].setdefault("x", []).extend(hr(t))
    slots[S5 + 33]["bar"].insert(0, ("wl", [("hx", 3)]))
    slots[P2 + 1].setdefault("x", []).extend(hw(4))
    slots[P2 + 2].setdefault("x", []).extend([f"v_add_u32 v{vHX+1}, 0x10000, v{vHX}", f"v_add_u32 v{vHX+3}, 0x10000, v{vHX+2}"])
    slots[P2 + 15].setdefault("x", []).extend(
        [("lds", f"ds_write_b128 v{vHX+1}, {vr(H5+4*kk,4)} offset:{kk*1024}", ("hw", 5)) for kk in range(2)])
    slots[P2 + 17].setdefault("bar", []).extend([("wl", [("hw", 5)]), "s_barrier"])
    slots[P2 + 17].setdefault("x", []).extend(hr(4) +
        [("lds", f"ds_read_b128 {vr(HP+40+4*kk,4)}, v{vHX+3} offset:{kk*1024}", ("hx", 5)) for kk in range(2)])
    slots[P2 + 21]["bar"].insert(0, ("wl", [("hx", 5)]))
    import red
    rr = red.R("m")
    nextst = [f"s_add_u32 s{sST}, s{sST}, 32768", f"s_cmp_ge_u32 s{sST}, {9*32768}", f"s_cselect_b32 s{sST}, 0, s{sST}", f"s_add_u32 s{sST2}, s{sST}, {opt.ch*PLANE}"]
    for j in range(1, 9):
        so = red.store_ops(rr, j - 1, ACC[(j - 1) & 1], SREG)
        if j == 7:
            late = [o for o in so if not isinstance(o, str)]
            so = [o for o in so if isinstance(o, str)]
            slots[P2 + j * 24 + 14].setdefault("valu", []).append(late[0])
            slots[P2 + j * 24 + 15].setdefault("valu", []).extend([late[1]] + nextst)
            spread(slots, P2 + j * 24 + 2, P2 + j * 24 + 6, so)
        else:
            spread(slots, P2 + j * 24 + 2, P2 + j * 24 + opt.sp, so + nextst)
    red.plan(rr, slots, P2, 24, opt)
    slots[4 * 36 + 20].setdefault("dma", []).extend(red.one(("vm", f"buffer_load_dwordx4 v[12:15], off, s[{SWS}:{SWS+3}], s{sLOC} sc0 sc1", "xid")))
    slots[5 * 36 + 12].setdefault("x", []).extend([("wv", ["xid"]), "v_xor_b32 v13, v12, v13", "v_xor_b32 v14, v12, v14", "v_or_b32 v13, v13, v14",
        "s_nop 0", f"v_readfirstlane_b32 s{sLOC}, v13", f"s_and_b32 s{sLOC}, s{sLOC}, 0xf00"])
    if opt.pf:
        pf = [f"s_and_b32 s{sT0}, s{sMT}, 7", f"s_lshl_b32 s{sT0}, s{sT0}, 3", f"s_add_u32 s{sT0}, s{sT0}, s{sW}",
              f"s_mul_i32 s{sT0}, s{sT0}, {54*128}", f"s_mul_i32 s{sT0+1}, s{sSL}, {384*1152}", f"s_add_u32 s{sT0}, s{sT0}, s{sT0+1}",
              f"s_add_u32 s{sT0}, s{sT0}, 4096", f"v_lshlrev_b32 v14, 6, v{vLANE}",
              ("vm", f"buffer_load_dword v15, v14, s[{SB}:{SB+3}], s{sT0} offen", "pf")]
        slots[2 * 36 + 18].setdefault("dma", []).extend(pf)
        pf[-3] = f"s_add_u32 s{sT0}, s{sT0}, 8192"
        slots[3 * 36 + 18].setdefault("dma", []).extend(pf)
    slots[3 * 36 - 2]["dma"] = [f"s_cmp_lg_u32 s{sW}, 0", "s_cbranch_scc1 L_hs0", f"v_lshlrev_b32 v12, 2, v{vLANE}",
        f"buffer_load_dword v13, v12, s[{SM}:{SM+3}], 0 offen sc0 sc1", "L_hs0:"] + slots[3 * 36 - 2]["dma"]
    B = Asm(); check_all(B, "L_hs2", 12)
    slots[4 * 36 - D]["bar"][1:1] = [f"s_cmp_lg_u32 s{sW}, 0", "s_cbranch_scc1 L_hs1",
        "v_and_b32 v13, 0x01010101, v13", "v_cmp_ne_u32 vcc, 0x01010101, v13", "s_cbranch_vccz L_hs1"] + B.L + ["L_hs1:"]
    cs = [f"v_and_b32 v104, 31, v{vLANE}", f"v_lshrrev_b32 v105, 5, v{vLANE}", "v_lshlrev_b32 v104, 5, v104", "v_lshl_add_u32 v108, v105, 4, v104",
          f"s_lshl_b32 s{sT0+2}, s{sMT}, 2", f"s_add_u32 s{sT0+2}, s{sT0+2}, s{sTG}",
          f"s_mul_i32 s{sT0+2}, s{sT0+2}, {18*16384}", f"s_mul_i32 s{sT0+3}, s{sG}, 2048",
          f"s_add_u32 s{sT0+2}, s{sT0+2}, s{sT0+3}", f"s_lshl_b32 s{sT0+3}, s{sFG}, 14",
          f"s_add_u32 s{sT0+2}, s{sT0+2}, s{sT0+3}", f"v_add_u32 v108, s{sT0+2}, v108"] + [f"v_mov_b32 v{104+i}, -1" for i in range(4)]
    spread(slots, 17, 25, cs, "x")
    for i, pos in enumerate(opt.cpos):
        slots[pos].setdefault("dma", []).extend([f"s_add_u32 s{sT0+8}, s{sROT2}, {6 + i//2}", f"s_cmp_ge_u32 s{sT0+8}, 9", f"s_cselect_b32 s{sT0+9}, 9, 0",
            f"s_sub_u32 s{sT0+8}, s{sT0+8}, s{sT0+9}", f"s_lshl_b32 s{sT0+8}, s{sT0+8}, 15",
            ("vm", f"buffer_store_dwordx4 v[104:107], v108, s[{SWS}:{SWS+3}], s{sT0+8} offen offset:{(i&1)*1024} sc0 sc1", "clr2")])
    slots[P2 + 10].setdefault("x", []).extend(announce("L_ann_m2", 3))
    q = P2 + 5 * 24 + 9
    B = Asm(); srd(B, SM, kp(15), 256)
    slots[q - 1].setdefault("x", []).extend(B.L)
    slots[q]["dma"] = [f"s_cmp_lg_u32 s{sW}, 0", "s_cbranch_scc1 L_hs3", f"v_lshlrev_b32 v12, 2, v{vLANE}",
        f"buffer_load_dword v13, v12, s[{SM}:{SM+3}], 0 offen sc0 sc1", "L_hs3:"] + slots[q]["dma"]
    B = Asm(); check_all(B, "L_hs5", 12, "0x02020202")
    slots[P2 + 7 * 24 - D]["bar"][1:1] = [f"s_cmp_lg_u32 s{sW}, 0", "s_cbranch_scc1 L_hs4",
        "v_and_b32 v13, 0x02020202, v13", "v_cmp_ne_u32 vcc, 0x02020202, v13", "s_cbranch_vccz L_hs4"] + B.L + ["L_hs4:"]
    if opt.pst == 3:
        for i in range(3): slots[36 * (i + 1 + opt.po)]["pre"] = ["s_memrealtime s[100:101]", ("wall", True, False), f"s_mov_b32 s{76+5+i}, s100"] + slots[36 * (i + 1 + opt.po)]["pre"]
    for o in b1rd(0): A.op(o)
    for u in range(D):
        for o in rd(u): A.op(o)
    emit_slots(A, slots[:P2])
    stamp(A, opt, 3)
    emit_slots(A, slots[P2:])
    A("s_nop 7"); A("s_nop 3")
    for o in red.store_ops(rr, 8, ACC[0], SREG): A.op(o)
    stamp(A, opt, 4)
    red.tail(A, rr, opt)
    rstamp(A, opt, 14)
    A("s_endpgm")

def main_kernel(A, opt):
    K = NAME + "_kernel"
    A(f".globl {K}"); A(".p2align 8"); A(f".type {K},@function"); A(f"{K}:")
    A("s_cmp_ge_u32 s2, 256")
    A("s_cbranch_scc1 L_exit")
    A(f"s_load_dwordx16 s[{68}:{83}], s[0:1], 0")
    A(f"s_load_dwordx16 s[{84}:{99}], s[0:1], 64")
    A(f"s_load_dwordx2 s[{66}:{67}], s[0:1], 128")
    if opt.stamps: A("s_memtime s[100:101]"); A("s_memrealtime s[44:45]")
    A(f"v_lshrrev_b32 v2, 6, v0")
    A(f"v_and_b32 v{vLANE}, 63, v0")
    A(f"v_readfirstlane_b32 s{sW}, v2")
    A(f"s_and_b32 s{sT0}, s2, 7"); A(f"s_lshr_b32 s{sT0+1}, s2, 3")
    if opt.newmap:
        A(f"s_lshr_b32 s{sT0+2}, s{sT0}, 1")
        A(f"s_and_b32 s{sT0+3}, s{sT0+1}, 3")
        A(f"s_mul_i32 s{sSL}, s{sT0+2}, 3"); A(f"s_add_u32 s{sSL}, s{sSL}, s{sT0+3}")
        A(f"s_add_u32 s{sT0+2}, s{sT0+2}, 12")
        A(f"s_cmp_eq_u32 s{sT0+3}, 3"); A(f"s_cselect_b32 s{sSL}, s{sT0+2}, s{sSL}")
        A(f"s_and_b32 s{sT0}, s{sT0}, 1"); A(f"s_lshl_b32 s{sT0}, s{sT0}, 3")
        A(f"s_lshr_b32 s{sMT}, s{sT0+1}, 2"); A(f"s_add_u32 s{sMT}, s{sMT}, s{sT0}")
    else:
        A(f"s_lshl_b32 s{sSL}, s{sT0}, 1"); A(f"s_and_b32 s{sT0+2}, s{sT0+1}, 1"); A(f"s_add_u32 s{sSL}, s{sSL}, s{sT0+2}")
        A(f"s_lshr_b32 s{sMT}, s{sT0+1}, 1")
    A(f"s_and_b32 s{sTG}, s{sW}, 3"); A(f"s_lshr_b32 s{sFG}, s{sW}, 2")
    A(f"s_mov_b32 s{sONE}, 0x3f803f80")
    A(f"s_lshr_b32 s{sWX}, s2, 1"); A(f"s_and_b32 s{sWX}, s{sWX}, {4 if opt.xr else 0}"); A(f"s_xor_b32 s{sWX}, s{sWX}, s{sW}")
    A("s_waitcnt lgkmcnt(0)")
    if opt.stamps: A("v_mov_b32 v15, s100")
    pstamp(A, opt, 8)
    srd(A, SX, kp(0), 2359296)
    srd(A, SWS, 66, WS_SIZE)
    x_loads(A, opt)
    pstamp(A, opt, 9)
    if opt.stamps:
        A(f"s_lshl_b32 s65, s2, 3"); A(f"s_add_u32 s65, s65, s{sW}"); A("s_lshl_b32 s65, s65, 7"); A(f"s_add_u32 s65, s65, {WS_STAMP}")
        if opt.stamps == 1:
            A.vm(f"buffer_store_dword v15, off, s[{SWS}:{SWS+3}], s65", "stamp")
            A(f"v_mov_b32 v15, s44")
            A.vm(f"buffer_store_dword v15, off, s[{SWS}:{SWS+3}], s65 offset:64", "stamp")
    A(f"s_cmp_ge_u32 s{sSL}, 12")
    A("s_cbranch_scc1 L_ssm")
    saved = (list(A.lq), list(A.vq))
    if opt.stamps: A("s_mov_b32 s76, s44")
    mlp_path(A, opt)
    A("L_ssm:")
    if opt.stamps: A("s_mov_b32 s86, s44")
    A.lq, A.vq = saved
    if opt.ssm:
        import gen2_ssm
        SB0[0] = 86
        gen2_ssm.ssm_path(A, opt)
        rstamp(A, opt, 14)
    A("L_exit:")
    A("s_endpgm")

def kp(i):
    return 68 + 2 * i

def kdesc(A, K, nv):
    A(".p2align 6")
    A(f".amdhsa_kernel {K}")
    A(f"  .amdhsa_next_free_vgpr {nv}")
    A("  .amdhsa_next_free_sgpr 102")
    A(f"  .amdhsa_accum_offset {nv}")
    A("  .amdhsa_group_segment_fixed_size 0")
    A("  .amdhsa_kernarg_size 136")
    A("  .amdhsa_user_sgpr_count 2")
    A("  .amdhsa_user_sgpr_kernarg_segment_ptr 1")
    A("  .amdhsa_system_sgpr_workgroup_id_x 1")
    A(".end_amdhsa_kernel")

def build(opt):
    A = Asm()
    A(HDR.rstrip("\n"))
    A("; @launch grid=(256,1,1) block=(512,1,1) lds=163840")
    A('.amdgcn_target "amdgcn-amd-amdhsa--gfx950"')
    A(".text")
    n0 = len(A.L)
    main_kernel(A, opt)
    A.lq = []; A.vq = []
    A.L[n0:], errs = check_hazards(A.L[n0:], fix=True)
    for e in errs[:0]: print(e, file=sys.stderr)
    A('.section .rodata,"a"')
    kdesc(A, NAME + "_kernel", 256)
    return A.text(), errs

if __name__ == "__main__":
    sys.modules["gen2"] = sys.modules["__main__"]
    opt = Opt()
    out = sys.argv[1] if len(sys.argv) > 1 else "k.s"
    for a in sys.argv[2:]:
        k, v = a.split("=")
        setattr(opt, k, int(v))
    t, errs = build(opt)
    if opt.clk: t = t.replace("s_memrealtime", "s_memtime")
    open(out, "w").write(t)
    print(out, len(t.splitlines()), "lines", len(errs), "hazards")
```

```python
import math
from asmlib import *
import gen2 as G
from gen2 import sW, sTG, sFG, sMT, sSL, SX, SA, SM, SWS, sT0, sROT2, sFLG, sMYF, sST, vXA, vLANE, WS_AFF, KSC, kp, srd, stamp
from gen2 import sLOC, sCF, sCP, sXID

sDB = 44
SD, SO = SM, SA
SC = " sc0 sc1"
LX = 147456
LD = LX + 12288
class R:
    def __init__(s, tag):
        s.SEL = [192, 196]
        s.vPL, s.vTK, s.vD, s.vO = 200, 201, 202, 203
        s.vFV = 204 if tag == "m" else 60
        s.vC = 205
        s.vFA = 191 if tag == "m" else 61
        s.AFF = 206
        s.vF = 188
        s.P, s.PU = 208, 216
        s.LB = 232
        s.tag = tag; s.n = 0; s.names = []; s.early = 0
    def buf(s, c, i):
        if s.early:
            if c == 0: return 240 + 4 * i
            if c == 1 and i >= 2: return 208 + 4 * (i - 2)
        return (s.LB if c == 0 else 112 + 16 * c) + 4 * i
    def lbl(s):
        s.n += 1; return f"L_r{s.tag}{s.n}"
class L(list):
    def __call__(s, x): s.append(x)
TK = [0]
def tick(r, name):
    if not TK[0] or (TK[0] == 2 and name[0] not in "SZe") or name[0] == "k": return []
    r.names.append(name)
    return ["s_memrealtime s[100:101]", "s_waitcnt lgkmcnt(0)", f"v_writelane_b32 v15, s100, {len(r.names)-1}"]

CH = 8 * G.PLANE
def dbs(A, dst, stride, sh):
    A(f"s_lshr_b32 s{sT0}, s{sSL}, 2"); A(f"s_mul_i32 s{sT0}, s{sT0}, 3"); A(f"s_add_u32 s{sT0}, s{sT0}, s{sMT}")
    A(f"s_cmp_ge_u32 s{sT0}, 9"); A(f"s_cselect_b32 s{sT0+1}, 9, 0"); A(f"s_sub_u32 s{sT0}, s{sT0}, s{sT0+1}")
    for c in range(3):
        A(f"s_cmp_ge_u32 s{sT0}, 9"); A(f"s_cselect_b32 s{sT0+1}, 9, 0"); A(f"s_sub_u32 s{sT0}, s{sT0}, s{sT0+1}")
        A(f"s_lshl_b32 s{dst+stride*c}, s{sT0}, {sh}"); A(f"s_add_u32 s{sT0}, s{sT0}, 1")
def sent_clear():
    A = L()
    dbs(A, sT0 + 4, 2, 15)
    for c in range(3): A(f"s_add_u32 s{sT0+5+2*c}, s{sT0+4+2*c}, 8192")
    A(f"v_lshrrev_b32 v52, 4, v{vLANE}"); A(f"v_and_b32 v53, 15, v{vLANE}"); A(f"v_lshlrev_b32 v53, 4, v53")
    A(f"v_lshl_add_u32 v51, v52, 11, v53")
    A(f"s_lshl_b32 s{sT0}, s{sMT}, 2"); A(f"s_add_u32 s{sT0}, s{sT0}, s{sTG}")
    A(f"s_mul_i32 s{sT0+1}, s{sT0}, 18"); A(f"s_add_u32 s{sT0+1}, s{sT0+1}, s{sFG}"); A(f"s_lshl_b32 s{sT0+1}, s{sT0+1}, 6")
    A(f"s_and_b32 s{sT0}, s{sSL}, 3"); A(f"s_add_u32 s{sT0+1}, s{sT0+1}, s{sT0}"); A(f"s_lshl_b32 s{sT0+1}, s{sT0+1}, 8")
    A(f"v_add_u32 v51, s{sT0+1}, v51")
    for i in range(4): A(f"v_mov_b32 v{52+i}, -1")
    st = [("vm", f"buffer_store_dwordx4 v[52:55], v51, s[{SWS}:{SWS+3}], s{sT0+4+(i>>1)} offen offset:{(i&1)*1024}{SC}", "clr") for i in range(12)]
    return list(A), st

def setup(r):
    A = L(); t = r.LB
    srd(A, SO, kp(14), 4718592)
    A(f"s_cmp_ge_u32 s{sTG}, 2"); A(f"s_cselect_b64 s[{SD}:{SD+1}], s[{kp(13)}:{kp(13)+1}], s[{kp(8)}:{kp(8)+1}]")
    A(f"s_movk_i32 s{SD+2}, 1152")
    dbs(A, sDB, 1, 7)
    A(f"v_and_b32 v{t}, 1, v{vLANE}"); A(f"v_lshlrev_b32 v{t}, 4, v{t}")
    A(f"s_movk_i32 s{sT0}, 0x3f80"); A(f"v_lshlrev_b32 v{t}, v{t}, s{sT0}")
    A(f"v_bfe_u32 v{t+1}, v{vLANE}, 1, 3")
    for i in range(8):
        A(f"v_cmp_eq_u32 vcc, {i}, v{t+1}"); A(f"v_cndmask_b32 v{r.SEL[0]+i}, 0, v{t}, vcc")
    A(f"v_lshrrev_b32 v{t+2}, 4, v{vLANE}"); A(f"v_and_b32 v{t+3}, 15, v{vLANE}"); A(f"v_lshlrev_b32 v{t+3}, 4, v{t+3}")
    A(f"v_lshl_add_u32 v{r.vPL}, v{t+2}, 11, v{t+3}")
    A(f"s_lshl_b32 s{sT0}, s{sMT}, 2"); A(f"s_add_u32 s{sT0}, s{sT0}, s{sTG}")
    A(f"s_mul_i32 s{sT0+1}, s{sT0}, 18"); A(f"s_add_u32 s{sT0+1}, s{sT0+1}, s{sFG}"); A(f"s_lshl_b32 s{sT0+1}, s{sT0+1}, 6")
    A(f"s_and_b32 s{sT0+2}, s{sSL}, 3"); A(f"s_add_u32 s{sT0+1}, s{sT0+1}, s{sT0+2}"); A(f"s_lshl_b32 s{sT0+1}, s{sT0+1}, 8")
    A(f"v_add_u32 v{r.vPL}, s{sT0+1}, v{r.vPL}")
    A(f"v_and_b32 v{t+3}, 1, v{vLANE}"); A(f"v_lshlrev_b32 v{t+3}, 5, v{t+3}"); A(f"v_lshl_add_u32 v{t+3}, v{t+2}, 3, v{t+3}")
    A(f"v_lshl_add_u32 v{r.vTK}, v{t+1}, 6, v{t+3}")
    A(f"s_mul_i32 s{sT0+1}, s{sW}, 1536"); A(f"s_add_u32 s{sT0+1}, s{sT0+1}, {LX}"); A(f"v_add_u32 v{r.vTK}, s{sT0+1}, v{r.vTK}")
    A(f"s_lshl_b32 s{sT0+1}, s{sFG}, 6"); A(f"v_add_u32 v{t+3}, s{sT0+1}, v{t+3}"); A(f"v_add_u32 v{r.vD}, {LD}, v{t+3}")
    A(f"s_lshl_b32 s{sT0}, s{sT0}, 2"); A(f"s_add_u32 s{sT0}, s{sT0}, s{sT0+2}"); A(f"s_lshl_b32 s{sT0}, s{sT0}, 3")
    A(f"v_add_u32 v{t+1}, s{sT0}, v{t+1}"); A(f"v_mul_u32_u24 v{r.vO}, 1152, v{t+1}")
    A(f"v_add_u32 v{r.vO}, v{r.vO}, v{t+3}"); A(f"v_lshlrev_b32 v{r.vO}, 1, v{r.vO}")
    A(f"v_and_b32 v{t+1}, 127, v{t+1}"); A(f"v_lshlrev_b32 v{t+1}, 3, v{t+1}")
    A(f"s_mul_i32 s{sT0+3}, s{sT0}, 1152"); A(f"s_add_u32 s{sT0+3}, s{sT0+3}, s{sT0+1}")
    A(f"s_lshl_b32 s{sT0}, s2, 10"); A(f"s_add_u32 s{sT0}, s{sT0}, {WS_AFF}")
    A(("vm", f"buffer_load_dwordx2 {vr(r.AFF,2)}, v{t+1}, s[{SWS}:{SWS+3}], s{sT0} offen", "raff"))
    return list(A)

def xload(r):
    t = r.LB + 4
    return [f"v_bfe_u32 v{t}, v{vLANE}, 2, 3", f"v_mul_u32_u24 v{t}, 1152, v{t}",
            f"v_and_b32 v{t+1}, 3, v{vLANE}", f"v_lshl_add_u32 v{t}, v{t+1}, 4, v{t}",
            f"s_sub_u32 s{sT0}, s{sDB+1}, s{sDB}", f"v_lshrrev_b32 v{t+1}, 5, v{vLANE}", f"v_mul_i32_i24 v{t+1}, s{sT0}, v{t+1}",
            f"v_add3_u32 v{t+1}, v{t+1}, s{sDB}, v{t}",
            f"s_mul_i32 s{sT0+1}, s{sW}, 1536", f"s_add_u32 m0, s{sT0+1}, {LX}", "s_nop 0",
            ("vm", f"buffer_load_dwordx4 v{t+1}, s[{SX}:{SX+3}], s{sT0+3} offen lds", "rx"),
            f"s_add_u32 s{sT0}, s{sT0+3}, s{sDB+2}", f"s_add_u32 m0, s{sT0+1}, {LX+1024}", "s_mov_b32 exec_hi, 0",
            ("vm", f"buffer_load_dwordx4 v{t}, s[{SX}:{SX+3}], s{sT0} offen lds", "rx"), "s_mov_b64 exec, -1",
            f"v_lshlrev_b32 v{t+2}, 4, v{vLANE}", f"s_and_b32 s{sT0}, s{sW}, 1", f"s_lshl_b32 s{sT0}, s{sT0}, 10",
            f"s_lshl_b32 s{sT0+1}, s{sTG}, 10", f"s_add_u32 m0, s{sT0+1}, {LD}", "s_nop 0",
            ("vm", f"buffer_load_dwordx4 v{t+2}, s[{SD}:{SD+3}], s{sT0} offen lds", "rx")]

def one(op): return ["s_mov_b64 exec, 1", op, "s_mov_b64 exec, -1"]
def raw(r, name, sreg):
    if TK[0] != 1 or name[1] == "k": return []
    r.names.append(name)
    return [f"v_writelane_b32 v15, s{sreg}, {len(r.names)-1}"]
def spin(r, nm, tag, ld, test, ex=["s_mov_b64 exec, 1"]):
    l = r.lbl()
    return tick(r, nm + "a") + [("wv", [tag])] + tick(r, nm + "b") + [f"s_movk_i32 s{sT0+1}, 0x4000"] + test + raw(r, "R" + nm + "f", sT0) + [f"s_cbranch_scc0 {l}d",
            f"{l}:"] + raw(r, "R" + nm + "l", sT0) + ex + [ld, "s_mov_b64 exec, -1"] + ["s_waitcnt vmcnt(0)", f"s_sub_u32 s{sT0+1}, s{sT0+1}, 1", f"s_cbranch_scc1 {l}d"] + test + [
            f"s_cbranch_scc1 {l}", f"{l}d:"] + raw(r, "R" + nm + "n", sT0 + 1) + tick(r, nm + "c")
def fl(r): return f"buffer_load_dword v{r.vF+2}, off, s[{SWS}:{SWS+3}], s{sFLG} offset:12{SC}"
def fload(r): return one(("vm", fl(r), "rf"))
def check(r):
    return spin(r, "cf", "rf", fl(r), [f"v_readfirstlane_b32 s{sT0}, v{r.vF+2}", f"s_andn2_b32 s{sT0}, 0x01010101, s{sT0}"])
def cl(r): return f"buffer_load_dword v{r.vC}, off, s[{SWS}:{SWS+3}], s{sCP}{SC}"
def ccheck(r, j):
    return spin(r, f"k{j}", "rc", cl(r), [f"v_readfirstlane_b32 s{sT0}, v{r.vC}", f"s_and_b32 s{sT0}, s{sT0}, 15", f"s_cmp_lt_u32 s{sT0}, {j-2}"])
def dual(r, ins, tag):
    l = r.lbl()
    return ("grp", [f"s_cmp_lg_u32 s{sLOC}, 0", f"s_cbranch_scc1 {l}", ("vm", ins, tag), f"s_branch {l}e", f"{l}:", ins + SC, f"{l}e:"])
def pload(r, c):
    o = [f"s_lshl_b32 s{sT0}, s{sDB+c}, 8", f"s_add_u32 s{sT0+1}, s{sT0}, 8192"]
    for i in range(4):
        o.append(("vm", f"buffer_load_dwordx4 {vr(r.buf(c,i),4)}, v{r.vPL}, s[{SWS}:{SWS+3}], s{sT0+(i>>1)} offen offset:{(i&1)*1024}{SC}", ("rp", c, i)))
    return o
def scheck(r, c):
    b = r.buf(c, 0); t = r.vF; l = r.lbl()
    test = [f"v_max3_u32 v{t}, v{b}, v{b+1}, v{b+2}", f"v_max3_u32 v{t+1}, v{b+3}, v{b+4}, v{b+5}"]
    for i in range(6, 16 if c == 2 else 8, 2): test.append(f"v_max3_u32 v{t+(i>>1&1)}, v{t+(i>>1&1)}, v{b+i}, v{b+i+1}")
    test += [f"v_max_u32 v{t}, v{t}, v{t+1}", f"v_cmp_eq_u32 vcc, -1, v{t}"]
    pl = pload(r, c)
    return tick(r, f"c{c}a") + [("wv", [("rp", c, i) for i in range(4 if c == 2 else 2)])] + tick(r, f"c{c}b") + test + [f"s_movk_i32 s{sT0+4}, 0x4000", f"s_cbranch_vccz {l}d"] + pl[:2] + [
        f"{l}:", "s_mov_b64 exec, vcc"] + [o[1] for o in pl[2:(6 if c == 2 else 4)]] + ["s_mov_b64 exec, -1", "s_waitcnt vmcnt(0)",
        f"s_sub_u32 s{sT0+4}, s{sT0+4}, 1", f"s_cbranch_scc1 {l}d"] + test + [f"s_cbranch_vccnz {l}", f"{l}d:"] + raw(r, f"Rc{c}n", sT0 + 4) + tick(r, f"c{c}c")
def publish(r, b):
    return [f"v_mov_b32 v{r.vFV}, 1", ("wv", [("st", b)])] + one(("vm", f"buffer_store_byte v{r.vFV}, off, s[{SWS}:{SWS+3}], s{sMYF}{SC}", "fl"))
def cpublish(r, b):
    return [f"s_add_u32 s{sT0}, s{sXID}, {b+1}", f"v_mov_b32 v{r.vFV}, s{sT0}", ("wv", [("st", b)])] + \
        one(dual(r, f"buffer_store_dword v{r.vFV}, off, s[{SWS}:{SWS+3}], s{sCF}", "fl"))
def store_ops(r, j, acc, SREG):
    ops = []
    for hf in range(2):
        ops += [f"v_cvt_pk_bf16_f32 v{SREG+i}, v{acc+2*i}, v{acc+2*i+1}" for i in range(4 * hf, 4 * hf + 4)]
        ins = f"buffer_store_dwordx4 {vr(SREG+4*hf,4)}, v{vXA}, s[{SWS}:{SWS+3}], s{G.sST2 if j < 6 else sST} offen offset:{1024*hf}"
        ops.append(dual(r, ins, ("st", j)) if j < 6 else ("vm", ins + SC, ("st", j)))
    return ops

def pre(r):
    A = L()
    A(("wv", ["raff"]))
    for k in range(3):
        x = 40 + 8 * k
        A(f"v_add_u32 v{x+6}, s{sDB+k}, v{r.vD}")
        A(("lds", f"ds_read_b64 {vr(x,2)}, v{r.vTK} offset:{512*k}", ("xd", k)))
        A(("lds", f"ds_read_b64 {vr(x+2,2)}, v{x+6}", ("xd", k)))
        A(("lds", f"ds_read_b64 {vr(x+4,2)}, v{x+6} offset:2048", ("xd", k)))
    for k in range(3):
        X, Dd, x = 72 + 12 * k, 76 + 12 * k, 40 + 8 * k
        A(("wl", [("xd", k)]))
        for j in range(6):
            A(f"v_lshlrev_b32 v{X+2*j}, 16, v{x+j}"); A(f"v_and_b32 v{X+2*j+1}, 0xffff0000, v{x+j}")
        for e in range(4): A(f"v_sub_f32 v{x+e}, v{X+e}, v{r.AFF}")
        for e in range(4): A(f"v_mul_f32 v{x+e}, v{x+e}, v{r.AFF+1}")
        for e in range(4): A(f"v_mul_f32 v{Dd+e}, v{Dd+e}, v{x+e}")
    return list(A)

def epi(r, k, ow):
    A = L()
    X, S, B, O = 72 + 12 * k, 76 + 12 * k, 80 + 12 * k, 16 + 4 * k
    A.extend(tick(r, f"m{k}a"))
    for i in range(4):
        A(("wv", [("rp", k, i)]))
        a = O if i < 2 else S
        A(f"v_mfma_f32_16x16x32_bf16 {vr(a,4)}, {vr(r.SEL[i&1],4)}, {vr(r.buf(k,i),4)}, {'0' if i == 0 else vr(a,4)}")
    A.extend(tick(r, f"m{k}b"))
    E = range(4)
    A(f"s_lshl_b32 s{sT0}, s{sDB+k}, 1")
    for e in E: A(f"v_fma_f32 v{O+e}, v{O+e}, s{sT0+2}, v{B+e}")
    for e in E: A(f"v_mul_f32 v{B+e}, s{sT0+3}, v{O+e}")
    for e in E: A(f"v_exp_f32 v{B+e}, v{B+e}")
    for e in E: A(f"v_mul_f32 v{O+e}, v{O+e}, v{S+e}")
    for e in E: A(f"v_add_f32 v{B+e}, 1.0, v{B+e}")
    for e in E: A(f"v_rcp_f32 v{B+e}, v{B+e}")
    for e in E: A(f"v_fma_f32 v{O+e}, v{O+e}, v{B+e}, v{X+e}")
    A(("vm", f"buffer_store_dwordx4 {vr(O,4)}, v{r.vO}, s[{SO}:{SO+3}], s{sT0} offen{ow}", "out"))
    return list(A)

def plan(r, slots, P2, NK, opt):
    def put(j, k, ops, key="x"): slots[P2 + j * NK + k].setdefault(key, []).extend(ops)
    TK[0] = opt.stamps % 3
    CH = opt.ch * G.PLANE
    for j in range(9): put(j, 0, tick(r, f"S{j}"), "pre")
    if r.tag == "s":
        put(7, 1, publish(r, 5))
        return
    put(8, opt.ff, fload(r))
    r.early = opt.e1
    if opt.e1:
        p0, p1 = pload(r, 0), pload(r, 1)
        put(8, opt.e1, check(r) + p0[:2] + p0[4:5]); put(8, opt.e1 + 1, p0[5:6])
        put(8, opt.e1 + 2, p1[:2] + p1[4:5]); put(8, opt.e1 + 3, p1[5:6])
        if opt.e0: put(8, opt.e0, p0[:3]); put(8, opt.e0 + 1, p0[3:4])
    G.spread(slots, P2 + 2 * NK + 2, P2 + 2 * NK + 14, setup(r), "x")
    put(2, 20, xload(r))
    for j in range(6): put(j + 1, opt.cp, cpublish(r, j))
    nxt = lambda d, n: [f"s_add_u32 s{d}, s{sST}, {32768*n}", f"s_cmp_ge_u32 s{d}, {9*32768}", f"s_cselect_b32 s{d+1}, {9*32768}, 0", f"s_sub_u32 s{d}, s{d}, s{d+1}", f"s_add_u32 s{d}, s{d}, {CH}"]
    for j in range(3, 9):
        P = r.P if j < 8 else r.LB
        put(j - 1, 9 if j < 8 else 8, one(("vm", cl(r), "rc")))
        ld = [("vm", f"buffer_load_dwordx4 {vr(P+4*h,4)}, v{vXA}, s[{SWS}:{SWS+3}], s{sT0+2} offen offset:{1024*h}{SC}", ("P", j)) for h in range(2)]
        if j < 8: put(j, 0, ccheck(r, j) + nxt(sT0 + 2, 1) + ld[:1]); put(j, opt.p2, ld[1:])
        else: put(7, 13, ccheck(r, j) + nxt(sT0 + 2, 2) + ld)
        acc = G.ACC[j & 1]
        for h in range(2):
            put(j, opt.pm + 2 * h, [("wv", [("P", j)]), f"v_mfma_f32_32x32x16_bf16 {vr(acc,16)}, {vr(r.PU+4*h,4)}, {vr(P+4*h,4)}, {vr(acc,16)}"], "valu")
    t = r.PU + 8
    sel = [f"v_bfe_u32 v{t}, v{vLANE}, 3, 2", f"v_bfe_u32 v{t+1}, v{vLANE}, 1, 1", f"v_lshl_add_u32 v{t}, v{t}, 1, v{t+1}",
           f"v_lshrrev_b32 v{t+1}, 3, v{vLANE}", f"v_xor_b32 v{t+1}, v{t+1}, v{vLANE}", f"v_and_b32 v{t+1}, 4, v{t+1}",
           f"v_lshl_add_u32 v{t}, v{t+1}, 2, v{t}",
           f"v_and_b32 v{t+1}, 1, v{vLANE}", f"v_lshlrev_b32 v{t+1}, 4, v{t+1}", f"v_mov_b32 v{t+2}, 0x3f80", f"v_lshlrev_b32 v{t+1}, v{t+1}, v{t+2}"]
    for i in range(8): sel += [f"v_cmp_eq_u32 vcc, {i}, v{t}", f"v_cndmask_b32 v{r.PU+i}, 0, v{t+1}, vcc"]
    G.spread(slots, P2 + NK + 7, P2 + NK + 20, sel)
    if opt.prio: put(8, 0, [f"s_setprio {opt.prio}"])

def tail(A, r, opt):
    ow = SC if opt.owt else ""
    def E(ops):
        for o in ops: A.op(o)
    if r.tag == "m":
        E(tick(r, "p1a"))
        if opt.prio: A("s_setprio 0")
        A(f"s_mov_b32 s{sT0+2}, {hexf(1.0/KSC)}"); A(f"s_mov_b32 s{sT0+3}, {hexf(-math.log2(math.e))}")
        if opt.e1:
            p2 = pload(r, 2)
            if not opt.e0: E(pload(r, 0)[:4])
            E(pload(r, 1)[:4])
            if opt.e2: E(p2[:2] + p2[4:])
            E(pre(r))
            if opt.e2 == 2:
                E(scheck(r, 0)); E(epi(r, 0, ow))
            A.op(("wv", [("st", 8)]))
            E(p2[:4] if opt.e2 else p2)
        else:
            if opt.tb == 2: E(pre(r))
            if opt.tb == 3: E(check(r)); E(pre(r))
            if opt.tb: A("s_barrier")
            if opt.tb != 3: E(check(r))
            E(pload(r, 0)); E(pload(r, 1))
            if opt.tb < 2: E(pre(r))
            A.op(("wv", [("st", 8)]))
            E(tick(r, "p2b"))
            E(pload(r, 2))
        for c in range(1 if (opt.e1 and opt.e2 == 2) else 0, 3):
            E(scheck(r, c)); E(epi(r, c, ow))
    if opt.stamps % 3:
        E(tick(r, "end"))
        A(f"s_sub_u32 s{sT0}, s65, {G.WS_STAMP}"); A(f"s_lshl_b32 s{sT0}, s{sT0}, 1"); A(f"s_add_u32 s{sT0}, s{sT0}, {G.WS_STAMP + 262144}")
        A(f"v_lshlrev_b32 v14, 2, v{vLANE}")
        A(f"buffer_store_dword v15, v14, s[{SWS}:{SWS+3}], s{sT0} offen")
        open(f"names_{r.tag}.txt", "w").write(" ".join(r.names))
```

```python
import sys, math
from asmlib import *

NAME = "recurrent_scan__ssm_conv_s5__mixer_channel_mlp__prompt"
HDR = open("cdna_kernels/" + NAME + ".s.ref").read().split("; Override launch")[0]

C0 = -2.0 * math.log2(math.e) * math.sqrt(2.0 / math.pi)
C1 = C0 * 0.044715
KSC = -((-C1) ** (1.0 / 3.0))
C0K = C0 / KSC
PLANE = 2048 * 576 * 2
WS_AFF = 16 * PLANE
WS_E = WS_AFF + 256 * 1024
EROW = 1280
WS_FLAG = WS_E + 4 * 16 * EROW
FSTR = 4352
WS_STAMP = WS_FLAG + 128 * FSTR + 4096
WS_F2 = WS_STAMP + 65536 * 16
WS_SIZE = WS_F2 + 128 * 24576
BUFSZ = 73728
LDS_Y = 73728
LDS_B1 = 155648
LDS_ET = 147456
LDS_KT = 156672

sW, sTG, sFG, sMT, sSL = 3, 4, 5, 6, 7
SX, SA, SB, SWS, SM = 8, 12, 16, 20, 24
sT0 = 28
sD1 = 40
sD2 = 50
sROT, sROT2, sCOL, sM0A, sST, sDP, sC0K, sONE, sM0W = 56, 57, 58, 59, 60, 61, 62, 63, 64
sFLG = 39
sLOC, sCF, sCP, sXID, sG = 70, 71, 72, 73, 74
sST2 = 75
sMYF = 63
sPTR = 66
def kp(i): return sPTR + 2 * i

vLANE = 1
vDMA, vDMA2 = 2, 3
vTR = 4
vB1 = 7
vXA = 8
ACC = [16, 32]
ABUF = 48
TMP = 64
HOWN = 72
YB = 112

class Opt:
    stamps = False
    ssm = True
    nost = False
    newmap = 1
    owt = 0
    pf = 1
    ff = 1
    fu = 50
    f7 = 22
    f6 = 23
    forcefb = 0
    cp = 15
    po = 0
    clk = 0
    yw = 2
    ov = 1
    b3 = 3
    b4 = 9
    yr = 4
    la = 1
    xl = 1
    xr = 1
    pst = 0
    lsp = 4
    ds = 4
    sp = 6
    p2 = 0
    pm = 17
    prio = 0
    pfb = 1
    ch = 8
    d1 = 8
    cpf = 0
    hsl = 0
    cpv = 0
    tb = 0
    e0 = 0
    e1 = 0
    e2 = 0
    stg = 0
    cpos = [27, 31, 36 + 22, 72 + 22, 108 + 22, 144 + 22]

def stamp(A, opt, idx):
    if not opt.stamps or opt.stamps == 3: return
    if opt.stamps == 2:
        A(f"s_memrealtime s[100:101]"); A("s_waitcnt lgkmcnt(0)"); A.lq = []
        A(f"s_mov_b32 s{SB0[0]+idx}, s100"); return
    A(f"s_memtime s[100:101]")
    A("s_waitcnt lgkmcnt(0)")
    A.lq = []
    A(f"v_mov_b32 v0, s100")
    A(f"s_memrealtime s[100:101]")
    A.vm(f"buffer_store_dword v0, off, s[{SWS}:{SWS+3}], s65 offset:{4*idx}", "stamp")
    A("s_waitcnt lgkmcnt(0)")
    A(f"v_mov_b32 v0, s100")
    A.vm(f"buffer_store_dword v0, off, s[{SWS}:{SWS+3}], s65 offset:{4*idx+64}", "stamp")

PST = []
SB0 = [76]
def pstamp(A, opt, idx):
    if not opt.stamps or opt.stamps >= 2: return
    A(f"s_memtime s[100:101]")
    A("s_waitcnt lgkmcnt(0)")
    A.lq = []
    A(f"v_mov_b32 v{56+idx-5}, s100")

def pflush(A, opt, idxs):
    if not opt.stamps or opt.stamps >= 2: return
    for idx in idxs:
        A.vm(f"buffer_store_dword v{56+idx-5}, off, s[{SWS}:{SWS+3}], s65 offset:{4*idx}", "stamp")

def rstamp(A, opt, idx, srdr=SWS, soff="s65", drain=True):
    if not opt.stamps: return
    if drain: A("s_waitcnt vmcnt(0)")
    A(f"s_memrealtime s[100:101]")
    A("s_waitcnt lgkmcnt(0)")
    A.lq = []
    A(f"v_mov_b32 v0, s100")
    A.vm(f"buffer_store_dword v0, off, s[{srdr}:{srdr+3}], {soff} offset:{4*idx}", "stamp")
    if opt.stamps >= 2:
        for i in range(0, 8 if opt.stamps == 2 else 1):
            A(f"v_mov_b32 v{2+i}, s{SB0[0]+i}")
            A(f"buffer_store_dword v{2+i}, off, s[{srdr}:{srdr+3}], {soff} offset:{4*i+64}")

def srd(A, d, p, nrec, lower=0):
    if lower:
        A(f"s_sub_u32 s{d}, s{p}, {lower}")
        A(f"s_subb_u32 s{d+1}, s{p+1}, 0")
    else:
        A(f"s_mov_b32 s{d}, s{p}")
        A(f"s_mov_b32 s{d+1}, s{p+1}")
    A(f"s_mov_b32 s{d+2}, {nrec + lower}")
    A(f"s_mov_b32 s{d+3}, 0x20000")

def Rreg(e, c):
    if c < 5: return 216 + (c * 2 + e) * 4
    return 72 + ((c - 5) * 2 + e) * 4

def bf16r(A, d, s):
    A(f"v_cvt_pk_bf16_f32 v{d}, v{s}, v{s}")
    A(f"v_and_b32 v{d}, 0xffff0000, v{d}")

sWX = 61
def x_issue(A, track):
    for c in range(9):
        for e in range(2):
            ins = f"buffer_load_dwordx4 {vr(Rreg(e,c),4)}, v8, s[{SX}:{SX+3}], s{sT0+e} offen offset:{c*128}"
            if track: A.vm(ins, ("x", c, e))
            else: A(ins)

def x_loads(A, opt):
    A(f"v_lshrrev_b32 v8, 3, v{vLANE}")
    A(f"s_lshl_b32 s{sT0}, s{sWX}, 4")
    A(f"v_add_u32 v8, s{sT0}, v8")
    A(f"v_mul_u32_u24 v8, 1152, v8")
    A(f"v_and_b32 v9, 7, v{vLANE}")
    A(f"v_lshl_add_u32 v8, v9, 4, v8")
    A(f"s_mul_i32 s{sT0}, s{sMT}, 147456")
    A(f"s_add_u32 s{sT0+1}, s{sT0}, 9216")
    if opt.xl:
        A(f"s_cmp_lg_u32 s{sFG}, 0"); A("s_cbranch_scc1 L_x0")
        x_issue(A, False)
        A("L_x0:")
    else: x_issue(A, True)

def dma1(A, stage, i):
    ops = []
    if i % 4 == 0:
        ops.append(f"s_add_u32 m0, s{sM0W}, {(stage & 1) * BUFSZ + i * 1024}")
        ops.append("s_nop 0")
    ops.append(("vm", f"buffer_load_dwordx4 v{vDMA2}, s[{SA}:{SA+3}], s{sD1+i} offen offset:{(i % 4) * 1024} lds", ("d1", stage)))
    return ops

class Rec(list):
    def __call__(s, x): s.append(x)
    def op(s, x): s.append(x)
    def vm(s, x, t=None): s.append(("vm", x, t))
    def lds(s, x, t=None): s.append(("lds", x, t))

def overlap0(slots, opt, dma):
    n = 0
    for c in range(5, 9 - opt.yw):
        for e in range(2):
            slots[n // 2].setdefault("x", []).append(("lds", f"ds_write_b128 v{10+e}, {vr(Rreg(e,c),4)} offset:{(c-5)*16384}", "yw")); n += 1
    b3, b4 = opt.b3, opt.b4
    slots[b3].setdefault("bar", []).extend([("wl", ["yw"]), "s_barrier"])
    for i, s in enumerate(range(20, 36)):
        slots[b3 + i // opt.yr].setdefault("x", []).append(("lds", f"ds_read_b128 {vr(YB+4*s,4)}, v{12+(s&3)} offset:{((s>>2)-5)*16384}", ("y", s)))
    slots[b4].setdefault("bar", []).extend([("wl", [("y", 35)]), "s_barrier"])
    for i, d in enumerate(dma): slots[b4 + i].setdefault("dma", []).extend(d)

def ln_prologue(A, opt, mlp, late=(), pre2=()):
    SUM = [16, 17]; SQ = [18, 19]
    for r in SUM + SQ: A(f"v_mov_b32 v{r}, 0")
    for e in range(2):
        d = 10 + e
        A(f"v_lshrrev_b32 v20, 3, v{vLANE}")
        A(f"s_lshl_b32 s{sT0+2}, s{sWX}, 4")
        A(f"s_add_u32 s{sT0+2}, s{sT0+2}, {8*e}")
        A(f"v_add_u32 v20, s{sT0+2}, v20")
        if not mlp:
            A(f"v_and_b32 v21, 0x63, v20")
            A(f"v_bfe_u32 v22, v20, 2, 2")
            A(f"v_lshl_or_b32 v21, v22, 3, v21")
            A(f"v_bfe_u32 v22, v20, 4, 1")
            A(f"v_lshl_or_b32 v20, v22, 2, v21")
        A(f"v_bfe_u32 v21, v20, 1, 3")
        A(f"v_and_b32 v22, 7, v{vLANE}")
        A(f"v_xor_b32 v21, v21, v22")
        A(f"v_lshlrev_b32 v21, 4, v21")
        A(f"v_lshl_add_u32 v{d}, v20, 7, v21")
        A(f"v_add_u32 v{d}, {LDS_Y}, v{d}")
    A(f"v_and_b32 v20, 31, v{vLANE}")
    A(f"v_bfe_u32 v21, v20, 1, 3")
    A(f"v_lshrrev_b32 v22, 5, v{vLANE}")
    A(f"v_xor_b32 v21, v21, v22")
    A(f"v_lshlrev_b32 v21, 4, v21")
    A(f"s_lshl_b32 s{sT0+2}, s{sTG}, 5")
    A(f"v_add_u32 v20, s{sT0+2}, v20")
    A(f"v_lshl_add_u32 v12, v20, 7, v21")
    A(f"v_add_u32 v12, {LDS_Y}, v12")
    for i in range(1, 4): A(f"v_xor_b32 v{12+i}, {32*i}, v12")
    pstamp(A, opt, 10)
    if opt.xl:
        A(f"s_cmp_eq_u32 s{sFG}, 0"); A(f"s_cbranch_scc1 L_x1{int(mlp)}")
        x_issue(A, True)
        A(f"L_x1{int(mlp)}:")
    for c in range(9):
        A.wait(vm=[("x", c, 1)])
        if c == 0: pstamp(A, opt, 11)
        if c == 8: pstamp(A, opt, 12)
        if mlp and opt.pst == 1 and c in (0, 8): stamp(A, opt, 6 + c // 8)
        for j in range(4):
            for e in range(2):
                r = Rreg(e, c) + j
                A(f"v_dot2c_f32_bf16 v{SUM[e]}, s{sONE}, v{r}")
                A(f"v_dot2c_f32_bf16 v{SQ[e]}, v{r}, v{r}")
    A("s_nop 2")
    for mode in ("quad_perm:[1,0,3,2]", "quad_perm:[2,3,0,1]", "row_half_mirror"):
        for r in SUM + SQ:
            A(f"v_add_f32_dpp v{r}, v{r}, v{r} {mode} row_mask:0xf bank_mask:0xf")
    inv = hexf(1.0 / 576.0); eps = hexf(1e-5)
    late = list(late); cnt = [0]
    def both(f):
        for e in range(2): A(f(e))
        cnt[0] += 1
        if late and not opt.la and cnt[0] % opt.lsp == 0:
            for o in late.pop(0): A.op(o)
    both(lambda e: f"v_mul_f32 v{20+e}, {inv}, v{SUM[e]}")
    both(lambda e: f"v_mul_f32 v{22+e}, {inv}, v{SQ[e]}")
    both(lambda e: f"v_fma_f32 v{22+e}, -v{20+e}, v{20+e}, v{22+e}")
    both(lambda e: f"v_max_f32 v{22+e}, 0, v{22+e}")
    def rnd(d, s):
        both(lambda e: f"v_cvt_pk_bf16_f32 v{d+e}, v{s+e}, v{s+e}")
        both(lambda e: f"v_and_b32 v{d+e}, 0xffff0000, v{d+e}")
    rnd(24, 20)
    rnd(26, 22)
    both(lambda e: f"v_add_f32 v{26+e}, {eps}, v{26+e}")
    rnd(26, 26)
    both(lambda e: f"v_sqrt_f32 v{26+e}, v{26+e}")
    rnd(26, 26)
    both(lambda e: f"v_rcp_f32 v{28+e}, v{26+e}")
    A(f"v_lshrrev_b32 v34, 3, v{vLANE}")
    A(f"s_lshl_b32 s{sT0+3}, s{sWX}, 4")
    A(f"v_add_u32 v34, s{sT0+3}, v34")
    A(f"v_lshlrev_b32 v34, 3, v34")
    A(f"v_mov_b32 v36, v24"); A(f"v_mov_b32 v38, v25"); A(f"v_mov_b32 v37, v28"); A(f"v_mov_b32 v39, v29")
    A(f"s_lshl_b32 s{sT0+2}, s2, 10"); A(f"s_add_u32 s{sT0+2}, s{sT0+2}, {WS_AFF}")
    A.vm(f"buffer_store_dwordx2 v[36:37], v34, s[{SWS}:{SWS+3}], s{sT0+2} offen", "aff")
    A.vm(f"buffer_store_dwordx2 v[38:39], v34, s[{SWS}:{SWS+3}], s{sT0+2} offen offset:64", "aff")
    A("s_nop 1")
    if mlp:
        both(lambda e: f"v_sub_f32 v{30+e}, v{20+e}, v{24+e}")
        both(lambda e: f"v_mul_f32 v{30+e}, v{30+e}, v{28+e}")
        rnd(30, 30)
        both(lambda e: f"v_mul_f32 v{32+e}, v{28+e}, v{28+e}")
        both(lambda e: f"v_mul_f32 v{32+e}, v{32+e}, v{22+e}")
        rnd(32, 32)
        both(lambda e: f"v_add_f32 v{32+e}, {eps}, v{32+e}")
        rnd(32, 32)
        both(lambda e: f"v_sqrt_f32 v{32+e}, v{32+e}")
        rnd(32, 32)
        both(lambda e: f"v_rcp_f32 v{32+e}, v{32+e}")
        both(lambda e: f"v_fma_f32 v{24+e}, v{30+e}, v{26+e}, v{24+e}")
        both(lambda e: f"v_mul_f32 v{28+e}, v{28+e}, v{32+e}")
        both(lambda e: f"v_mul_f32 v{28+e}, {hexf(KSC)}, v{28+e}")
    rnd(34, 28)
    both(lambda e: f"v_lshrrev_b32 v{36+e}, 16, v{34+e}")
    both(lambda e: f"v_mul_f32 v{38+e}, v{34+e}, v{24+e}")
    both(lambda e: f"v_sub_f32 v{38+e}, 0, v{38+e}")
    def norm(e, c):
        b = Rreg(e, c)
        T = 40
        for j in range(4):
            A(f"v_dot2_f32_bf16 v{T+2*j}, v{b+j}, v{36+e}, v{38+e}")
            A(f"v_dot2_f32_bf16 v{T+2*j+1}, v{b+j}, v{34+e}, v{38+e}")
        A("s_nop 0")
        for j in range(4):
            if j == 3: A("s_nop 0")
            A(f"v_cvt_pk_bf16_f32 v{b+j}, v{T+2*j}, v{T+2*j+1}")
    def ywrite(e, c, slot):
        if slot < 4:
            A.lds(f"ds_write_b128 v{10+e}, {vr(Rreg(e,c),4)} offset:{slot*16384}", "yw")
        else:
            A(f"v_add_u32 v48, 0x10000, v{10+e}")
            A.lds(f"ds_write_b128 v48, {vr(Rreg(e,c),4)}", "yw")
    def yread(s, slot):
        if slot < 4:
            A.lds(f"ds_read_b128 {vr(YB+4*s,4)}, v{12+(s&3)} offset:{slot*16384}", ("y", s))
        else:
            A(f"v_add_u32 v48, 0x10000, v{12+(s&3)}")
            A.lds(f"ds_read_b128 {vr(YB+4*s,4)}, v48", ("y", s))
    def pop(n=99):
        while late and n > 0:
            n -= 1
            for o in late.pop(0): A.op(o)
    if not opt.la: pop()
    stamp(A, opt, 1)
    for c in range(5):
        for e in range(2):
            norm(e, c); ywrite(e, c, c)
            if opt.la == 1: pop(1)
    if opt.la in (1, 2): pop()
    A.wait_all()
    if mlp and opt.pst == 2 and 0 < 3: stamp(A, opt, 5)
    A("s_barrier")
    for s in range(20): yread(s, s >> 2)
    for c in range(5, 9):
        for e in range(2): norm(e, c); pop(1)
    pop()
    if opt.ov:
        for o in pre2: A.op(o)
        A.wait(vm=[("d1", 0)])
    A.wait_all()
    if mlp and opt.pst == 2 and 1 < 3: stamp(A, opt, 6)
    A("s_barrier")
    if opt.ov:
        stamp(A, opt, 2)
        for c in range(9 - opt.yw, 9):
            for e in range(2): ywrite(e, c, c - 5)
        return
    for c in range(5, 9):
        for e in range(2): ywrite(e, c, c - 5)
    A.wait_all()
    if mlp and opt.pst == 2 and 2 < 3: stamp(A, opt, 7)
    A("s_barrier")
    for s in range(20, 36): yread(s, (s >> 2) - 5)
    A.wait_all()
    if mlp and opt.pst == 2 and 3 < 3: stamp(A, opt, 8)
    A("s_barrier")
    stamp(A, opt, 2)
    pflush(A, opt, [8, 9, 10, 11, 12])

def cost(o):
    s = o if isinstance(o, str) else o[1]
    if isinstance(s, str) and s.startswith(("v_exp", "v_rcp")): return 8
    if isinstance(s, str) and s.startswith(("v_cvt", "v_dot")) or "dpp" in str(s): return 4
    return 3

def spread(slots, lo, hi, ops, key="valu"):
    tot = sum(cost(o) for o in ops)
    acc = 0
    glue = False
    for o in ops:
        if not glue: j = lo + int(acc * (hi - lo) / tot)
        glue = isinstance(o, str) and o.startswith(("s_cmp", "v_cmp"))
        slots[j].setdefault(key, []).append(o)
        acc += cost(o)

def gelu_ops(acc, dst, grp=4):
    ops = []
    for g0 in range(0, 16, grp):
        es = range(g0, g0 + grp)
        T = lambda e: TMP + (e % 8)
        for e in es: ops.append(f"v_fma_f32 v{T(e)}, v{acc+e}, v{acc+e}, s{sC0K}")
        for e in es: ops.append(f"v_mul_f32 v{T(e)}, v{T(e)}, v{acc+e}")
        for e in es: ops.append(f"v_exp_f32 v{T(e)}, v{T(e)}")
        for e in es: ops.append(f"v_add_f32 v{T(e)}, 1.0, v{T(e)}")
        for e in es: ops.append(f"v_rcp_f32 v{T(e)}, v{T(e)}")
        for e in es: ops.append(f"v_mul_f32 v{T(e)}, v{T(e)}, v{acc+e}")
        for e in es[::2]: ops.append(f"v_cvt_pk_bf16_f32 v{dst + e//2}, v{T(e)}, v{T(e+1)}")
    return ops

def emit_slots(A, slots):
    for s in slots:
        for k in ("pre",):
            for o in s.get(k, []): A.op(o)
        if s.get("mfma"): A(s["mfma"])
        for k in ("bar", "rd", "dma", "x", "valu"):
            for o in s.get(k, []): A.op(o)

WT = " sc0 sc1"
def store_ops(acc, SREG, tag):
    ops = [f"v_cvt_pk_bf16_f32 v{SREG+i}, v{acc+2*i}, v{acc+2*i+1}" for i in range(8)]
    ops.insert(4, ("vm", f"buffer_store_dwordx4 {vr(SREG,4)}, v{vXA}, s[{SWS}:{SWS+3}], s{sST} offen{WT}", tag))
    ops.append(("vm", f"buffer_store_dwordx4 {vr(SREG+4,4)}, v{vXA}, s[{SWS}:{SWS+3}], s{sST} offen offset:1024{WT}", tag))
    return ops

def announce(lbl, val=1):
    return [f"s_cmp_lg_u32 s{sW}, 0", f"s_cbranch_scc1 {lbl}",
            f"s_lshl_b32 s{sT0}, s{sMT}, 4", f"s_add_u32 s{sT0}, s{sT0}, s{sSL}",
            f"v_mov_b32 v0, {val}", "s_mov_b64 exec, 1",
            f"buffer_store_byte v0, off, s[{SM}:{SM+3}], s{sT0} sc0 sc1", "s_mov_b64 exec, -1", f"{lbl}:"]

def clear_flag(A, mlp=False):
    A(f"s_lshl_b32 s{sT0}, s{sMT}, 3"); A(f"s_add_u32 s{sT0}, s{sT0}, s{sW}")
    A(f"s_mul_i32 s{sFLG}, s{sT0}, {FSTR}"); A(f"s_add_u32 s{sFLG}, s{sFLG}, {WS_FLAG}")
    if mlp: return
    A(f"s_add_u32 s{sMYF}, s{sSL}, s{sFLG}")
    A(f"v_mov_b32 v9, 0")
    A("s_mov_b64 exec, 1")
    A.vm(f"buffer_store_byte v9, off, s[{SWS}:{SWS+3}], s{sMYF} sc0 sc1", "clr")
    A("s_mov_b64 exec, -1")

def check_all(A, lbl, vt, pat="0x01010101"):
    A(f"v_lshlrev_b32 v{vt}, 2, v{vLANE}")
    A(f"s_movk_i32 s{sT0}, 0x4000")
    A(f"{lbl}:")
    A(f"buffer_load_dword v{vt+1}, v{vt}, s[{SM}:{SM+3}], 0 offen sc0 sc1")
    A(f"s_sub_u32 s{sT0}, s{sT0}, 1")
    A(f"s_cbranch_scc1 {lbl}_d")
    A("s_waitcnt vmcnt(0)")
    A(f"v_and_b32 v{vt+1}, {pat}, v{vt+1}")
    A(f"v_cmp_ne_u32 vcc, {pat}, v{vt+1}")
    A(f"s_cbranch_vccnz {lbl}")
    A(f"{lbl}_d:")
    A("s_waitcnt vmcnt(0)")

def mlp_path(A, opt):
    D = 3
    if opt.pst == 1: stamp(A, opt, 5)
    srd(A, SA, kp(10), 5308416)
    srd(A, SB, kp(12), 5308416, lower=4096)
    srd(A, SM, kp(11), 9216)
    A(f"s_mul_i32 s{sT0+2}, s{sMT}, 43"); A(f"s_lshr_b32 s{sT0+2}, s{sT0+2}, 8")
    A(f"s_mul_i32 s{sT0+2}, s{sT0+2}, 6"); A(f"s_sub_u32 s{sROT}, s{sMT}, s{sT0+2}")
    A(f"s_mul_i32 s{sG}, s{sSL}, 11"); A(f"s_lshr_b32 s{sG}, s{sG}, 5")
    A(f"s_mul_i32 s{sT0+2}, s{sG}, 3"); A(f"s_sub_u32 s{sCF}, s{sSL}, s{sT0+2}")
    A(f"s_mul_i32 s{sT0+2}, s{sCF}, 3"); A(f"s_add_u32 s{sROT2}, s{sMT}, 9"); A(f"s_sub_u32 s{sROT2}, s{sROT2}, s{sT0+2}")
    for _ in range(2):
        A(f"s_cmp_ge_u32 s{sROT2}, 9"); A(f"s_cselect_b32 s{sT0+2}, 9, 0"); A(f"s_sub_u32 s{sROT2}, s{sROT2}, s{sT0+2}")
    A(f"s_sub_u32 s{sCP}, s{sCF}, 1"); A(f"s_cselect_b32 s{sCP}, 2, s{sCP}")
    A(f"s_getreg_b32 s{sXID}, hwreg(HW_REG_XCC_ID, 0, 4)"); A(f"s_lshl_b32 s{sXID}, s{sXID}, 8")
    if opt.forcefb: A(f"s_lshl_b32 s{sXID}, s{sCF}, 8")
    for i in range(9): A(f"s_mov_b32 s{sD1+i}, {i*73728 - (i%4)*1024}")
    A(f"s_mul_i32 s{sM0W}, s{sW}, 9216")
    A(f"v_bfe_u32 v9, v{vLANE}, 2, 3")
    A(f"v_lshrrev_b32 v10, 5, v{vLANE}")
    A(f"v_and_b32 v11, 3, v{vLANE}")
    A(f"v_lshlrev_b32 v11, 4, v11")
    A(f"v_lshl_add_u32 v10, v10, 6, v11")
    A(f"v_mul_u32_u24 v{vDMA}, 9216, v9")
    A(f"v_add_u32 v{vDMA}, v{vDMA}, v10")
    A(f"s_mul_i32 s{sT0+2}, s{sW}, {72*9216}")
    A(f"s_mul_i32 s{sT0+3}, s{sSL}, 768")
    A(f"s_add_u32 s{sT0+2}, s{sT0+2}, s{sT0+3}")
    A(f"v_add_u32 v{vDMA}, s{sT0+2}, v{vDMA}")
    A(f"s_lshl_b32 s{sCOL}, s{sROT}, 7")
    A(f"v_add_u32 v{vDMA2}, s{sCOL}, v{vDMA}")
    late = [dma1(A, 0, i) for i in range(9)]
    if not opt.lsp:
        for l in late:
            for o in l: A.op(o)
        late = []
    def nextcol():
        return [f"s_add_u32 s{sCOL}, s{sCOL}, 128", f"s_cmp_ge_u32 s{sCOL}, 768", f"s_cselect_b32 s{sCOL}, 0, s{sCOL}",
                f"v_add_u32 v{vDMA2}, s{sCOL}, v{vDMA}"]
    A(f"s_mul_i32 s{sT0+2}, s{sSL}, 768")
    A(f"v_lshl_add_u32 v49, v0, 1, s{sT0+2}")
    late.append([("vm", f"buffer_load_ushort v49, v49, s[{SM}:{SM+3}], 0 offen", "b1")])
    A(f"v_lshrrev_b32 v9, 5, v{vLANE}"); A("v_lshlrev_b32 v9, 10, v9")
    A(f"v_bfe_u32 v10, v{vLANE}, 2, 2"); A("v_lshl_add_u32 v9, v10, 6, v9")
    A(f"v_bfe_u32 v10, v{vLANE}, 4, 1"); A("v_lshl_add_u32 v9, v10, 5, v9")
    A(f"v_and_b32 v10, 3, v{vLANE}"); A("v_lshl_add_u32 v9, v10, 3, v9")
    A(f"s_lshl_b32 s{sT0+2}, s{sFG}, 9")
    A(f"v_add_u32 v{vTR}, s{sT0+2}, v9")
    A(f"v_add_u32 v{vTR+1}, 0x10000, v{vTR}")
    A(f"v_add_u32 v{vTR+2}, 0x20000, v{vTR}")
    A(f"v_lshrrev_b32 v9, 5, v{vLANE}")
    A(f"s_lshl_b32 s{sT0+2}, s{sFG}, 7"); A(f"s_add_u32 s{sT0+2}, s{sT0+2}, {LDS_B1}")
    A(f"v_lshl_add_u32 v{vB1}, v9, 4, s{sT0+2}")
    A(f"s_mov_b32 s{sC0K}, {hexf(C0K)}")
    A(f"s_mul_i32 s{sT0+2}, s{sW}, 6")
    A(f"s_mul_i32 s{sT0+6}, s{sSL}, {384*1152}")
    for i in range(6):
        A(f"s_add_u32 s{sT0+3}, s{sT0+2}, {i}")
        A(f"s_lshr_b32 s{sT0+4}, s{sT0+3}, 3")
        A(f"s_add_u32 s{sT0+4}, s{sT0+4}, s{sROT}")
        A(f"s_cmp_ge_u32 s{sT0+4}, 6"); A(f"s_cselect_b32 s{sT0+5}, 6, 0"); A(f"s_sub_u32 s{sT0+4}, s{sT0+4}, s{sT0+5}")
        A(f"s_lshl_b32 s{sT0+4}, s{sT0+4}, 3")
        A(f"s_and_b32 s{sT0+3}, s{sT0+3}, 7")
        A(f"s_add_u32 s{sT0+4}, s{sT0+4}, s{sT0+3}")
        A(f"s_mul_i32 s{sT0+4}, s{sT0+4}, 9216")
        A(f"s_add_u32 s{sT0+4}, s{sT0+4}, s{sT0+6}")
        A(f"s_add_u32 s{sD2+i}, s{sT0+4}, {4096 - (i%4)*1024}")
    A(f"s_sub_u32 s{sT0+2}, s{sW}, s{sROT}")
    A(f"s_cmp_lt_i32 s{sT0+2}, 0"); A(f"s_cselect_b32 s{sT0+3}, 6, 0"); A(f"s_add_u32 s{sT0+2}, s{sT0+2}, s{sT0+3}")
    A(f"s_lshl_b32 s{sT0+2}, s{sT0+2}, 8"); A(f"s_add_u32 s{sT0+2}, s{sT0+2}, {LDS_B1}")
    A(f"s_cmp_ge_u32 s{sW}, 6"); A(f"s_cselect_b32 s{sT0+2}, {LDS_B1 + 2048}, s{sT0+2}")
    A(f"v_lshl_add_u32 v50, v{vLANE}, 2, s{sT0+2}")

    ln_prologue_pre = len(A.L)
    R = Rec()
    R(("wv", ["b1"]))
    R("v_lshlrev_b32 v49, 16, v49")
    R(f"v_mul_f32 v49, {hexf(KSC)}, v49")
    R.lds("ds_write_b32 v50, v49", "b1w")
    srd(R, SM, kp(15), 256)
    clear_flag(R, True)
    R(f"s_lshl_b32 s{sT0}, s{sG}, 7"); R(f"s_add_u32 s{sT0}, s{sT0}, 128"); R(f"s_add_u32 s{sLOC}, s{sT0}, s{sFLG}")
    R(f"s_lshl_b32 s{sCF}, s{sCF}, 2"); R(f"s_add_u32 s{sCF}, s{sCF}, s{sLOC}")
    R(f"s_lshl_b32 s{sCP}, s{sCP}, 2"); R(f"s_add_u32 s{sCP}, s{sCP}, s{sLOC}")
    R(f"v_mov_b32 v9, s{sXID}"); R("s_mov_b64 exec, 1")
    R.vm(f"buffer_store_dword v9, off, s[{SWS}:{SWS+3}], s{sCF} sc0 sc1", "clr")
    R("s_mov_b64 exec, -1")
    for o in nextcol(): R.op(o)
    ln_prologue(A, opt, True, late, R)
    if not opt.ov:
        for o in R: A.op(o)
        for i in range(9):
            for o in dma1(A, 1, i): A.op(o)
        A.wait(lds=["b1w"], vm=[("d1", 0)])
        A("s_barrier")

    HP = YB
    H5 = YB + 48
    SREG = YB + 56
    vP2 = YB + 64
    vHX = YB + 70
    def hown(t): return HOWN + 8 * t if t < 5 else H5
    korder = [("o", t, kk) for t in range(5) for kk in range(2)] + [("p", t, kk) for t in range(4) for kk in range(2)] + \
             [("o", 5, 0), ("o", 5, 1)] + [("p", t, kk) for t in (4, 5) for kk in range(2)]
    units = []
    for s in range(6):
        for k in range(36): units.append((1, s, k))
    for j in range(9):
        for k in range(24): units.append((2, j, k))
    NU = len(units)
    def rd(u):
        ph, s, k = units[u]
        b = ABUF + 4 * (u % 4)
        if ph == 1:
            pos = (s & 1) * BUFSZ + k * 2048
            return [("lds", f"ds_read_b64_tr_b16 {vr(b+2*r,2)}, v{vTR + ((pos + r*256) >> 16)} offset:{(pos + r*256) & 0xffff}", ("a", u)) for r in range(2)]
        who, t, kk = korder[k]
        areg = vP2 + (s % 3) * 2 + (0 if who == "o" else 1)
        return [("lds", f"ds_read_b64_tr_b16 {vr(b+2*r,2)}, v{areg} offset:{(8*t + 2*kk + r) * 1024}", ("a", u)) for r in range(2)]
    def b1rd(s):
        return [("lds", f"ds_read_b128 {vr(ACC[s&1] + 4*j, 4)}, v{vB1} offset:{s*256 + j*32}", ("b1", s)) for j in range(4)]
    slots = []
    for u, (ph, s, k) in enumerate(units):
        b = ABUF + 4 * (u % 4)
        acc = ACC[s & 1]
        sl = {}
        w = [("a", u)]
        if ph == 1:
            if k == 0: w.append(("b1", s))
            sl["mfma"] = f"v_mfma_f32_32x32x16_bf16 {vr(acc,16)}, {vr(b,4)}, {vr(YB+4*k,4)}, {vr(acc,16)}"
        else:
            who, t, kk = korder[k]
            hb = (hown(t) if who == "o" else HP + 8 * t) + 4 * kk
            if who == "p": w.append(("hx", t))
            sl["mfma"] = f"v_mfma_f32_32x32x16_bf16 {vr(acc,16)}, {vr(b,4)}, {vr(hb,4)}, {'0' if k == 0 else vr(acc,16)}"
        sl["pre"] = [("wl", w)]
        slots.append(sl)
    for u in range(NU - D):
        ph, s, k = units[u + D]
        if k == 0:
            slots[u]["bar"] = [("wv", [("d1", s) if ph == 1 else ("d2", s)]), "s_barrier"]
        slots[u]["rd"] = rd(u + D)
    P2 = 216
    if opt.ov: overlap0(slots, opt, [dma1(A, 1, i) for i in range(9)])
    slots[36 + 16].setdefault("x", []).extend(announce("L_ann_m"))
    for s in range(2, 6):
        base = (s - 1) * 36 - 2
        slots[base].setdefault("dma", []).extend(nextcol())
        for i in range(9):
            if opt.stg:
                d = dma1(A, s, i)
                e = [o if isinstance(o, str) else o[1] for o in d]
                slots[base + 1 + (opt.d1 * i) // 4].setdefault("dma", []).extend([f"s_cmp_ge_u32 s{sW}, 4", f"s_cbranch_scc1 L_sg{s}_{i}a"] + e + [f"L_sg{s}_{i}a:"])
                slots[base + 1 + opt.stg + (opt.d1 * i) // 4].setdefault("dma", []).extend([f"s_cmp_lt_u32 s{sW}, 4", f"s_cbranch_scc1 L_sg{s}_{i}b"] + d + [f"L_sg{s}_{i}b:"])
            else:
                slots[base + 1 + (opt.d1 * i) // 4].setdefault("dma", []).extend(dma1(A, s, i))
    def dma2(j, i):
        ops = []
        if i % 4 == 0:
            ops += [f"s_add_u32 m0, s{sM0A}, {(j % 3) * 49152 + i * 1024}", "s_nop 0"]
        ops.append(("vm", f"buffer_load_dwordx4 v{vDMA2}, s[{SB}:{SB+3}], s{sD2+i} offen offset:{(i%4)*1024} lds", ("d2", j)))
        return ops
    def nextdp(first):
        if first:
            return [f"s_mul_i32 s{sM0A}, s{sW}, 6144",
                    f"v_bfe_u32 v9, v{vLANE}, 2, 3", f"v_lshrrev_b32 v10, 5, v{vLANE}", f"v_and_b32 v11, 3, v{vLANE}",
                    "v_lshlrev_b32 v11, 4, v11", "v_lshl_add_u32 v10, v10, 6, v11",
                    f"v_mul_u32_u24 v{vDMA}, 1152, v9", f"v_add_u32 v{vDMA}, v{vDMA}, v10",
                    f"s_lshl_b32 s{sCOL}, s{sROT2}, 7", f"v_add_u32 v{vDMA2}, s{sCOL}, v{vDMA}"]
        return [f"s_add_u32 s{sCOL}, s{sCOL}, 128", f"s_cmp_ge_u32 s{sCOL}, 1152", f"s_cselect_b32 s{sCOL}, 0, s{sCOL}",
                f"v_add_u32 v{vDMA2}, s{sCOL}, v{vDMA}"]
    d2base = {0: 5 * 36 - 2, 1: P2 - 2, 2: P2 + 24 - 2, 3: P2 + 24 + 10}
    for j in range(4, 9): d2base[j] = P2 + (j - 2) * 24 + 9
    for j in range(9):
        base = d2base[j]
        slots[base].setdefault("dma", []).extend(nextdp(j == 0))
        for i in range(6): slots[base + 1 + (2 * i if j < 4 else (opt.ds * i) // 4)].setdefault("dma", []).extend(dma2(j, i))
    for s in range(1, 6):
        spread(slots, s * 36 + 2, s * 36 + 31, gelu_ops(ACC[(s - 1) & 1], hown(s - 1)))
    for s in range(1, 6):
        slots[s * 36 - 5].setdefault("x", []).extend(b1rd(s))
    spread(slots, P2 + 2, P2 + 15, gelu_ops(ACC[1], H5))
    S5 = 5 * 36
    setup = [f"v_lshlrev_b32 v9, 4, v{vLANE}",
             f"s_lshl_b32 s{sT0+2}, s{sW}, 11", f"s_add_u32 s{sT0+2}, s{sT0+2}, 49152",
             f"v_add_u32 v{vHX}, s{sT0+2}, v9", f"v_add_u32 v{vHX+1}, {147456-49152}, v{vHX}",
             f"v_xor_b32 v{vHX+2}, 0x2000, v{vHX}", f"v_add_u32 v{vHX+3}, {147456-49152}, v{vHX+2}",
             f"v_lshrrev_b32 v9, 5, v{vLANE}", "v_lshlrev_b32 v9, 8, v9",
             f"v_bfe_u32 v10, v{vLANE}, 2, 2", "v_lshl_add_u32 v9, v10, 6, v9",
             f"v_and_b32 v10, 1, v{vLANE}", "v_lshl_add_u32 v9, v10, 5, v9",
             f"v_bfe_u32 v10, v{vLANE}, 1, 1", "v_lshl_add_u32 v9, v10, 3, v9",
             f"v_bfe_u32 v10, v{vLANE}, 4, 1", "v_lshl_add_u32 v9, v10, 4, v9",
             f"s_mul_i32 s{sT0+2}, s{sFG}, {4096+512}",
             f"v_add_u32 v{vP2}, s{sT0+2}, v9", f"v_xor_b32 v{vP2+1}, 0x1000, v{vP2}",
             f"v_add_u32 v{vP2+2}, 49152, v{vP2}", f"v_add_u32 v{vP2+3}, 49152, v{vP2+1}",
             f"v_add_u32 v{vP2+4}, 98304, v{vP2}", f"v_add_u32 v{vP2+5}, 98304, v{vP2+1}",
             f"v_and_b32 v9, 31, v{vLANE}", f"v_lshrrev_b32 v10, 5, v{vLANE}", "v_lshlrev_b32 v9, 5, v9",
             f"v_lshl_add_u32 v{vXA}, v10, 4, v9",
             f"s_lshl_b32 s{sT0+2}, s{sMT}, 2", f"s_add_u32 s{sT0+2}, s{sT0+2}, s{sTG}",
             f"s_mul_i32 s{sT0+2}, s{sT0+2}, {18*16384}", f"s_mul_i32 s{sT0+3}, s{sG}, 2048",
             f"s_add_u32 s{sT0+2}, s{sT0+2}, s{sT0+3}", f"s_lshl_b32 s{sT0+3}, s{sFG}, 14",
             f"s_add_u32 s{sT0+2}, s{sT0+2}, s{sT0+3}", f"v_add_u32 v{vXA}, s{sT0+2}, v{vXA}",
             f"s_lshl_b32 s{sST}, s{sROT2}, 15", f"s_add_u32 s{sST2}, s{sST}, {opt.ch*PLANE}"]
    spread(slots, S5 + 19, S5 + 23, setup[:7], "x")
    spread(slots, S5 + 25, S5 + 32, setup[7:], "x")
    def hw(t):
        a, off = (vHX, t * 16384) if t < 3 else ((vHX + 1, 0) if t == 3 else (vHX, 49152 + (t - 4) * 16384))
        if off + 1024 > 65535: return None
        return [("lds", f"ds_write_b128 v{a}, {vr(hown(t)+4*kk,4)} offset:{off + kk*1024}", ("hw", t)) for kk in range(2)]
    def hr(t):
        a, off = (vHX + 2, t * 16384) if t < 3 else ((vHX + 3, 0) if t == 3 else (vHX + 2, 49152 + (t - 4) * 16384))
        return [("lds", f"ds_read_b128 {vr(HP+8*t+4*kk,4)}, v{a} offset:{off + kk*1024}", ("hx", t)) for kk in range(2)]
    slots[S5 + 22].setdefault("bar", []).append("s_barrier")
    for t in range(4): slots[S5 + 23 + t].setdefault("x", []).extend(hw(t))
    slots[S5 + 29].setdefault("bar", []).extend([("wl", [("hw", 3)]), "s_barrier"])
    for t in range(4): slots[S5 + 29 + t].setdefault("x", []).extend(hr(t))
    slots[S5 + 33]["bar"].insert(0, ("wl", [("hx", 3)]))
    slots[P2 + 1].setdefault("x", []).extend(hw(4))
    slots[P2 + 2].setdefault("x", []).extend([f"v_add_u32 v{vHX+1}, 0x10000, v{vHX}", f"v_add_u32 v{vHX+3}, 0x10000, v{vHX+2}"])
    slots[P2 + 15].setdefault("x", []).extend(
        [("lds", f"ds_write_b128 v{vHX+1}, {vr(H5+4*kk,4)} offset:{kk*1024}", ("hw", 5)) for kk in range(2)])
    slots[P2 + 17].setdefault("bar", []).extend([("wl", [("hw", 5)]), "s_barrier"])
    slots[P2 + 17].setdefault("x", []).extend(hr(4) +
        [("lds", f"ds_read_b128 {vr(HP+40+4*kk,4)}, v{vHX+3} offset:{kk*1024}", ("hx", 5)) for kk in range(2)])
    slots[P2 + 21]["bar"].insert(0, ("wl", [("hx", 5)]))
    import red
    rr = red.R("m")
    nextst = [f"s_add_u32 s{sST}, s{sST}, 32768", f"s_cmp_ge_u32 s{sST}, {9*32768}", f"s_cselect_b32 s{sST}, 0, s{sST}", f"s_add_u32 s{sST2}, s{sST}, {opt.ch*PLANE}"]
    for j in range(1, 9):
        so = red.store_ops(rr, j - 1, ACC[(j - 1) & 1], SREG)
        if j == 7:
            late = [o for o in so if not isinstance(o, str)]
            so = [o for o in so if isinstance(o, str)]
            slots[P2 + j * 24 + 14].setdefault("valu", []).append(late[0])
            slots[P2 + j * 24 + 15].setdefault("valu", []).extend([late[1]] + nextst)
            spread(slots, P2 + j * 24 + 2, P2 + j * 24 + 6, so)
        else:
            spread(slots, P2 + j * 24 + 2, P2 + j * 24 + opt.sp, so + nextst)
    red.plan(rr, slots, P2, 24, opt)
    HS = 3 + opt.hsl
    slots[(5 * 36 + 12) if opt.hsl else (4 * 36 + 20)].setdefault("dma", []).extend(red.one(("vm", f"buffer_load_dwordx3 v[12:14], off, s[{SWS}:{SWS+3}], s{sLOC} sc0 sc1", "xid")))
    slots[(P2 + 12) if opt.hsl else (5 * 36 + 12)].setdefault("x", []).extend([("wv", ["xid"]), "v_xor_b32 v13, v12, v13", "v_xor_b32 v14, v12, v14", "v_or_b32 v13, v13, v14",
        "s_nop 0", f"v_readfirstlane_b32 s{sLOC}, v13", f"s_and_b32 s{sLOC}, s{sLOC}, 0xf00"])
    if opt.pf:
        pf = [f"s_and_b32 s{sT0}, s{sMT}, 7", f"s_lshl_b32 s{sT0}, s{sT0}, 3", f"s_add_u32 s{sT0}, s{sT0}, s{sW}",
              f"s_mul_i32 s{sT0}, s{sT0}, {54*128}", f"s_mul_i32 s{sT0+1}, s{sSL}, {384*1152}", f"s_add_u32 s{sT0}, s{sT0}, s{sT0+1}",
              f"s_add_u32 s{sT0}, s{sT0}, 4096", f"v_lshlrev_b32 v14, 6, v{vLANE}",
              ("vm", f"buffer_load_dword v15, v14, s[{SB}:{SB+3}], s{sT0} offen", "pf")]
        slots[2 * 36 + 18].setdefault("dma", []).extend(pf)
        pf[-3] = f"s_add_u32 s{sT0}, s{sT0}, 8192"
        slots[3 * 36 + 18].setdefault("dma", []).extend(pf)
    slots[HS * 36 - 2]["dma"] = [f"s_cmp_lg_u32 s{sW}, 0", "s_cbranch_scc1 L_hs0", f"v_lshlrev_b32 v12, 2, v{vLANE}",
        f"buffer_load_dword v13, v12, s[{SM}:{SM+3}], 0 offen sc0 sc1", "L_hs0:"] + slots[HS * 36 - 2]["dma"]
    B = Asm(); check_all(B, "L_hs2", 12)
    slots[(HS + 1) * 36 - D]["bar"][1:1] = [f"s_cmp_lg_u32 s{sW}, 0", "s_cbranch_scc1 L_hs1",
        "v_and_b32 v13, 0x01010101, v13", "v_cmp_ne_u32 vcc, 0x01010101, v13", "s_cbranch_vccz L_hs1"] + B.L + ["L_hs1:"]
    cs = [f"v_and_b32 v104, 31, v{vLANE}", f"v_lshrrev_b32 v105, 5, v{vLANE}", "v_lshlrev_b32 v104, 5, v104", "v_lshl_add_u32 v108, v105, 4, v104",
          f"s_lshl_b32 s{sT0+2}, s{sMT}, 2", f"s_add_u32 s{sT0+2}, s{sT0+2}, s{sTG}",
          f"s_mul_i32 s{sT0+2}, s{sT0+2}, {18*16384}", f"s_mul_i32 s{sT0+3}, s{sG}, 2048",
          f"s_add_u32 s{sT0+2}, s{sT0+2}, s{sT0+3}", f"s_lshl_b32 s{sT0+3}, s{sFG}, 14",
          f"s_add_u32 s{sT0+2}, s{sT0+2}, s{sT0+3}", f"v_add_u32 v108, s{sT0+2}, v108"] + [f"v_mov_b32 v{104+i}, -1" for i in range(4)]
    spread(slots, *((10, 17) if opt.cpv >= 5 else (17, 25)), cs, "x")
    cpos = [opt.cpos, [58, 62, 94, 98, 130, 166], [94, 98, 130, 134, 166, 170], [58, 94, 130, 134, 166, 170], [94, 97, 100, 130, 133, 136],
            [18, 19, 44, 80, 116, 152], [18, 19, 52, 88, 124, 160], [18, 44, 45, 80, 116, 152], [18, 19, 20, 44, 80, 116], []][opt.cpv]
    for i, pos in enumerate(cpos):
        slots[pos].setdefault("dma", []).extend([f"s_add_u32 s{sT0+8}, s{sROT2}, {6 + i//2}", f"s_cmp_ge_u32 s{sT0+8}, 9", f"s_cselect_b32 s{sT0+9}, 9, 0",
            f"s_sub_u32 s{sT0+8}, s{sT0+8}, s{sT0+9}", f"s_lshl_b32 s{sT0+8}, s{sT0+8}, 15",
            ("vm", f"buffer_store_dwordx4 v[104:107], v108, s[{SWS}:{SWS+3}], s{sT0+8} offen offset:{(i&1)*1024} sc0 sc1", "clr2")])
    slots[P2 + 10].setdefault("x", []).extend(announce("L_ann_m2", 3))
    q = P2 + 5 * 24 + 9
    B = Asm(); srd(B, SM, kp(15), 256)
    slots[q - 1].setdefault("x", []).extend(B.L)
    slots[q]["dma"] = [f"s_cmp_lg_u32 s{sW}, 0", "s_cbranch_scc1 L_hs3", f"v_lshlrev_b32 v12, 2, v{vLANE}",
        f"buffer_load_dword v13, v12, s[{SM}:{SM+3}], 0 offen sc0 sc1", "L_hs3:"] + slots[q]["dma"]
    B = Asm(); check_all(B, "L_hs5", 12, "0x02020202")
    slots[P2 + 7 * 24 - D]["bar"][1:1] = [f"s_cmp_lg_u32 s{sW}, 0", "s_cbranch_scc1 L_hs4",
        "v_and_b32 v13, 0x02020202, v13", "v_cmp_ne_u32 vcc, 0x02020202, v13", "s_cbranch_vccz L_hs4"] + B.L + ["L_hs4:"]
    if opt.pst == 3:
        for i in range(3): slots[36 * (i + 1 + opt.po)]["pre"] = ["s_memrealtime s[100:101]", ("wall", True, False), f"s_mov_b32 s{76+5+i}, s100"] + slots[36 * (i + 1 + opt.po)]["pre"]
    for o in b1rd(0): A.op(o)
    for u in range(D):
        for o in rd(u): A.op(o)
    emit_slots(A, slots[:P2])
    stamp(A, opt, 3)
    emit_slots(A, slots[P2:])
    A("s_nop 7"); A("s_nop 3")
    for o in red.store_ops(rr, 8, ACC[0], SREG): A.op(o)
    stamp(A, opt, 4)
    red.tail(A, rr, opt)
    rstamp(A, opt, 14)
    A("s_endpgm")

def main_kernel(A, opt):
    K = NAME + "_kernel"
    A(f".globl {K}"); A(".p2align 8"); A(f".type {K},@function"); A(f"{K}:")
    A("s_cmp_ge_u32 s2, 256")
    A("s_cbranch_scc1 L_exit")
    A(f"s_load_dwordx16 s[{68}:{83}], s[0:1], 0")
    A(f"s_load_dwordx16 s[{84}:{99}], s[0:1], 64")
    A(f"s_load_dwordx2 s[{66}:{67}], s[0:1], 128")
    if opt.stamps: A("s_memtime s[100:101]"); A("s_memrealtime s[44:45]")
    if opt.cpf:
        A("s_getpc_b64 s[46:47]"); A("L_pc0:")
        A(f"v_lshlrev_b32 v108, 7, v0")
        A(f"v_min_u32 v108, L_exit-L_pc0, v108")
        A("v_mov_b32 v109, s47")
        A("v_add_co_u32 v108, vcc, s46, v108")
        A("v_addc_co_u32 v109, vcc, 0, v109, vcc")
        A("global_load_dword v110, v[108:109], off")
    A(f"v_lshrrev_b32 v2, 6, v0")
    A(f"v_and_b32 v{vLANE}, 63, v0")
    A(f"v_readfirstlane_b32 s{sW}, v2")
    A(f"s_and_b32 s{sT0}, s2, 7"); A(f"s_lshr_b32 s{sT0+1}, s2, 3")
    if opt.newmap:
        A(f"s_lshr_b32 s{sT0+2}, s{sT0}, 1")
        A(f"s_and_b32 s{sT0+3}, s{sT0+1}, 3")
        A(f"s_mul_i32 s{sSL}, s{sT0+2}, 3"); A(f"s_add_u32 s{sSL}, s{sSL}, s{sT0+3}")
        A(f"s_add_u32 s{sT0+2}, s{sT0+2}, 12")
        A(f"s_cmp_eq_u32 s{sT0+3}, 3"); A(f"s_cselect_b32 s{sSL}, s{sT0+2}, s{sSL}")
        A(f"s_and_b32 s{sT0}, s{sT0}, 1"); A(f"s_lshl_b32 s{sT0}, s{sT0}, 3")
        A(f"s_lshr_b32 s{sMT}, s{sT0+1}, 2"); A(f"s_add_u32 s{sMT}, s{sMT}, s{sT0}")
    else:
        A(f"s_lshl_b32 s{sSL}, s{sT0}, 1"); A(f"s_and_b32 s{sT0+2}, s{sT0+1}, 1"); A(f"s_add_u32 s{sSL}, s{sSL}, s{sT0+2}")
        A(f"s_lshr_b32 s{sMT}, s{sT0+1}, 1")
    A(f"s_and_b32 s{sTG}, s{sW}, 3"); A(f"s_lshr_b32 s{sFG}, s{sW}, 2")
    A(f"s_mov_b32 s{sONE}, 0x3f803f80")
    A(f"s_lshr_b32 s{sWX}, s2, 1"); A(f"s_and_b32 s{sWX}, s{sWX}, {4 if opt.xr else 0}"); A(f"s_xor_b32 s{sWX}, s{sWX}, s{sW}")
    A("s_waitcnt lgkmcnt(0)")
    if opt.stamps: A("v_mov_b32 v15, s100")
    pstamp(A, opt, 8)
    srd(A, SX, kp(0), 2359296)
    srd(A, SWS, 66, WS_SIZE)
    x_loads(A, opt)
    pstamp(A, opt, 9)
    if opt.stamps:
        A(f"s_lshl_b32 s65, s2, 3"); A(f"s_add_u32 s65, s65, s{sW}"); A("s_lshl_b32 s65, s65, 7"); A(f"s_add_u32 s65, s65, {WS_STAMP}")
        if opt.stamps == 1:
            A.vm(f"buffer_store_dword v15, off, s[{SWS}:{SWS+3}], s65", "stamp")
            A(f"v_mov_b32 v15, s44")
            A.vm(f"buffer_store_dword v15, off, s[{SWS}:{SWS+3}], s65 offset:64", "stamp")
    A(f"s_cmp_ge_u32 s{sSL}, 12")
    A("s_cbranch_scc1 L_ssm")
    saved = (list(A.lq), list(A.vq))
    if opt.stamps: A("s_mov_b32 s76, s44")
    mlp_path(A, opt)
    A("L_ssm:")
    if opt.stamps: A("s_mov_b32 s86, s44")
    A.lq, A.vq = saved
    if opt.ssm:
        import gen2_ssm
        SB0[0] = 86
        gen2_ssm.ssm_path(A, opt)
        rstamp(A, opt, 14)
    A("L_exit:")
    A("s_endpgm")

def kp(i):
    return 68 + 2 * i

def kdesc(A, K, nv):
    A(".p2align 6")
    A(f".amdhsa_kernel {K}")
    A(f"  .amdhsa_next_free_vgpr {nv}")
    A("  .amdhsa_next_free_sgpr 102")
    A(f"  .amdhsa_accum_offset {nv}")
    A("  .amdhsa_group_segment_fixed_size 0")
    A("  .amdhsa_kernarg_size 136")
    A("  .amdhsa_user_sgpr_count 2")
    A("  .amdhsa_user_sgpr_kernarg_segment_ptr 1")
    A("  .amdhsa_system_sgpr_workgroup_id_x 1")
    A(".end_amdhsa_kernel")

def build(opt):
    A = Asm()
    A(HDR.rstrip("\n"))
    A("; @launch grid=(256,1,1) block=(512,1,1) lds=163840")
    A('.amdgcn_target "amdgcn-amd-amdhsa--gfx950"')
    A(".text")
    n0 = len(A.L)
    main_kernel(A, opt)
    A.lq = []; A.vq = []
    A.L[n0:], errs = check_hazards(A.L[n0:], fix=True)
    for e in errs[:0]: print(e, file=sys.stderr)
    A('.section .rodata,"a"')
    kdesc(A, NAME + "_kernel", 256)
    return A.text(), errs

if __name__ == "__main__":
    sys.modules["gen2"] = sys.modules["__main__"]
    opt = Opt()
    out = sys.argv[1] if len(sys.argv) > 1 else "k.s"
    for a in sys.argv[2:]:
        k, v = a.split("=")
        setattr(opt, k, int(v))
    t, errs = build(opt)
    if opt.clk: t = t.replace("s_memrealtime", "s_memtime")
    open(out, "w").write(t)
    print(out, len(t.splitlines()), "lines", len(errs), "hazards")
```

```python
import sys, math
from asmlib import *

NAME = "recurrent_scan__ssm_conv_s5__mixer_channel_mlp__prompt"
HDR = open("cdna_kernels/" + NAME + ".s.ref").read().split("; Override launch")[0]

C0 = -2.0 * math.log2(math.e) * math.sqrt(2.0 / math.pi)
C1 = C0 * 0.044715
KSC = -((-C1) ** (1.0 / 3.0))
C0K = C0 / KSC
PLANE = 2048 * 576 * 2
WS_AFF = 16 * PLANE
WS_E = WS_AFF + 256 * 1024
EROW = 1280
WS_FLAG = WS_E + 4 * 16 * EROW
FSTR = 4352
WS_STAMP = WS_FLAG + 128 * FSTR + 4096
WS_F2 = WS_STAMP + 65536 * 16
WS_SIZE = WS_F2 + 128 * 24576
BUFSZ = 73728
LDS_Y = 73728
LDS_B1 = 155648
LDS_ET = 147456
LDS_KT = 156672

sW, sTG, sFG, sMT, sSL = 3, 4, 5, 6, 7
SX, SA, SB, SWS, SM = 8, 12, 16, 20, 24
sT0 = 28
sD1 = 40
sD2 = 50
sROT, sROT2, sCOL, sM0A, sST, sDP, sC0K, sONE, sM0W = 56, 57, 58, 59, 60, 61, 62, 63, 64
sFLG = 39
sLOC, sCF, sCP, sXID, sG = 70, 71, 72, 73, 74
sST2 = 75
sMYF = 63
sPTR = 66
def kp(i): return sPTR + 2 * i

vLANE = 1
vDMA, vDMA2 = 2, 3
vTR = 4
vB1 = 7
vXA = 8
ACC = [16, 32]
ABUF = 48
TMP = 64
HOWN = 72
YB = 112

class Opt:
    stamps = False
    ssm = True
    nost = False
    newmap = 1
    owt = 0
    pf = 1
    ff = 1
    fu = 50
    f7 = 22
    f6 = 23
    forcefb = 0
    cp = 15
    po = 0
    clk = 0
    yw = 2
    ov = 1
    b3 = 3
    b4 = 9
    yr = 4
    la = 1
    xl = 1
    xr = 1
    pst = 0
    lsp = 4
    ds = 4
    sp = 6
    p2 = 0
    pm = 17
    prio = 0
    pfb = 1
    ch = 8
    d1 = 8
    cpf = 0
    hsl = 0
    cpv = 0
    tb = 0
    e0 = 0
    e1 = 0
    e2 = 0
    stg = 0
    cpos = [27, 31, 36 + 22, 72 + 22, 108 + 22, 144 + 22]

def stamp(A, opt, idx):
    if not opt.stamps or opt.stamps == 3: return
    if opt.stamps == 2:
        A(f"s_memrealtime s[100:101]"); A("s_waitcnt lgkmcnt(0)"); A.lq = []
        A(f"s_mov_b32 s{SB0[0]+idx}, s100"); return
    A(f"s_memtime s[100:101]")
    A("s_waitcnt lgkmcnt(0)")
    A.lq = []
    A(f"v_mov_b32 v0, s100")
    A(f"s_memrealtime s[100:101]")
    A.vm(f"buffer_store_dword v0, off, s[{SWS}:{SWS+3}], s65 offset:{4*idx}", "stamp")
    A("s_waitcnt lgkmcnt(0)")
    A(f"v_mov_b32 v0, s100")
    A.vm(f"buffer_store_dword v0, off, s[{SWS}:{SWS+3}], s65 offset:{4*idx+64}", "stamp")

PST = []
SB0 = [76]
def pstamp(A, opt, idx):
    if not opt.stamps or opt.stamps >= 2: return
    A(f"s_memtime s[100:101]")
    A("s_waitcnt lgkmcnt(0)")
    A.lq = []
    A(f"v_mov_b32 v{56+idx-5}, s100")

def pflush(A, opt, idxs):
    if not opt.stamps or opt.stamps >= 2: return
    for idx in idxs:
        A.vm(f"buffer_store_dword v{56+idx-5}, off, s[{SWS}:{SWS+3}], s65 offset:{4*idx}", "stamp")

def rstamp(A, opt, idx, srdr=SWS, soff="s65", drain=True):
    if not opt.stamps: return
    if drain: A("s_waitcnt vmcnt(0)")
    A(f"s_memrealtime s[100:101]")
    A("s_waitcnt lgkmcnt(0)")
    A.lq = []
    A(f"v_mov_b32 v0, s100")
    A.vm(f"buffer_store_dword v0, off, s[{srdr}:{srdr+3}], {soff} offset:{4*idx}", "stamp")
    if opt.stamps >= 2:
        for i in range(0, 8 if opt.stamps == 2 else 1):
            A(f"v_mov_b32 v{2+i}, s{SB0[0]+i}")
            A(f"buffer_store_dword v{2+i}, off, s[{srdr}:{srdr+3}], {soff} offset:{4*i+64}")

def srd(A, d, p, nrec, lower=0):
    if lower:
        A(f"s_sub_u32 s{d}, s{p}, {lower}")
        A(f"s_subb_u32 s{d+1}, s{p+1}, 0")
    else:
        A(f"s_mov_b32 s{d}, s{p}")
        A(f"s_mov_b32 s{d+1}, s{p+1}")
    A(f"s_mov_b32 s{d+2}, {nrec + lower}")
    A(f"s_mov_b32 s{d+3}, 0x20000")

def Rreg(e, c):
    if c < 5: return 216 + (c * 2 + e) * 4
    return 72 + ((c - 5) * 2 + e) * 4

def bf16r(A, d, s):
    A(f"v_cvt_pk_bf16_f32 v{d}, v{s}, v{s}")
    A(f"v_and_b32 v{d}, 0xffff0000, v{d}")

sWX = 61
def x_issue(A, track):
    for c in range(9):
        for e in range(2):
            ins = f"buffer_load_dwordx4 {vr(Rreg(e,c),4)}, v8, s[{SX}:{SX+3}], s{sT0+e} offen offset:{c*128}"
            if track: A.vm(ins, ("x", c, e))
            else: A(ins)

def x_loads(A, opt):
    A(f"v_lshrrev_b32 v8, 3, v{vLANE}")
    A(f"s_lshl_b32 s{sT0}, s{sWX}, 4")
    A(f"v_add_u32 v8, s{sT0}, v8")
    A(f"v_mul_u32_u24 v8, 1152, v8")
    A(f"v_and_b32 v9, 7, v{vLANE}")
    A(f"v_lshl_add_u32 v8, v9, 4, v8")
    A(f"s_mul_i32 s{sT0}, s{sMT}, 147456")
    A(f"s_add_u32 s{sT0+1}, s{sT0}, 9216")
    if opt.xl:
        A(f"s_cmp_lg_u32 s{sFG}, 0"); A("s_cbranch_scc1 L_x0")
        x_issue(A, False)
        A("L_x0:")
    else: x_issue(A, True)

def dma1(A, stage, i):
    ops = []
    if i % 4 == 0:
        ops.append(f"s_add_u32 m0, s{sM0W}, {(stage & 1) * BUFSZ + i * 1024}")
        ops.append("s_nop 0")
    ops.append(("vm", f"buffer_load_dwordx4 v{vDMA2}, s[{SA}:{SA+3}], s{sD1+i} offen offset:{(i % 4) * 1024} lds", ("d1", stage)))
    return ops

class Rec(list):
    def __call__(s, x): s.append(x)
    def op(s, x): s.append(x)
    def vm(s, x, t=None): s.append(("vm", x, t))
    def lds(s, x, t=None): s.append(("lds", x, t))

def overlap0(slots, opt, dma):
    n = 0
    for c in range(5, 9 - opt.yw):
        for e in range(2):
            slots[n // 2].setdefault("x", []).append(("lds", f"ds_write_b128 v{10+e}, {vr(Rreg(e,c),4)} offset:{(c-5)*16384}", "yw")); n += 1
    b3, b4 = opt.b3, opt.b4
    slots[b3].setdefault("bar", []).extend([("wl", ["yw"]), "s_barrier"])
    for i, s in enumerate(range(20, 36)):
        slots[b3 + i // opt.yr].setdefault("x", []).append(("lds", f"ds_read_b128 {vr(YB+4*s,4)}, v{12+(s&3)} offset:{((s>>2)-5)*16384}", ("y", s)))
    slots[b4].setdefault("bar", []).extend([("wl", [("y", 35)]), "s_barrier"])
    for i, d in enumerate(dma): slots[b4 + i].setdefault("dma", []).extend(d)

def ln_prologue(A, opt, mlp, late=(), pre2=()):
    SUM = [16, 17]; SQ = [18, 19]
    for r in SUM + SQ: A(f"v_mov_b32 v{r}, 0")
    for e in range(2):
        d = 10 + e
        A(f"v_lshrrev_b32 v20, 3, v{vLANE}")
        A(f"s_lshl_b32 s{sT0+2}, s{sWX}, 4")
        A(f"s_add_u32 s{sT0+2}, s{sT0+2}, {8*e}")
        A(f"v_add_u32 v20, s{sT0+2}, v20")
        if not mlp:
            A(f"v_and_b32 v21, 0x63, v20")
            A(f"v_bfe_u32 v22, v20, 2, 2")
            A(f"v_lshl_or_b32 v21, v22, 3, v21")
            A(f"v_bfe_u32 v22, v20, 4, 1")
            A(f"v_lshl_or_b32 v20, v22, 2, v21")
        A(f"v_bfe_u32 v21, v20, 1, 3")
        A(f"v_and_b32 v22, 7, v{vLANE}")
        A(f"v_xor_b32 v21, v21, v22")
        A(f"v_lshlrev_b32 v21, 4, v21")
        A(f"v_lshl_add_u32 v{d}, v20, 7, v21")
        A(f"v_add_u32 v{d}, {LDS_Y}, v{d}")
    A(f"v_and_b32 v20, 31, v{vLANE}")
    A(f"v_bfe_u32 v21, v20, 1, 3")
    A(f"v_lshrrev_b32 v22, 5, v{vLANE}")
    A(f"v_xor_b32 v21, v21, v22")
    A(f"v_lshlrev_b32 v21, 4, v21")
    A(f"s_lshl_b32 s{sT0+2}, s{sTG}, 5")
    A(f"v_add_u32 v20, s{sT0+2}, v20")
    A(f"v_lshl_add_u32 v12, v20, 7, v21")
    A(f"v_add_u32 v12, {LDS_Y}, v12")
    for i in range(1, 4): A(f"v_xor_b32 v{12+i}, {32*i}, v12")
    pstamp(A, opt, 10)
    if opt.xl:
        A(f"s_cmp_eq_u32 s{sFG}, 0"); A(f"s_cbranch_scc1 L_x1{int(mlp)}")
        x_issue(A, True)
        A(f"L_x1{int(mlp)}:")
    for c in range(9):
        A.wait(vm=[("x", c, 1)])
        if c == 0: pstamp(A, opt, 11)
        if c == 8: pstamp(A, opt, 12)
        if mlp and opt.pst == 1 and c in (0, 8): stamp(A, opt, 6 + c // 8)
        for j in range(4):
            for e in range(2):
                r = Rreg(e, c) + j
                A(f"v_dot2c_f32_bf16 v{SUM[e]}, s{sONE}, v{r}")
                A(f"v_dot2c_f32_bf16 v{SQ[e]}, v{r}, v{r}")
    A("s_nop 2")
    for mode in ("quad_perm:[1,0,3,2]", "quad_perm:[2,3,0,1]", "row_half_mirror"):
        for r in SUM + SQ:
            A(f"v_add_f32_dpp v{r}, v{r}, v{r} {mode} row_mask:0xf bank_mask:0xf")
    inv = hexf(1.0 / 576.0); eps = hexf(1e-5)
    late = list(late); cnt = [0]
    def both(f):
        for e in range(2): A(f(e))
        cnt[0] += 1
        if late and not opt.la and cnt[0] % opt.lsp == 0:
            for o in late.pop(0): A.op(o)
    both(lambda e: f"v_mul_f32 v{20+e}, {inv}, v{SUM[e]}")
    both(lambda e: f"v_mul_f32 v{22+e}, {inv}, v{SQ[e]}")
    both(lambda e: f"v_fma_f32 v{22+e}, -v{20+e}, v{20+e}, v{22+e}")
    both(lambda e: f"v_max_f32 v{22+e}, 0, v{22+e}")
    def rnd(d, s):
        both(lambda e: f"v_cvt_pk_bf16_f32 v{d+e}, v{s+e}, v{s+e}")
        both(lambda e: f"v_and_b32 v{d+e}, 0xffff0000, v{d+e}")
    rnd(24, 20)
    rnd(26, 22)
    both(lambda e: f"v_add_f32 v{26+e}, {eps}, v{26+e}")
    rnd(26, 26)
    both(lambda e: f"v_sqrt_f32 v{26+e}, v{26+e}")
    rnd(26, 26)
    both(lambda e: f"v_rcp_f32 v{28+e}, v{26+e}")
    A(f"v_lshrrev_b32 v34, 3, v{vLANE}")
    A(f"s_lshl_b32 s{sT0+3}, s{sWX}, 4")
    A(f"v_add_u32 v34, s{sT0+3}, v34")
    A(f"v_lshlrev_b32 v34, 3, v34")
    A(f"v_mov_b32 v36, v24"); A(f"v_mov_b32 v38, v25"); A(f"v_mov_b32 v37, v28"); A(f"v_mov_b32 v39, v29")
    A(f"s_lshl_b32 s{sT0+2}, s2, 10"); A(f"s_add_u32 s{sT0+2}, s{sT0+2}, {WS_AFF}")
    A.vm(f"buffer_store_dwordx2 v[36:37], v34, s[{SWS}:{SWS+3}], s{sT0+2} offen", "aff")
    A.vm(f"buffer_store_dwordx2 v[38:39], v34, s[{SWS}:{SWS+3}], s{sT0+2} offen offset:64", "aff")
    A("s_nop 1")
    if mlp:
        both(lambda e: f"v_sub_f32 v{30+e}, v{20+e}, v{24+e}")
        both(lambda e: f"v_mul_f32 v{30+e}, v{30+e}, v{28+e}")
        rnd(30, 30)
        both(lambda e: f"v_mul_f32 v{32+e}, v{28+e}, v{28+e}")
        both(lambda e: f"v_mul_f32 v{32+e}, v{32+e}, v{22+e}")
        rnd(32, 32)
        both(lambda e: f"v_add_f32 v{32+e}, {eps}, v{32+e}")
        rnd(32, 32)
        both(lambda e: f"v_sqrt_f32 v{32+e}, v{32+e}")
        rnd(32, 32)
        both(lambda e: f"v_rcp_f32 v{32+e}, v{32+e}")
        both(lambda e: f"v_fma_f32 v{24+e}, v{30+e}, v{26+e}, v{24+e}")
        both(lambda e: f"v_mul_f32 v{28+e}, v{28+e}, v{32+e}")
        both(lambda e: f"v_mul_f32 v{28+e}, {hexf(KSC)}, v{28+e}")
    rnd(34, 28)
    both(lambda e: f"v_lshrrev_b32 v{36+e}, 16, v{34+e}")
    both(lambda e: f"v_mul_f32 v{38+e}, v{34+e}, v{24+e}")
    both(lambda e: f"v_sub_f32 v{38+e}, 0, v{38+e}")
    def norm(e, c):
        b = Rreg(e, c)
        T = 40
        for j in range(4):
            A(f"v_dot2_f32_bf16 v{T+2*j}, v{b+j}, v{36+e}, v{38+e}")
            A(f"v_dot2_f32_bf16 v{T+2*j+1}, v{b+j}, v{34+e}, v{38+e}")
        A("s_nop 0")
        for j in range(4):
            if j == 3: A("s_nop 0")
            A(f"v_cvt_pk_bf16_f32 v{b+j}, v{T+2*j}, v{T+2*j+1}")
    def ywrite(e, c, slot):
        if slot < 4:
            A.lds(f"ds_write_b128 v{10+e}, {vr(Rreg(e,c),4)} offset:{slot*16384}", "yw")
        else:
            A(f"v_add_u32 v48, 0x10000, v{10+e}")
            A.lds(f"ds_write_b128 v48, {vr(Rreg(e,c),4)}", "yw")
    def yread(s, slot):
        if slot < 4:
            A.lds(f"ds_read_b128 {vr(YB+4*s,4)}, v{12+(s&3)} offset:{slot*16384}", ("y", s))
        else:
            A(f"v_add_u32 v48, 0x10000, v{12+(s&3)}")
            A.lds(f"ds_read_b128 {vr(YB+4*s,4)}, v48", ("y", s))
    def pop(n=99):
        while late and n > 0:
            n -= 1
            for o in late.pop(0): A.op(o)
    if not opt.la: pop()
    stamp(A, opt, 1)
    for c in range(5):
        for e in range(2):
            norm(e, c); ywrite(e, c, c)
            if opt.la == 1: pop(1)
    if opt.la in (1, 2): pop()
    A.wait_all()
    if mlp and opt.pst == 2 and 0 < 3: stamp(A, opt, 5)
    A("s_barrier")
    for s in range(20): yread(s, s >> 2)
    for c in range(5, 9):
        for e in range(2): norm(e, c); pop(1)
    pop()
    if opt.ov:
        for o in pre2: A.op(o)
        A.wait(vm=[("d1", 0)])
    A.wait_all()
    if mlp and opt.pst == 2 and 1 < 3: stamp(A, opt, 6)
    A("s_barrier")
    if opt.ov:
        stamp(A, opt, 2)
        for c in range(9 - opt.yw, 9):
            for e in range(2): ywrite(e, c, c - 5)
        return
    for c in range(5, 9):
        for e in range(2): ywrite(e, c, c - 5)
    A.wait_all()
    if mlp and opt.pst == 2 and 2 < 3: stamp(A, opt, 7)
    A("s_barrier")
    for s in range(20, 36): yread(s, (s >> 2) - 5)
    A.wait_all()
    if mlp and opt.pst == 2 and 3 < 3: stamp(A, opt, 8)
    A("s_barrier")
    stamp(A, opt, 2)
    pflush(A, opt, [8, 9, 10, 11, 12])

def cost(o):
    s = o if isinstance(o, str) else o[1]
    if isinstance(s, str) and s.startswith(("v_exp", "v_rcp")): return 8
    if isinstance(s, str) and s.startswith(("v_cvt", "v_dot")) or "dpp" in str(s): return 4
    return 3

def spread(slots, lo, hi, ops, key="valu"):
    tot = sum(cost(o) for o in ops)
    acc = 0
    glue = False
    for o in ops:
        if not glue: j = lo + int(acc * (hi - lo) / tot)
        glue = isinstance(o, str) and o.startswith(("s_cmp", "v_cmp"))
        slots[j].setdefault(key, []).append(o)
        acc += cost(o)

def gelu_ops(acc, dst, grp=4):
    ops = []
    for g0 in range(0, 16, grp):
        es = range(g0, g0 + grp)
        T = lambda e: TMP + (e % 8)
        for e in es: ops.append(f"v_fma_f32 v{T(e)}, v{acc+e}, v{acc+e}, s{sC0K}")
        for e in es: ops.append(f"v_mul_f32 v{T(e)}, v{T(e)}, v{acc+e}")
        for e in es: ops.append(f"v_exp_f32 v{T(e)}, v{T(e)}")
        for e in es: ops.append(f"v_add_f32 v{T(e)}, 1.0, v{T(e)}")
        for e in es: ops.append(f"v_rcp_f32 v{T(e)}, v{T(e)}")
        for e in es: ops.append(f"v_mul_f32 v{T(e)}, v{T(e)}, v{acc+e}")
        for e in es[::2]: ops.append(f"v_cvt_pk_bf16_f32 v{dst + e//2}, v{T(e)}, v{T(e+1)}")
    return ops

def emit_slots(A, slots):
    for s in slots:
        for k in ("pre",):
            for o in s.get(k, []): A.op(o)
        if s.get("mfma"): A(s["mfma"])
        for k in ("bar", "rd", "dma", "x", "valu"):
            for o in s.get(k, []): A.op(o)

WT = " sc0 sc1"
def store_ops(acc, SREG, tag):
    ops = [f"v_cvt_pk_bf16_f32 v{SREG+i}, v{acc+2*i}, v{acc+2*i+1}" for i in range(8)]
    ops.insert(4, ("vm", f"buffer_store_dwordx4 {vr(SREG,4)}, v{vXA}, s[{SWS}:{SWS+3}], s{sST} offen{WT}", tag))
    ops.append(("vm", f"buffer_store_dwordx4 {vr(SREG+4,4)}, v{vXA}, s[{SWS}:{SWS+3}], s{sST} offen offset:1024{WT}", tag))
    return ops

def announce(lbl, val=1):
    return [f"s_cmp_lg_u32 s{sW}, 0", f"s_cbranch_scc1 {lbl}",
            f"s_lshl_b32 s{sT0}, s{sMT}, 4", f"s_add_u32 s{sT0}, s{sT0}, s{sSL}",
            f"v_mov_b32 v0, {val}", "s_mov_b64 exec, 1",
            f"buffer_store_byte v0, off, s[{SM}:{SM+3}], s{sT0} sc0 sc1", "s_mov_b64 exec, -1", f"{lbl}:"]

def clear_flag(A, mlp=False):
    A(f"s_lshl_b32 s{sT0}, s{sMT}, 3"); A(f"s_add_u32 s{sT0}, s{sT0}, s{sW}")
    A(f"s_mul_i32 s{sFLG}, s{sT0}, {FSTR}"); A(f"s_add_u32 s{sFLG}, s{sFLG}, {WS_FLAG}")
    if mlp: return
    A(f"s_add_u32 s{sMYF}, s{sSL}, s{sFLG}")
    A(f"v_mov_b32 v9, 0")
    A("s_mov_b64 exec, 1")
    A.vm(f"buffer_store_byte v9, off, s[{SWS}:{SWS+3}], s{sMYF} sc0 sc1", "clr")
    A("s_mov_b64 exec, -1")

def check_all(A, lbl, vt, pat="0x01010101"):
    A(f"v_lshlrev_b32 v{vt}, 2, v{vLANE}")
    A(f"s_movk_i32 s{sT0}, 0x4000")
    A(f"{lbl}:")
    A(f"buffer_load_dword v{vt+1}, v{vt}, s[{SM}:{SM+3}], 0 offen sc0 sc1")
    A(f"s_sub_u32 s{sT0}, s{sT0}, 1")
    A(f"s_cbranch_scc1 {lbl}_d")
    A("s_waitcnt vmcnt(0)")
    A(f"v_and_b32 v{vt+1}, {pat}, v{vt+1}")
    A(f"v_cmp_ne_u32 vcc, {pat}, v{vt+1}")
    A(f"s_cbranch_vccnz {lbl}")
    A(f"{lbl}_d:")
    A("s_waitcnt vmcnt(0)")

def mlp_path(A, opt):
    D = 3
    if opt.pst == 1: stamp(A, opt, 5)
    srd(A, SA, kp(10), 5308416)
    srd(A, SB, kp(12), 5308416, lower=4096)
    srd(A, SM, kp(11), 9216)
    A(f"s_mul_i32 s{sT0+2}, s{sMT}, 43"); A(f"s_lshr_b32 s{sT0+2}, s{sT0+2}, 8")
    A(f"s_mul_i32 s{sT0+2}, s{sT0+2}, 6"); A(f"s_sub_u32 s{sROT}, s{sMT}, s{sT0+2}")
    A(f"s_mul_i32 s{sG}, s{sSL}, 11"); A(f"s_lshr_b32 s{sG}, s{sG}, 5")
    A(f"s_mul_i32 s{sT0+2}, s{sG}, 3"); A(f"s_sub_u32 s{sCF}, s{sSL}, s{sT0+2}")
    A(f"s_mul_i32 s{sT0+2}, s{sCF}, 3"); A(f"s_add_u32 s{sROT2}, s{sMT}, 9"); A(f"s_sub_u32 s{sROT2}, s{sROT2}, s{sT0+2}")
    for _ in range(2):
        A(f"s_cmp_ge_u32 s{sROT2}, 9"); A(f"s_cselect_b32 s{sT0+2}, 9, 0"); A(f"s_sub_u32 s{sROT2}, s{sROT2}, s{sT0+2}")
    A(f"s_sub_u32 s{sCP}, s{sCF}, 1"); A(f"s_cselect_b32 s{sCP}, 2, s{sCP}")
    A(f"s_getreg_b32 s{sXID}, hwreg(HW_REG_XCC_ID, 0, 4)"); A(f"s_lshl_b32 s{sXID}, s{sXID}, 8")
    if opt.forcefb: A(f"s_lshl_b32 s{sXID}, s{sCF}, 8")
    for i in range(9): A(f"s_mov_b32 s{sD1+i}, {i*73728 - (i%4)*1024}")
    A(f"s_mul_i32 s{sM0W}, s{sW}, 9216")
    A(f"v_bfe_u32 v9, v{vLANE}, 2, 3")
    A(f"v_lshrrev_b32 v10, 5, v{vLANE}")
    A(f"v_and_b32 v11, 3, v{vLANE}")
    A(f"v_lshlrev_b32 v11, 4, v11")
    A(f"v_lshl_add_u32 v10, v10, 6, v11")
    A(f"v_mul_u32_u24 v{vDMA}, 9216, v9")
    A(f"v_add_u32 v{vDMA}, v{vDMA}, v10")
    A(f"s_mul_i32 s{sT0+2}, s{sW}, {72*9216}")
    A(f"s_mul_i32 s{sT0+3}, s{sSL}, 768")
    A(f"s_add_u32 s{sT0+2}, s{sT0+2}, s{sT0+3}")
    A(f"v_add_u32 v{vDMA}, s{sT0+2}, v{vDMA}")
    A(f"s_lshl_b32 s{sCOL}, s{sROT}, 7")
    A(f"v_add_u32 v{vDMA2}, s{sCOL}, v{vDMA}")
    late = [dma1(A, 0, i) for i in range(9)]
    if not opt.lsp:
        for l in late:
            for o in l: A.op(o)
        late = []
    def nextcol():
        return [f"s_add_u32 s{sCOL}, s{sCOL}, 128", f"s_cmp_ge_u32 s{sCOL}, 768", f"s_cselect_b32 s{sCOL}, 0, s{sCOL}",
                f"v_add_u32 v{vDMA2}, s{sCOL}, v{vDMA}"]
    A(f"s_mul_i32 s{sT0+2}, s{sSL}, 768")
    A(f"v_lshl_add_u32 v49, v0, 1, s{sT0+2}")
    late.append([("vm", f"buffer_load_ushort v49, v49, s[{SM}:{SM+3}], 0 offen", "b1")])
    A(f"v_lshrrev_b32 v9, 5, v{vLANE}"); A("v_lshlrev_b32 v9, 10, v9")
    A(f"v_bfe_u32 v10, v{vLANE}, 2, 2"); A("v_lshl_add_u32 v9, v10, 6, v9")
    A(f"v_bfe_u32 v10, v{vLANE}, 4, 1"); A("v_lshl_add_u32 v9, v10, 5, v9")
    A(f"v_and_b32 v10, 3, v{vLANE}"); A("v_lshl_add_u32 v9, v10, 3, v9")
    A(f"s_lshl_b32 s{sT0+2}, s{sFG}, 9")
    A(f"v_add_u32 v{vTR}, s{sT0+2}, v9")
    A(f"v_add_u32 v{vTR+1}, 0x10000, v{vTR}")
    A(f"v_add_u32 v{vTR+2}, 0x20000, v{vTR}")
    A(f"v_lshrrev_b32 v9, 5, v{vLANE}")
    A(f"s_lshl_b32 s{sT0+2}, s{sFG}, 7"); A(f"s_add_u32 s{sT0+2}, s{sT0+2}, {LDS_B1}")
    A(f"v_lshl_add_u32 v{vB1}, v9, 4, s{sT0+2}")
    A(f"s_mov_b32 s{sC0K}, {hexf(C0K)}")
    A(f"s_mul_i32 s{sT0+2}, s{sW}, 6")
    A(f"s_mul_i32 s{sT0+6}, s{sSL}, {384*1152}")
    for i in range(6):
        A(f"s_add_u32 s{sT0+3}, s{sT0+2}, {i}")
        A(f"s_lshr_b32 s{sT0+4}, s{sT0+3}, 3")
        A(f"s_add_u32 s{sT0+4}, s{sT0+4}, s{sROT}")
        A(f"s_cmp_ge_u32 s{sT0+4}, 6"); A(f"s_cselect_b32 s{sT0+5}, 6, 0"); A(f"s_sub_u32 s{sT0+4}, s{sT0+4}, s{sT0+5}")
        A(f"s_lshl_b32 s{sT0+4}, s{sT0+4}, 3")
        A(f"s_and_b32 s{sT0+3}, s{sT0+3}, 7")
        A(f"s_add_u32 s{sT0+4}, s{sT0+4}, s{sT0+3}")
        A(f"s_mul_i32 s{sT0+4}, s{sT0+4}, 9216")
        A(f"s_add_u32 s{sT0+4}, s{sT0+4}, s{sT0+6}")
        A(f"s_add_u32 s{sD2+i}, s{sT0+4}, {4096 - (i%4)*1024}")
    A(f"s_sub_u32 s{sT0+2}, s{sW}, s{sROT}")
    A(f"s_cmp_lt_i32 s{sT0+2}, 0"); A(f"s_cselect_b32 s{sT0+3}, 6, 0"); A(f"s_add_u32 s{sT0+2}, s{sT0+2}, s{sT0+3}")
    A(f"s_lshl_b32 s{sT0+2}, s{sT0+2}, 8"); A(f"s_add_u32 s{sT0+2}, s{sT0+2}, {LDS_B1}")
    A(f"s_cmp_ge_u32 s{sW}, 6"); A(f"s_cselect_b32 s{sT0+2}, {LDS_B1 + 2048}, s{sT0+2}")
    A(f"v_lshl_add_u32 v50, v{vLANE}, 2, s{sT0+2}")

    ln_prologue_pre = len(A.L)
    R = Rec()
    R(("wv", ["b1"]))
    R("v_lshlrev_b32 v49, 16, v49")
    R(f"v_mul_f32 v49, {hexf(KSC)}, v49")
    R.lds("ds_write_b32 v50, v49", "b1w")
    srd(R, SM, kp(15), 256)
    clear_flag(R, True)
    R(f"s_lshl_b32 s{sT0}, s{sG}, 7"); R(f"s_add_u32 s{sT0}, s{sT0}, 128"); R(f"s_add_u32 s{sLOC}, s{sT0}, s{sFLG}")
    R(f"s_lshl_b32 s{sCF}, s{sCF}, 2"); R(f"s_add_u32 s{sCF}, s{sCF}, s{sLOC}")
    R(f"s_lshl_b32 s{sCP}, s{sCP}, 2"); R(f"s_add_u32 s{sCP}, s{sCP}, s{sLOC}")
    R(f"v_mov_b32 v9, s{sXID}"); R("s_mov_b64 exec, 1")
    R.vm(f"buffer_store_dword v9, off, s[{SWS}:{SWS+3}], s{sCF} sc0 sc1", "clr")
    R("s_mov_b64 exec, -1")
    for o in nextcol(): R.op(o)
    ln_prologue(A, opt, True, late, R)
    if not opt.ov:
        for o in R: A.op(o)
        for i in range(9):
            for o in dma1(A, 1, i): A.op(o)
        A.wait(lds=["b1w"], vm=[("d1", 0)])
        A("s_barrier")

    HP = YB
    H5 = YB + 48
    SREG = YB + 56
    vP2 = YB + 64
    vHX = YB + 70
    def hown(t): return HOWN + 8 * t if t < 5 else H5
    korder = [("o", t, kk) for t in range(5) for kk in range(2)] + [("p", t, kk) for t in range(4) for kk in range(2)] + \
             [("o", 5, 0), ("o", 5, 1)] + [("p", t, kk) for t in (4, 5) for kk in range(2)]
    units = []
    for s in range(6):
        for k in range(36): units.append((1, s, k))
    for j in range(9):
        for k in range(24): units.append((2, j, k))
    NU = len(units)
    def rd(u):
        ph, s, k = units[u]
        b = ABUF + 4 * (u % 4)
        if ph == 1:
            pos = (s & 1) * BUFSZ + k * 2048
            return [("lds", f"ds_read_b64_tr_b16 {vr(b+2*r,2)}, v{vTR + ((pos + r*256) >> 16)} offset:{(pos + r*256) & 0xffff}", ("a", u)) for r in range(2)]
        who, t, kk = korder[k]
        areg = vP2 + (s % 3) * 2 + (0 if who == "o" else 1)
        return [("lds", f"ds_read_b64_tr_b16 {vr(b+2*r,2)}, v{areg} offset:{(8*t + 2*kk + r) * 1024}", ("a", u)) for r in range(2)]
    def b1rd(s):
        return [("lds", f"ds_read_b128 {vr(ACC[s&1] + 4*j, 4)}, v{vB1} offset:{s*256 + j*32}", ("b1", s)) for j in range(4)]
    slots = []
    for u, (ph, s, k) in enumerate(units):
        b = ABUF + 4 * (u % 4)
        acc = ACC[s & 1]
        sl = {}
        w = [("a", u)]
        if ph == 1:
            if k == 0: w.append(("b1", s))
            sl["mfma"] = f"v_mfma_f32_32x32x16_bf16 {vr(acc,16)}, {vr(b,4)}, {vr(YB+4*k,4)}, {vr(acc,16)}"
        else:
            who, t, kk = korder[k]
            hb = (hown(t) if who == "o" else HP + 8 * t) + 4 * kk
            if who == "p": w.append(("hx", t))
            sl["mfma"] = f"v_mfma_f32_32x32x16_bf16 {vr(acc,16)}, {vr(b,4)}, {vr(hb,4)}, {'0' if k == 0 else vr(acc,16)}"
        sl["pre"] = [("wl", w)]
        slots.append(sl)
    for u in range(NU - D):
        ph, s, k = units[u + D]
        if k == 0:
            slots[u]["bar"] = [("wv", [("d1", s) if ph == 1 else ("d2", s)]), "s_barrier"]
        slots[u]["rd"] = rd(u + D)
    P2 = 216
    if opt.ov: overlap0(slots, opt, [dma1(A, 1, i) for i in range(9)])
    slots[36 + 16].setdefault("x", []).extend(announce("L_ann_m"))
    for s in range(2, 6):
        base = (s - 1) * 36 - 2
        slots[base].setdefault("dma", []).extend(nextcol())
        for i in range(9):
            if opt.stg:
                d = dma1(A, s, i)
                e = [o if isinstance(o, str) else o[1] for o in d]
                slots[base + 1 + (opt.d1 * i) // 4].setdefault("dma", []).extend([f"s_cmp_ge_u32 s{sW}, 4", f"s_cbranch_scc1 L_sg{s}_{i}a"] + e + [f"L_sg{s}_{i}a:"])
                slots[base + 1 + opt.stg + (opt.d1 * i) // 4].setdefault("dma", []).extend([f"s_cmp_lt_u32 s{sW}, 4", f"s_cbranch_scc1 L_sg{s}_{i}b"] + d + [f"L_sg{s}_{i}b:"])
            else:
                slots[base + 1 + (opt.d1 * i) // 4].setdefault("dma", []).extend(dma1(A, s, i))
    def dma2(j, i):
        ops = []
        if i % 4 == 0:
            ops += [f"s_add_u32 m0, s{sM0A}, {(j % 3) * 49152 + i * 1024}", "s_nop 0"]
        ops.append(("vm", f"buffer_load_dwordx4 v{vDMA2}, s[{SB}:{SB+3}], s{sD2+i} offen offset:{(i%4)*1024} lds", ("d2", j)))
        return ops
    def nextdp(first):
        if first:
            return [f"s_mul_i32 s{sM0A}, s{sW}, 6144",
                    f"v_bfe_u32 v9, v{vLANE}, 2, 3", f"v_lshrrev_b32 v10, 5, v{vLANE}", f"v_and_b32 v11, 3, v{vLANE}",
                    "v_lshlrev_b32 v11, 4, v11", "v_lshl_add_u32 v10, v10, 6, v11",
                    f"v_mul_u32_u24 v{vDMA}, 1152, v9", f"v_add_u32 v{vDMA}, v{vDMA}, v10",
                    f"s_lshl_b32 s{sCOL}, s{sROT2}, 7", f"v_add_u32 v{vDMA2}, s{sCOL}, v{vDMA}"]
        return [f"s_add_u32 s{sCOL}, s{sCOL}, 128", f"s_cmp_ge_u32 s{sCOL}, 1152", f"s_cselect_b32 s{sCOL}, 0, s{sCOL}",
                f"v_add_u32 v{vDMA2}, s{sCOL}, v{vDMA}"]
    d2base = {0: 5 * 36 - 2, 1: P2 - 2, 2: P2 + 24 - 2, 3: P2 + 24 + 10}
    for j in range(4, 9): d2base[j] = P2 + (j - 2) * 24 + 9
    for j in range(9):
        base = d2base[j]
        slots[base].setdefault("dma", []).extend(nextdp(j == 0))
        for i in range(6): slots[base + 1 + (2 * i if j < 4 else (opt.ds * i) // 4)].setdefault("dma", []).extend(dma2(j, i))
    for s in range(1, 6):
        spread(slots, s * 36 + 2, s * 36 + 31, gelu_ops(ACC[(s - 1) & 1], hown(s - 1)))
    for s in range(1, 6):
        slots[s * 36 - 5].setdefault("x", []).extend(b1rd(s))
    spread(slots, P2 + 2, P2 + 15, gelu_ops(ACC[1], H5))
    S5 = 5 * 36
    setup = [f"v_lshlrev_b32 v9, 4, v{vLANE}",
             f"s_lshl_b32 s{sT0+2}, s{sW}, 11", f"s_add_u32 s{sT0+2}, s{sT0+2}, 49152",
             f"v_add_u32 v{vHX}, s{sT0+2}, v9", f"v_add_u32 v{vHX+1}, {147456-49152}, v{vHX}",
             f"v_xor_b32 v{vHX+2}, 0x2000, v{vHX}", f"v_add_u32 v{vHX+3}, {147456-49152}, v{vHX+2}",
             f"v_lshrrev_b32 v9, 5, v{vLANE}", "v_lshlrev_b32 v9, 8, v9",
             f"v_bfe_u32 v10, v{vLANE}, 2, 2", "v_lshl_add_u32 v9, v10, 6, v9",
             f"v_and_b32 v10, 1, v{vLANE}", "v_lshl_add_u32 v9, v10, 5, v9",
             f"v_bfe_u32 v10, v{vLANE}, 1, 1", "v_lshl_add_u32 v9, v10, 3, v9",
             f"v_bfe_u32 v10, v{vLANE}, 4, 1", "v_lshl_add_u32 v9, v10, 4, v9",
             f"s_mul_i32 s{sT0+2}, s{sFG}, {4096+512}",
             f"v_add_u32 v{vP2}, s{sT0+2}, v9", f"v_xor_b32 v{vP2+1}, 0x1000, v{vP2}",
             f"v_add_u32 v{vP2+2}, 49152, v{vP2}", f"v_add_u32 v{vP2+3}, 49152, v{vP2+1}",
             f"v_add_u32 v{vP2+4}, 98304, v{vP2}", f"v_add_u32 v{vP2+5}, 98304, v{vP2+1}",
             f"v_and_b32 v9, 31, v{vLANE}", f"v_lshrrev_b32 v10, 5, v{vLANE}", "v_lshlrev_b32 v9, 5, v9",
             f"v_lshl_add_u32 v{vXA}, v10, 4, v9",
             f"s_lshl_b32 s{sT0+2}, s{sMT}, 2", f"s_add_u32 s{sT0+2}, s{sT0+2}, s{sTG}",
             f"s_mul_i32 s{sT0+2}, s{sT0+2}, {18*16384}", f"s_mul_i32 s{sT0+3}, s{sG}, 2048",
             f"s_add_u32 s{sT0+2}, s{sT0+2}, s{sT0+3}", f"s_lshl_b32 s{sT0+3}, s{sFG}, 14",
             f"s_add_u32 s{sT0+2}, s{sT0+2}, s{sT0+3}", f"v_add_u32 v{vXA}, s{sT0+2}, v{vXA}",
             f"s_lshl_b32 s{sST}, s{sROT2}, 15", f"s_add_u32 s{sST2}, s{sST}, {opt.ch*PLANE}"]
    spread(slots, S5 + 19, S5 + 23, setup[:7], "x")
    spread(slots, S5 + 25, S5 + 32, setup[7:], "x")
    def hw(t):
        a, off = (vHX, t * 16384) if t < 3 else ((vHX + 1, 0) if t == 3 else (vHX, 49152 + (t - 4) * 16384))
        if off + 1024 > 65535: return None
        return [("lds", f"ds_write_b128 v{a}, {vr(hown(t)+4*kk,4)} offset:{off + kk*1024}", ("hw", t)) for kk in range(2)]
    def hr(t):
        a, off = (vHX + 2, t * 16384) if t < 3 else ((vHX + 3, 0) if t == 3 else (vHX + 2, 49152 + (t - 4) * 16384))
        return [("lds", f"ds_read_b128 {vr(HP+8*t+4*kk,4)}, v{a} offset:{off + kk*1024}", ("hx", t)) for kk in range(2)]
    slots[S5 + 22].setdefault("bar", []).append("s_barrier")
    for t in range(4): slots[S5 + 23 + t].setdefault("x", []).extend(hw(t))
    slots[S5 + 29].setdefault("bar", []).extend([("wl", [("hw", 3)]), "s_barrier"])
    for t in range(4): slots[S5 + 29 + t].setdefault("x", []).extend(hr(t))
    slots[S5 + 33]["bar"].insert(0, ("wl", [("hx", 3)]))
    slots[P2 + 1].setdefault("x", []).extend(hw(4))
    slots[P2 + 2].setdefault("x", []).extend([f"v_add_u32 v{vHX+1}, 0x10000, v{vHX}", f"v_add_u32 v{vHX+3}, 0x10000, v{vHX+2}"])
    slots[P2 + 15].setdefault("x", []).extend(
        [("lds", f"ds_write_b128 v{vHX+1}, {vr(H5+4*kk,4)} offset:{kk*1024}", ("hw", 5)) for kk in range(2)])
    slots[P2 + 17].setdefault("bar", []).extend([("wl", [("hw", 5)]), "s_barrier"])
    slots[P2 + 17].setdefault("x", []).extend(hr(4) +
        [("lds", f"ds_read_b128 {vr(HP+40+4*kk,4)}, v{vHX+3} offset:{kk*1024}", ("hx", 5)) for kk in range(2)])
    slots[P2 + 21]["bar"].insert(0, ("wl", [("hx", 5)]))
    import red
    rr = red.R("m")
    nextst = [f"s_add_u32 s{sST}, s{sST}, 32768", f"s_cmp_ge_u32 s{sST}, {9*32768}", f"s_cselect_b32 s{sST}, 0, s{sST}", f"s_add_u32 s{sST2}, s{sST}, {opt.ch*PLANE}"]
    for j in range(1, 9):
        so = red.store_ops(rr, j - 1, ACC[(j - 1) & 1], SREG)
        if j == 7:
            late = [o for o in so if not isinstance(o, str)]
            so = [o for o in so if isinstance(o, str)]
            slots[P2 + j * 24 + 14].setdefault("valu", []).append(late[0])
            slots[P2 + j * 24 + 15].setdefault("valu", []).extend([late[1]] + nextst)
            spread(slots, P2 + j * 24 + 2, P2 + j * 24 + 6, so)
        else:
            spread(slots, P2 + j * 24 + 2, P2 + j * 24 + opt.sp, so + nextst)
    red.plan(rr, slots, P2, 24, opt)
    HS = 3 + opt.hsl
    slots[(5 * 36 + 12) if opt.hsl else (4 * 36 + 20)].setdefault("dma", []).extend(red.one(("vm", f"buffer_load_dwordx3 v[12:14], off, s[{SWS}:{SWS+3}], s{sLOC} sc0 sc1", "xid")))
    slots[(P2 + 12) if opt.hsl else (5 * 36 + 12)].setdefault("x", []).extend([("wv", ["xid"]), "v_xor_b32 v13, v12, v13", "v_xor_b32 v14, v12, v14", "v_or_b32 v13, v13, v14",
        "s_nop 0", f"v_readfirstlane_b32 s{sLOC}, v13", f"s_and_b32 s{sLOC}, s{sLOC}, 0xf00"])
    if opt.pf:
        pf = [f"s_and_b32 s{sT0}, s{sMT}, 7", f"s_lshl_b32 s{sT0}, s{sT0}, 3", f"s_add_u32 s{sT0}, s{sT0}, s{sW}",
              f"s_mul_i32 s{sT0}, s{sT0}, {54*128}", f"s_mul_i32 s{sT0+1}, s{sSL}, {384*1152}", f"s_add_u32 s{sT0}, s{sT0}, s{sT0+1}",
              f"s_add_u32 s{sT0}, s{sT0}, 4096", f"v_lshlrev_b32 v14, 6, v{vLANE}",
              ("vm", f"buffer_load_dword v15, v14, s[{SB}:{SB+3}], s{sT0} offen", "pf")]
        slots[2 * 36 + 18].setdefault("dma", []).extend(pf)
        pf[-3] = f"s_add_u32 s{sT0}, s{sT0}, 8192"
        slots[3 * 36 + 18].setdefault("dma", []).extend(pf)
    slots[HS * 36 - 2]["dma"] = [f"s_cmp_lg_u32 s{sW}, 0", "s_cbranch_scc1 L_hs0", f"v_lshlrev_b32 v12, 2, v{vLANE}",
        f"buffer_load_dword v13, v12, s[{SM}:{SM+3}], 0 offen sc0 sc1", "L_hs0:"] + slots[HS * 36 - 2]["dma"]
    B = Asm(); check_all(B, "L_hs2", 12)
    slots[(HS + 1) * 36 - D]["bar"][1:1] = [f"s_cmp_lg_u32 s{sW}, 0", "s_cbranch_scc1 L_hs1",
        "v_and_b32 v13, 0x01010101, v13", "v_cmp_ne_u32 vcc, 0x01010101, v13", "s_cbranch_vccz L_hs1"] + B.L + ["L_hs1:"]
    cs = [f"v_and_b32 v104, 31, v{vLANE}", f"v_lshrrev_b32 v105, 5, v{vLANE}", "v_lshlrev_b32 v104, 5, v104", "v_lshl_add_u32 v108, v105, 4, v104",
          f"s_lshl_b32 s{sT0+2}, s{sMT}, 2", f"s_add_u32 s{sT0+2}, s{sT0+2}, s{sTG}",
          f"s_mul_i32 s{sT0+2}, s{sT0+2}, {18*16384}", f"s_mul_i32 s{sT0+3}, s{sG}, 2048",
          f"s_add_u32 s{sT0+2}, s{sT0+2}, s{sT0+3}", f"s_lshl_b32 s{sT0+3}, s{sFG}, 14",
          f"s_add_u32 s{sT0+2}, s{sT0+2}, s{sT0+3}", f"v_add_u32 v108, s{sT0+2}, v108"] + [f"v_mov_b32 v{104+i}, -1" for i in range(4)]
    spread(slots, *((10, 17) if opt.cpv >= 5 else (17, 25)), cs, "x")
    cpos = [opt.cpos, [58, 62, 94, 98, 130, 166], [94, 98, 130, 134, 166, 170], [58, 94, 130, 134, 166, 170], [94, 97, 100, 130, 133, 136],
            [18, 19, 44, 80, 116, 152], [18, 19, 52, 88, 124, 160], [18, 44, 45, 80, 116, 152], [18, 19, 20, 44, 80, 116], []][opt.cpv]
    for i, pos in enumerate(cpos):
        slots[pos].setdefault("dma", []).extend([f"s_add_u32 s{sT0+8}, s{sROT2}, {6 + i//2}", f"s_cmp_ge_u32 s{sT0+8}, 9", f"s_cselect_b32 s{sT0+9}, 9, 0",
            f"s_sub_u32 s{sT0+8}, s{sT0+8}, s{sT0+9}", f"s_lshl_b32 s{sT0+8}, s{sT0+8}, 15",
            ("vm", f"buffer_store_dwordx4 v[104:107], v108, s[{SWS}:{SWS+3}], s{sT0+8} offen offset:{(i&1)*1024} sc0 sc1", "clr2")])
    slots[P2 + 10].setdefault("x", []).extend(announce("L_ann_m2", 3))
    q = P2 + 5 * 24 + 9
    B = Asm(); srd(B, SM, kp(15), 256)
    slots[q - 1].setdefault("x", []).extend(B.L)
    slots[q]["dma"] = [f"s_cmp_lg_u32 s{sW}, 0", "s_cbranch_scc1 L_hs3", f"v_lshlrev_b32 v12, 2, v{vLANE}",
        f"buffer_load_dword v13, v12, s[{SM}:{SM+3}], 0 offen sc0 sc1", "L_hs3:"] + slots[q]["dma"]
    B = Asm(); check_all(B, "L_hs5", 12, "0x02020202")
    slots[P2 + 7 * 24 - D]["bar"][1:1] = [f"s_cmp_lg_u32 s{sW}, 0", "s_cbranch_scc1 L_hs4",
        "v_and_b32 v13, 0x02020202, v13", "v_cmp_ne_u32 vcc, 0x02020202, v13", "s_cbranch_vccz L_hs4"] + B.L + ["L_hs4:"]
    if opt.pst == 3:
        for i in range(3): slots[36 * (i + 1 + opt.po)]["pre"] = ["s_memrealtime s[100:101]", ("wall", True, False), f"s_mov_b32 s{76+5+i}, s100"] + slots[36 * (i + 1 + opt.po)]["pre"]
    for o in b1rd(0): A.op(o)
    for u in range(D):
        for o in rd(u): A.op(o)
    emit_slots(A, slots[:P2])
    stamp(A, opt, 3)
    emit_slots(A, slots[P2:])
    A("s_nop 7"); A("s_nop 3")
    for o in red.store_ops(rr, 8, ACC[0], SREG): A.op(o)
    stamp(A, opt, 4)
    red.tail(A, rr, opt)
    rstamp(A, opt, 14)
    A("s_endpgm")

def main_kernel(A, opt):
    K = NAME + "_kernel"
    A(f".globl {K}"); A(".p2align 8"); A(f".type {K},@function"); A(f"{K}:")
    A("s_cmp_ge_u32 s2, 256")
    A("s_cbranch_scc1 L_exit")
    A(f"s_load_dwordx16 s[{68}:{83}], s[0:1], 0")
    A(f"s_load_dwordx16 s[{84}:{99}], s[0:1], 64")
    A(f"s_load_dwordx2 s[{66}:{67}], s[0:1], 128")
    if opt.stamps: A("s_memtime s[100:101]"); A("s_memrealtime s[44:45]")
    if opt.cpf == 1:
        A("s_getpc_b64 s[46:47]"); A("L_pc0:")
        A(f"v_lshlrev_b32 v108, 7, v0")
        A(f"v_min_u32 v108, L_exit-L_pc0, v108")
        A("v_mov_b32 v109, s47")
        A("v_add_co_u32 v108, vcc, s46, v108")
        A("v_addc_co_u32 v109, vcc, 0, v109, vcc")
        A("global_load_dword v110, v[108:109], off")
    A(f"v_lshrrev_b32 v2, 6, v0")
    A(f"v_and_b32 v{vLANE}, 63, v0")
    A(f"v_readfirstlane_b32 s{sW}, v2")
    if opt.cpf >= 2:
        lo, sh = {2: (4, 15), 3: (7, 13), 4: (6, 14)}[opt.cpf]
        A("s_getpc_b64 s[46:47]"); A("L_pc0:")
        A(f"s_cmp_lt_u32 s{sW}, {lo}"); A("s_cbranch_scc1 L_pc1")
        A(f"s_bfe_u32 s48, s2, {((16 - sh) << 16) | 3}"); A(f"s_lshl_b32 s48, s48, {sh}")
        A(f"v_subrev_u32 v108, {lo*64}, v0")
        A(f"v_lshl_add_u32 v108, v108, 7, s48")
        A(f"v_min_u32 v108, L_exit-L_pc0, v108")
        A("v_mov_b32 v109, s47")
        A("v_add_co_u32 v108, vcc, s46, v108")
        A("v_addc_co_u32 v109, vcc, 0, v109, vcc")
        A("global_load_dword v110, v[108:109], off")
        A("L_pc1:")
    A(f"s_and_b32 s{sT0}, s2, 7"); A(f"s_lshr_b32 s{sT0+1}, s2, 3")
    if opt.newmap:
        A(f"s_lshr_b32 s{sT0+2}, s{sT0}, 1")
        A(f"s_and_b32 s{sT0+3}, s{sT0+1}, 3")
        A(f"s_mul_i32 s{sSL}, s{sT0+2}, 3"); A(f"s_add_u32 s{sSL}, s{sSL}, s{sT0+3}")
        A(f"s_add_u32 s{sT0+2}, s{sT0+2}, 12")
        A(f"s_cmp_eq_u32 s{sT0+3}, 3"); A(f"s_cselect_b32 s{sSL}, s{sT0+2}, s{sSL}")
        A(f"s_and_b32 s{sT0}, s{sT0}, 1"); A(f"s_lshl_b32 s{sT0}, s{sT0}, 3")
        A(f"s_lshr_b32 s{sMT}, s{sT0+1}, 2"); A(f"s_add_u32 s{sMT}, s{sMT}, s{sT0}")
    else:
        A(f"s_lshl_b32 s{sSL}, s{sT0}, 1"); A(f"s_and_b32 s{sT0+2}, s{sT0+1}, 1"); A(f"s_add_u32 s{sSL}, s{sSL}, s{sT0+2}")
        A(f"s_lshr_b32 s{sMT}, s{sT0+1}, 1")
    A(f"s_and_b32 s{sTG}, s{sW}, 3"); A(f"s_lshr_b32 s{sFG}, s{sW}, 2")
    A(f"s_mov_b32 s{sONE}, 0x3f803f80")
    A(f"s_lshr_b32 s{sWX}, s2, 1"); A(f"s_and_b32 s{sWX}, s{sWX}, {4 if opt.xr else 0}"); A(f"s_xor_b32 s{sWX}, s{sWX}, s{sW}")
    A("s_waitcnt lgkmcnt(0)")
    if opt.stamps: A("v_mov_b32 v15, s100")
    pstamp(A, opt, 8)
    srd(A, SX, kp(0), 2359296)
    srd(A, SWS, 66, WS_SIZE)
    x_loads(A, opt)
    pstamp(A, opt, 9)
    if opt.stamps:
        A(f"s_lshl_b32 s65, s2, 3"); A(f"s_add_u32 s65, s65, s{sW}"); A("s_lshl_b32 s65, s65, 7"); A(f"s_add_u32 s65, s65, {WS_STAMP}")
        if opt.stamps == 1:
            A.vm(f"buffer_store_dword v15, off, s[{SWS}:{SWS+3}], s65", "stamp")
            A(f"v_mov_b32 v15, s44")
            A.vm(f"buffer_store_dword v15, off, s[{SWS}:{SWS+3}], s65 offset:64", "stamp")
    A(f"s_cmp_ge_u32 s{sSL}, 12")
    A("s_cbranch_scc1 L_ssm")
    saved = (list(A.lq), list(A.vq))
    if opt.stamps: A("s_mov_b32 s76, s44")
    mlp_path(A, opt)
    A("L_ssm:")
    if opt.stamps: A("s_mov_b32 s86, s44")
    A.lq, A.vq = saved
    if opt.ssm:
        import gen2_ssm
        SB0[0] = 86
        gen2_ssm.ssm_path(A, opt)
        rstamp(A, opt, 14)
    A("L_exit:")
    A("s_endpgm")

def kp(i):
    return 68 + 2 * i

def kdesc(A, K, nv):
    A(".p2align 6")
    A(f".amdhsa_kernel {K}")
    A(f"  .amdhsa_next_free_vgpr {nv}")
    A("  .amdhsa_next_free_sgpr 102")
    A(f"  .amdhsa_accum_offset {nv}")
    A("  .amdhsa_group_segment_fixed_size 0")
    A("  .amdhsa_kernarg_size 136")
    A("  .amdhsa_user_sgpr_count 2")
    A("  .amdhsa_user_sgpr_kernarg_segment_ptr 1")
    A("  .amdhsa_system_sgpr_workgroup_id_x 1")
    A(".end_amdhsa_kernel")

def build(opt):
    A = Asm()
    A(HDR.rstrip("\n"))
    A("; @launch grid=(256,1,1) block=(512,1,1) lds=163840")
    A('.amdgcn_target "amdgcn-amd-amdhsa--gfx950"')
    A(".text")
    n0 = len(A.L)
    main_kernel(A, opt)
    A.lq = []; A.vq = []
    A.L[n0:], errs = check_hazards(A.L[n0:], fix=True)
    for e in errs[:0]: print(e, file=sys.stderr)
    A('.section .rodata,"a"')
    kdesc(A, NAME + "_kernel", 256)
    return A.text(), errs

if __name__ == "__main__":
    sys.modules["gen2"] = sys.modules["__main__"]
    opt = Opt()
    out = sys.argv[1] if len(sys.argv) > 1 else "k.s"
    for a in sys.argv[2:]:
        k, v = a.split("=")
        setattr(opt, k, int(v))
    t, errs = build(opt)
    if opt.clk: t = t.replace("s_memrealtime", "s_memtime")
    open(out, "w").write(t)
    print(out, len(t.splitlines()), "lines", len(errs), "hazards")
```

```python
import math
from asmlib import *
import gen2 as G
from gen2 import sW, sTG, sFG, sMT, sSL, SX, SA, SM, SWS, sT0, sROT2, sFLG, sMYF, sST, vXA, vLANE, WS_AFF, KSC, kp, srd, stamp
from gen2 import sLOC, sCF, sCP, sXID

sDB = 44
SD, SO = SM, SA
sEF = 47
SC = " sc0 sc1"
LX = 147456
LD = LX + 12288
class R:
    def __init__(s, tag):
        s.SEL = [192, 196]
        s.vPL, s.vTK, s.vD, s.vO = 200, 201, 202, 203
        s.vFV = 204 if tag == "m" else 60
        s.vC = 205
        s.vFA = 191 if tag == "m" else 61
        s.AFF = 206
        s.vF = 188
        s.P, s.PU = 208, 216
        s.LB = 232
        s.tag = tag; s.n = 0; s.names = []; s.early = 0; s.nb = 0
    def buf(s, c, i):
        if s.early:
            if c == 0: return 240 + 4 * i
            if c == 1 and i >= 2: return 208 + 4 * (i - 2)
        return (s.LB if c == 0 else 112 + 16 * c) + 4 * i
    def lbl(s):
        s.n += 1; return f"L_r{s.tag}{s.n}"
class L(list):
    def __call__(s, x): s.append(x)
TK = [0]
def tick(r, name):
    if not TK[0] or (TK[0] == 2 and name[0] not in "SZe") or name[0] == "k": return []
    r.names.append(name)
    return ["s_memrealtime s[100:101]", "s_waitcnt lgkmcnt(0)", f"v_writelane_b32 v15, s100, {len(r.names)-1}"]

CH = 8 * G.PLANE
def dbs(A, dst, stride, sh):
    A(f"s_lshr_b32 s{sT0}, s{sSL}, 2"); A(f"s_mul_i32 s{sT0}, s{sT0}, 3"); A(f"s_add_u32 s{sT0}, s{sT0}, s{sMT}")
    A(f"s_cmp_ge_u32 s{sT0}, 9"); A(f"s_cselect_b32 s{sT0+1}, 9, 0"); A(f"s_sub_u32 s{sT0}, s{sT0}, s{sT0+1}")
    for c in range(3):
        A(f"s_cmp_ge_u32 s{sT0}, 9"); A(f"s_cselect_b32 s{sT0+1}, 9, 0"); A(f"s_sub_u32 s{sT0}, s{sT0}, s{sT0+1}")
        A(f"s_lshl_b32 s{dst+stride*c}, s{sT0}, {sh}"); A(f"s_add_u32 s{sT0}, s{sT0}, 1")
def sent_clear():
    A = L()
    dbs(A, sT0 + 4, 2, 15)
    for c in range(3): A(f"s_add_u32 s{sT0+5+2*c}, s{sT0+4+2*c}, 8192")
    A(f"v_lshrrev_b32 v52, 4, v{vLANE}"); A(f"v_and_b32 v53, 15, v{vLANE}"); A(f"v_lshlrev_b32 v53, 4, v53")
    A(f"v_lshl_add_u32 v51, v52, 11, v53")
    A(f"s_lshl_b32 s{sT0}, s{sMT}, 2"); A(f"s_add_u32 s{sT0}, s{sT0}, s{sTG}")
    A(f"s_mul_i32 s{sT0+1}, s{sT0}, 18"); A(f"s_add_u32 s{sT0+1}, s{sT0+1}, s{sFG}"); A(f"s_lshl_b32 s{sT0+1}, s{sT0+1}, 6")
    A(f"s_and_b32 s{sT0}, s{sSL}, 3"); A(f"s_add_u32 s{sT0+1}, s{sT0+1}, s{sT0}"); A(f"s_lshl_b32 s{sT0+1}, s{sT0+1}, 8")
    A(f"v_add_u32 v51, s{sT0+1}, v51")
    for i in range(4): A(f"v_mov_b32 v{52+i}, -1")
    st = [("vm", f"buffer_store_dwordx4 v[52:55], v51, s[{SWS}:{SWS+3}], s{sT0+4+(i>>1)} offen offset:{(i&1)*1024}{SC}", "clr") for i in range(12)]
    return list(A), st

def setup(r):
    A = L(); t = r.LB
    srd(A, SO, kp(14), 4718592)
    A(f"s_cmp_ge_u32 s{sTG}, 2"); A(f"s_cselect_b64 s[{SD}:{SD+1}], s[{kp(13)}:{kp(13)+1}], s[{kp(8)}:{kp(8)+1}]")
    A(f"s_movk_i32 s{SD+2}, 1152")
    dbs(A, sDB, 1, 7)
    A(f"v_and_b32 v{t}, 1, v{vLANE}"); A(f"v_lshlrev_b32 v{t}, 4, v{t}")
    A(f"s_movk_i32 s{sT0}, 0x3f80"); A(f"v_lshlrev_b32 v{t}, v{t}, s{sT0}")
    A(f"v_bfe_u32 v{t+1}, v{vLANE}, 1, 3")
    for i in range(8):
        A(f"v_cmp_eq_u32 vcc, {i}, v{t+1}"); A(f"v_cndmask_b32 v{r.SEL[0]+i}, 0, v{t}, vcc")
    A(f"v_lshrrev_b32 v{t+2}, 4, v{vLANE}"); A(f"v_and_b32 v{t+3}, 15, v{vLANE}"); A(f"v_lshlrev_b32 v{t+3}, 4, v{t+3}")
    A(f"v_lshl_add_u32 v{r.vPL}, v{t+2}, 11, v{t+3}")
    A(f"s_lshl_b32 s{sT0}, s{sMT}, 2"); A(f"s_add_u32 s{sT0}, s{sT0}, s{sTG}")
    A(f"s_mul_i32 s{sT0+1}, s{sT0}, 18"); A(f"s_add_u32 s{sT0+1}, s{sT0+1}, s{sFG}"); A(f"s_lshl_b32 s{sT0+1}, s{sT0+1}, 6")
    A(f"s_and_b32 s{sT0+2}, s{sSL}, 3"); A(f"s_add_u32 s{sT0+1}, s{sT0+1}, s{sT0+2}"); A(f"s_lshl_b32 s{sT0+1}, s{sT0+1}, 8")
    A(f"v_add_u32 v{r.vPL}, s{sT0+1}, v{r.vPL}")
    A(f"v_and_b32 v{t+3}, 1, v{vLANE}"); A(f"v_lshlrev_b32 v{t+3}, 5, v{t+3}"); A(f"v_lshl_add_u32 v{t+3}, v{t+2}, 3, v{t+3}")
    A(f"v_lshl_add_u32 v{r.vTK}, v{t+1}, 6, v{t+3}")
    A(f"s_mul_i32 s{sT0+1}, s{sW}, 1536"); A(f"s_add_u32 s{sT0+1}, s{sT0+1}, {LX}"); A(f"v_add_u32 v{r.vTK}, s{sT0+1}, v{r.vTK}")
    A(f"s_lshl_b32 s{sT0+1}, s{sFG}, 6"); A(f"v_add_u32 v{t+3}, s{sT0+1}, v{t+3}"); A(f"v_add_u32 v{r.vD}, {LD}, v{t+3}")
    A(f"s_lshl_b32 s{sT0}, s{sT0}, 2"); A(f"s_add_u32 s{sT0}, s{sT0}, s{sT0+2}"); A(f"s_lshl_b32 s{sT0}, s{sT0}, 3")
    A(f"v_add_u32 v{t+1}, s{sT0}, v{t+1}"); A(f"v_mul_u32_u24 v{r.vO}, 1152, v{t+1}")
    A(f"v_add_u32 v{r.vO}, v{r.vO}, v{t+3}"); A(f"v_lshlrev_b32 v{r.vO}, 1, v{r.vO}")
    A(f"v_and_b32 v{t+1}, 127, v{t+1}"); A(f"v_lshlrev_b32 v{t+1}, 3, v{t+1}")
    A(f"s_mul_i32 s{sT0+3}, s{sT0}, 1152"); A(f"s_add_u32 s{sT0+3}, s{sT0+3}, s{sT0+1}")
    A(f"s_lshl_b32 s{sT0}, s2, 10"); A(f"s_add_u32 s{sT0}, s{sT0}, {WS_AFF}")
    A(("vm", f"buffer_load_dwordx2 {vr(r.AFF,2)}, v{t+1}, s[{SWS}:{SWS+3}], s{sT0} offen", "raff"))
    return list(A)

def xload(r):
    t = r.LB + 4
    return [f"v_bfe_u32 v{t}, v{vLANE}, 2, 3", f"v_mul_u32_u24 v{t}, 1152, v{t}",
            f"v_and_b32 v{t+1}, 3, v{vLANE}", f"v_lshl_add_u32 v{t}, v{t+1}, 4, v{t}",
            f"s_sub_u32 s{sT0}, s{sDB+1}, s{sDB}", f"v_lshrrev_b32 v{t+1}, 5, v{vLANE}", f"v_mul_i32_i24 v{t+1}, s{sT0}, v{t+1}",
            f"v_add3_u32 v{t+1}, v{t+1}, s{sDB}, v{t}",
            f"s_mul_i32 s{sT0+1}, s{sW}, 1536", f"s_add_u32 m0, s{sT0+1}, {LX}", "s_nop 0",
            ("vm", f"buffer_load_dwordx4 v{t+1}, s[{SX}:{SX+3}], s{sT0+3} offen lds", "rx"),
            f"s_add_u32 s{sT0}, s{sT0+3}, s{sDB+2}", f"s_add_u32 m0, s{sT0+1}, {LX+1024}", "s_mov_b32 exec_hi, 0",
            ("vm", f"buffer_load_dwordx4 v{t}, s[{SX}:{SX+3}], s{sT0} offen lds", "rx"), "s_mov_b64 exec, -1",
            f"v_lshlrev_b32 v{t+2}, 4, v{vLANE}", f"s_and_b32 s{sT0}, s{sW}, 1", f"s_lshl_b32 s{sT0}, s{sT0}, 10",
            f"s_lshl_b32 s{sT0+1}, s{sTG}, 10", f"s_add_u32 m0, s{sT0+1}, {LD}", "s_nop 0",
            ("vm", f"buffer_load_dwordx4 v{t+2}, s[{SD}:{SD+3}], s{sT0} offen lds", "rx")]

def one(op): return ["s_mov_b64 exec, 1", op, "s_mov_b64 exec, -1"]
def raw(r, name, sreg):
    if TK[0] != 1 or name[1] == "k": return []
    r.names.append(name)
    return [f"v_writelane_b32 v15, s{sreg}, {len(r.names)-1}"]
def spin(r, nm, tag, ld, test, ex=["s_mov_b64 exec, 1"]):
    l = r.lbl()
    return tick(r, nm + "a") + [("wv", [tag])] + tick(r, nm + "b") + [f"s_movk_i32 s{sT0+1}, 0x4000"] + test + raw(r, "R" + nm + "f", sT0) + [f"s_cbranch_scc0 {l}d",
            f"{l}:"] + raw(r, "R" + nm + "l", sT0) + ex + [ld, "s_mov_b64 exec, -1"] + ["s_waitcnt vmcnt(0)", f"s_sub_u32 s{sT0+1}, s{sT0+1}, 1", f"s_cbranch_scc1 {l}d"] + test + [
            f"s_cbranch_scc1 {l}", f"{l}d:"] + raw(r, "R" + nm + "n", sT0 + 1) + tick(r, nm + "c")
def fl(r): return f"buffer_load_dword v{r.vF+2}, off, s[{SWS}:{SWS+3}], s{sFLG} offset:12{SC}"
def fload(r): return one(("vm", fl(r), "rf"))
def check(r):
    return spin(r, "cf", "rf", fl(r), [f"v_readfirstlane_b32 s{sT0}, v{r.vF+2}", f"s_andn2_b32 s{sT0}, 0x01010101, s{sT0}"])
def cl(r): return f"buffer_load_dword v{r.vC}, off, s[{SWS}:{SWS+3}], s{sCP}{SC}"
def ccheck(r, j):
    return spin(r, f"k{j}", "rc", cl(r), [f"v_readfirstlane_b32 s{sT0}, v{r.vC}", f"s_and_b32 s{sT0}, s{sT0}, 15", f"s_cmp_lt_u32 s{sT0}, {j-2}"])
def dual(r, ins, tag):
    l = r.lbl()
    return ("grp", [f"s_cmp_lg_u32 s{sLOC}, 0", f"s_cbranch_scc1 {l}", ("vm", ins, tag), f"s_branch {l}e", f"{l}:", ins + SC, f"{l}e:"])
def pload(r, c):
    o = [f"s_lshl_b32 s{sT0}, s{sDB+c}, 8", f"s_add_u32 s{sT0+1}, s{sT0}, 8192"]
    for i in range(4):
        o.append(("vm", f"buffer_load_dwordx4 {vr(r.buf(c,i),4)}, v{r.vPL}, s[{SWS}:{SWS+3}], s{sT0+(i>>1)} offen offset:{(i&1)*1024}{SC}", ("rp", c, i)))
    return o
def scheck(r, c):
    b = r.buf(c, 0); t = r.vF; l = r.lbl()
    test = [f"v_max3_u32 v{t}, v{b}, v{b+1}, v{b+2}", f"v_max3_u32 v{t+1}, v{b+3}, v{b+4}, v{b+5}"]
    for i in range(6, 16 if c == 2 else 8, 2): test.append(f"v_max3_u32 v{t+(i>>1&1)}, v{t+(i>>1&1)}, v{b+i}, v{b+i+1}")
    test += [f"v_max_u32 v{t}, v{t}, v{t+1}", f"v_cmp_eq_u32 vcc, -1, v{t}"]
    pl = pload(r, c)
    return tick(r, f"c{c}a") + [("wv", [("rp", c, i) for i in range(4 if (c == 2 or r.nb) else 2)] + ([("rp", 1, 3)] if r.nb else []))] + tick(r, f"c{c}b") + test + [f"s_movk_i32 s{sT0+4}, 0x4000", f"s_cbranch_vccz {l}d"] + pl[:2] + [
        f"{l}:", "s_mov_b64 exec, vcc"] + [o[1] for o in pl[2:(6 if c == 2 else 4)]] + ["s_mov_b64 exec, -1", "s_waitcnt vmcnt(0)",
        f"s_sub_u32 s{sT0+4}, s{sT0+4}, 1", f"s_cbranch_scc1 {l}d"] + test + [f"s_cbranch_vccnz {l}", f"{l}d:"] + raw(r, f"Rc{c}n", sT0 + 4) + tick(r, f"c{c}c")
def dcheck(r):
    a = r.buf(2, 0); b = 112; t = r.vF; l = r.lbl()
    def test(b):
        o = [f"v_max3_u32 v{t}, v{b}, v{b+1}, v{b+2}", f"v_max3_u32 v{t+1}, v{b+3}, v{b+4}, v{b+5}"]
        for i in range(6, 16, 2): o.append(f"v_max3_u32 v{t+(i>>1&1)}, v{t+(i>>1&1)}, v{b+i}, v{b+i+1}")
        return o + [f"v_max_u32 v{t}, v{t}, v{t+1}", f"v_cmp_eq_u32 vcc, -1, v{t}"]
    pl = pload(r, 2)
    la = [o[1] for o in pl[2:]]
    lb = [x.replace(vr(a + 4 * i, 4), vr(b + 4 * i, 4)) for i, x in enumerate(la)]
    m = sT0 + 6
    return [("wv", [("rp", 2, i) for i in range(4)])] + test(a) + [f"s_movk_i32 s{sT0+4}, 0x4000", f"s_cbranch_vccz {l}d"] + pl[:2] + [
        "s_mov_b64 exec, vcc"] + la + ["s_sleep 12",
        f"{l}:"] + lb + ["s_waitcnt vmcnt(4)"] + test(a) + [f"s_cbranch_vccz {l}d", "s_mov_b64 exec, vcc"] + la + ["s_waitcnt vmcnt(4)"] + test(b) + [
        f"s_sub_u32 s{sT0+4}, s{sT0+4}, 1", f"s_cbranch_scc1 {l}c", f"s_cbranch_vccnz {l}", f"{l}c:"] + [
        f"v_mov_b32 v{128+i}, v{b+i}" for i in range(16)] + ["s_not_b64 exec, exec"] + [f"v_mov_b32 v{128+i}, v{a+i}" for i in range(16)] + [
        f"s_branch {l}e", f"{l}d:", "s_mov_b64 exec, -1"] + [f"v_mov_b32 v{128+i}, v{a+i}" for i in range(16)] + [f"{l}e:", "s_mov_b64 exec, -1", "s_nop 1"]
def publish(r, b):
    return [f"v_mov_b32 v{r.vFV}, 1", ("wv", [("st", b)])] + one(("vm", f"buffer_store_byte v{r.vFV}, off, s[{SWS}:{SWS+3}], s{sMYF}{SC}", "fl"))
def cpublish(r, b):
    return [f"s_add_u32 s{sT0}, s{sXID}, {b+1}", f"v_mov_b32 v{r.vFV}, s{sT0}", ("wv", [("st", b)])] + \
        one(dual(r, f"buffer_store_dword v{r.vFV}, off, s[{SWS}:{SWS+3}], s{sCF}", "fl"))
def store_ops(r, j, acc, SREG):
    ops = []
    for hf in range(2):
        ops += [f"v_cvt_pk_bf16_f32 v{SREG+i}, v{acc+2*i}, v{acc+2*i+1}" for i in range(4 * hf, 4 * hf + 4)]
        ins = f"buffer_store_dwordx4 {vr(SREG+4*hf,4)}, v{vXA}, s[{SWS}:{SWS+3}], s{G.sST2 if j < 6 else sST} offen offset:{1024*hf}"
        ops.append(dual(r, ins, ("st", j)) if j < 6 else ("vm", ins + SC + G.NTX[1], ("st", j)))
    return ops

def pre(r):
    A = L()
    A(("wv", ["raff"]))
    for k in range(3):
        x = 40 + 8 * k
        A(f"v_add_u32 v{x+6}, s{sDB+k}, v{r.vD}")
        A(("lds", f"ds_read_b64 {vr(x,2)}, v{r.vTK} offset:{512*k}", ("xd", k)))
        A(("lds", f"ds_read_b64 {vr(x+2,2)}, v{x+6}", ("xd", k)))
        A(("lds", f"ds_read_b64 {vr(x+4,2)}, v{x+6} offset:2048", ("xd", k)))
    for k in range(3):
        X, Dd, x = 72 + 12 * k, 76 + 12 * k, 40 + 8 * k
        A(("wl", [("xd", k)]))
        for j in range(6):
            A(f"v_lshlrev_b32 v{X+2*j}, 16, v{x+j}"); A(f"v_and_b32 v{X+2*j+1}, 0xffff0000, v{x+j}")
        for e in range(4): A(f"v_sub_f32 v{x+e}, v{X+e}, v{r.AFF}")
        for e in range(4): A(f"v_mul_f32 v{x+e}, v{x+e}, v{r.AFF+1}")
        for e in range(4): A(f"v_mul_f32 v{Dd+e}, v{Dd+e}, v{x+e}")
    return list(A)

def epi(r, k, ow):
    A = L()
    X, S, B, O = 72 + 12 * k, 76 + 12 * k, 80 + 12 * k, 16 + 4 * k
    A.extend(tick(r, f"m{k}a"))
    for i in range(4):
        A(("wv", [("rp", k, i)]))
        a = O if i < 2 else S
        A(f"v_mfma_f32_16x16x32_bf16 {vr(a,4)}, {vr(r.SEL[i&1],4)}, {vr(128 + 4 * i if (k == 2 and r.dp) else r.buf(k,i),4)}, {'0' if i == 0 else vr(a,4)}")
    A.extend(tick(r, f"m{k}b"))
    E = range(4)
    A(f"s_lshl_b32 s{sT0}, s{sDB+k}, 1")
    for e in E: A(f"v_fma_f32 v{O+e}, v{O+e}, s{sT0+2}, v{B+e}")
    for e in E: A(f"v_mul_f32 v{B+e}, s{sT0+3}, v{O+e}")
    for e in E: A(f"v_exp_f32 v{B+e}, v{B+e}")
    for e in E: A(f"v_mul_f32 v{O+e}, v{O+e}, v{S+e}")
    for e in E: A(f"v_add_f32 v{B+e}, 1.0, v{B+e}")
    for e in E: A(f"v_rcp_f32 v{B+e}, v{B+e}")
    for e in E: A(f"v_fma_f32 v{O+e}, v{O+e}, v{B+e}, v{X+e}")
    A(("vm", f"buffer_store_dwordx4 {vr(O,4)}, v{r.vO}, s[{SO}:{SO+3}], s{sT0} offen{ow}", "out"))
    return list(A)

def plan(r, slots, P2, NK, opt):
    def put(j, k, ops, key="x"): slots[P2 + j * NK + k].setdefault(key, []).extend(ops)
    TK[0] = opt.stamps % 3
    CH = opt.ch * G.PLANE
    for j in range(9): put(j, 0, tick(r, f"S{j}"), "pre")
    if r.tag == "s":
        put(7, 1, publish(r, 5))
        return
    if not opt.nb: put(8, opt.ff, fload(r))
    r.early = opt.e1 or opt.nb; r.dp = opt.dp; r.nb = opt.nb
    if opt.nb:
        p0, p1 = pload(r, 0), pload(r, 1)
        put(8, opt.nb, [("wv", ["rf"]), f"v_readfirstlane_b32 s{sEF}, v{r.vF+2}", f"s_andn2_b32 s{sEF}, 0x01010101, s{sEF}", "s_cbranch_scc1 L_nb0"] +
            p0[:2] + [p0[4][1], p0[5][1]] + ["L_nb0:"])
        put(8, opt.nb + 2, [f"s_cmp_lg_u32 s{sEF}, 0", "s_cbranch_scc1 L_nb1"] + p1[:2] + [p1[4][1], p1[5][1]] + ["L_nb1:"])
        if opt.e0: put(8, opt.e0, p0[:3]); put(8, opt.e0 + 1, p0[3:4])
    if opt.e1:
        p0, p1 = pload(r, 0), pload(r, 1)
        put(8, opt.e1, check(r) + p0[:2] + p0[4:5]); put(8, opt.e1 + 1, p0[5:6])
        put(8, opt.e1 + 2, p1[:2] + p1[4:5]); put(8, opt.e1 + 3, p1[5:6])
        if opt.e0: put(8, opt.e0, p0[:3]); put(8, opt.e0 + 1, p0[3:4])
    G.spread(slots, P2 + 2 * NK + 2, P2 + 2 * NK + 14, setup(r), "x")
    put(2, 20, xload(r))
    for j in range(6): put(j + 1, opt.cp, cpublish(r, j))
    nxt = lambda d, n: [f"s_add_u32 s{d}, s{sST}, {32768*n}", f"s_cmp_ge_u32 s{d}, {9*32768}", f"s_cselect_b32 s{d+1}, {9*32768}, 0", f"s_sub_u32 s{d}, s{d}, s{d+1}", f"s_add_u32 s{d}, s{d}, {CH}"]
    for j in range(3, 9):
        P = r.P if j < 8 else r.LB
        put(j - 1, 9 if j < 8 else 8, one(("vm", cl(r), "rc")))
        ld = [("vm", f"buffer_load_dwordx4 {vr(P+4*h,4)}, v{vXA}, s[{SWS}:{SWS+3}], s{sT0+2} offen offset:{1024*h}{SC}", ("P", j)) for h in range(2)]
        if j < 8: put(j, 0, ccheck(r, j) + nxt(sT0 + 2, 1) + ld[:1]); put(j, opt.p2, ld[1:])
        else: put(7, 13, ccheck(r, j) + nxt(sT0 + 2, 2) + ld + (fload(r) if opt.nb else []))
        acc = G.ACC[j & 1]
        for h in range(2):
            put(j, opt.pm + 2 * h, [("wv", [("P", j)]), f"v_mfma_f32_32x32x16_bf16 {vr(acc,16)}, {vr(r.PU+4*h,4)}, {vr(P+4*h,4)}, {vr(acc,16)}"], "valu")
    t = r.PU + 8
    sel = [f"v_bfe_u32 v{t}, v{vLANE}, 3, 2", f"v_bfe_u32 v{t+1}, v{vLANE}, 1, 1", f"v_lshl_add_u32 v{t}, v{t}, 1, v{t+1}",
           f"v_lshrrev_b32 v{t+1}, 3, v{vLANE}", f"v_xor_b32 v{t+1}, v{t+1}, v{vLANE}", f"v_and_b32 v{t+1}, 4, v{t+1}",
           f"v_lshl_add_u32 v{t}, v{t+1}, 2, v{t}",
           f"v_and_b32 v{t+1}, 1, v{vLANE}", f"v_lshlrev_b32 v{t+1}, 4, v{t+1}", f"v_mov_b32 v{t+2}, 0x3f80", f"v_lshlrev_b32 v{t+1}, v{t+1}, v{t+2}"]
    for i in range(8): sel += [f"v_cmp_eq_u32 vcc, {i}, v{t}", f"v_cndmask_b32 v{r.PU+i}, 0, v{t+1}, vcc"]
    G.spread(slots, P2 + NK + 7, P2 + NK + 20, sel)
    if opt.prio: put(8, 0, [f"s_setprio {opt.prio}"])

def tail(A, r, opt):
    ow = SC if opt.owt else ""
    def E(ops):
        for o in ops: A.op(o)
    if r.tag == "m":
        E(tick(r, "p1a"))
        if opt.prio: A("s_setprio 0")
        A(f"s_mov_b32 s{sT0+2}, {hexf(1.0/KSC)}"); A(f"s_mov_b32 s{sT0+3}, {hexf(-math.log2(math.e))}")
        if opt.nb:
            p0, p1 = pload(r, 0), pload(r, 1)
            E(pre(r)); A("s_barrier")
            A(f"s_cmp_eq_u32 s{sEF}, 0"); A("s_cbranch_scc1 L_nb2")
            E(check(r)); E(p0[:2] + p0[4:]); E(p1[:2] + p1[4:])
            A("L_nb2:")
            if not opt.e0: E(p0[:4])
            E(p1[:4]); E(pload(r, 2))
        elif opt.e1:
            p2 = pload(r, 2)
            if not opt.e0: E(pload(r, 0)[:4])
            E(pload(r, 1)[:4])
            if opt.e2: E(p2[:2] + p2[4:])
            E(pre(r))
            if opt.e2 == 2:
                E(scheck(r, 0)); E(epi(r, 0, ow))
            A.op(("wv", [("st", 8)]))
            E(p2[:4] if opt.e2 else p2)
        else:
            if opt.tb == 2: E(pre(r))
            if opt.tb == 3: E(check(r)); E(pre(r))
            if opt.tb: A("s_barrier")
            if opt.tb != 3: E(check(r))
            E(pload(r, 0)); E(pload(r, 1))
            if opt.tb < 2: E(pre(r))
            if opt.w8: A.op(("wv", [("st", 8)]))
            E(tick(r, "p2b"))
            E(pload(r, 2))
        for c in range(1 if (opt.e1 and opt.e2 == 2) else 0, 3):
            E(dcheck(r) if (c == 2 and opt.dp) else scheck(r, c)); E(epi(r, c, ow))
        if opt.dp: A("s_waitcnt vmcnt(1)")
    if opt.stamps % 3:
        E(tick(r, "end"))
        A(f"s_sub_u32 s{sT0}, s65, {G.WS_STAMP}"); A(f"s_lshl_b32 s{sT0}, s{sT0}, 1"); A(f"s_add_u32 s{sT0}, s{sT0}, {G.WS_STAMP + 262144}")
        A(f"v_lshlrev_b32 v14, 2, v{vLANE}")
        A(f"buffer_store_dword v15, v14, s[{SWS}:{SWS+3}], s{sT0} offen")
        open(f"names_{r.tag}.txt", "w").write(" ".join(r.names))
```

```python
import sys, math
from asmlib import *

NAME = "recurrent_scan__ssm_conv_s5__mixer_channel_mlp__prompt"
HDR = open("cdna_kernels/" + NAME + ".s.ref").read().split("; Override launch")[0]

C0 = -2.0 * math.log2(math.e) * math.sqrt(2.0 / math.pi)
C1 = C0 * 0.044715
KSC = -((-C1) ** (1.0 / 3.0))
C0K = C0 / KSC
PLANE = 2048 * 576 * 2
WS_AFF = 16 * PLANE
WS_E = WS_AFF + 256 * 1024
EROW = 1280
WS_FLAG = WS_E + 4 * 16 * EROW
FSTR = 4352
WS_STAMP = WS_FLAG + 128 * FSTR + 4096
WS_F2 = WS_STAMP + 65536 * 16
WS_SIZE = WS_F2 + 128 * 24576
BUFSZ = 73728
LDS_Y = 73728
LDS_B1 = 155648
LDS_ET = 147456
LDS_KT = 156672

sW, sTG, sFG, sMT, sSL = 3, 4, 5, 6, 7
SX, SA, SB, SWS, SM = 8, 12, 16, 20, 24
sT0 = 28
sD1 = 40
sD2 = 50
sROT, sROT2, sCOL, sM0A, sST, sDP, sC0K, sONE, sM0W = 56, 57, 58, 59, 60, 61, 62, 63, 64
sFLG = 39
sLOC, sCF, sCP, sXID, sG = 70, 71, 72, 73, 74
sST2 = 75
sMYF = 63
sPTR = 66
def kp(i): return sPTR + 2 * i

vLANE = 1
vDMA, vDMA2 = 2, 3
vTR = 4
vB1 = 7
vXA = 8
ACC = [16, 32]
ABUF = 48
TMP = 64
HOWN = 72
YB = 112

class Opt:
    stamps = False
    ssm = True
    nost = False
    newmap = 1
    owt = 0
    pf = 1
    ff = 1
    fu = 50
    f7 = 22
    f6 = 23
    forcefb = 0
    cp = 15
    po = 0
    clk = 0
    yw = 2
    ov = 1
    b3 = 3
    b4 = 7
    yr = 6
    la = 1
    xl = 1
    xr = 1
    pst = 0
    lsp = 4
    ds = 4
    sp = 6
    p2 = 0
    pm = 17
    prio = 0
    pfb = 1
    ch = 8
    d1 = 8
    nb = 0
    w8 = 1
    dp = 0
    ntc = 0
    cpf = 4
    hsl = 0
    cpv = 0
    tb = 2
    e0 = 0
    e1 = 0
    e2 = 0
    stg = 0
    cpos = [27, 31, 36 + 22, 72 + 22, 108 + 22, 144 + 22]

def stamp(A, opt, idx):
    if not opt.stamps or opt.stamps == 3: return
    if opt.stamps == 2:
        A(f"s_memrealtime s[100:101]"); A("s_waitcnt lgkmcnt(0)"); A.lq = []
        A(f"s_mov_b32 s{SB0[0]+idx}, s100"); return
    A(f"s_memtime s[100:101]")
    A("s_waitcnt lgkmcnt(0)")
    A.lq = []
    A(f"v_mov_b32 v0, s100")
    A(f"s_memrealtime s[100:101]")
    A.vm(f"buffer_store_dword v0, off, s[{SWS}:{SWS+3}], s65 offset:{4*idx}", "stamp")
    A("s_waitcnt lgkmcnt(0)")
    A(f"v_mov_b32 v0, s100")
    A.vm(f"buffer_store_dword v0, off, s[{SWS}:{SWS+3}], s65 offset:{4*idx+64}", "stamp")

PST = []
SB0 = [76]
def pstamp(A, opt, idx):
    if not opt.stamps or opt.stamps >= 2: return
    A(f"s_memtime s[100:101]")
    A("s_waitcnt lgkmcnt(0)")
    A.lq = []
    A(f"v_mov_b32 v{56+idx-5}, s100")

def pflush(A, opt, idxs):
    if not opt.stamps or opt.stamps >= 2: return
    for idx in idxs:
        A.vm(f"buffer_store_dword v{56+idx-5}, off, s[{SWS}:{SWS+3}], s65 offset:{4*idx}", "stamp")

def rstamp(A, opt, idx, srdr=SWS, soff="s65", drain=True):
    if not opt.stamps: return
    if drain: A("s_waitcnt vmcnt(0)")
    A(f"s_memrealtime s[100:101]")
    A("s_waitcnt lgkmcnt(0)")
    A.lq = []
    A(f"v_mov_b32 v0, s100")
    A.vm(f"buffer_store_dword v0, off, s[{srdr}:{srdr+3}], {soff} offset:{4*idx}", "stamp")
    if opt.stamps >= 2:
        for i in range(0, 8 if opt.stamps == 2 else 1):
            A(f"v_mov_b32 v{2+i}, s{SB0[0]+i}")
            A(f"buffer_store_dword v{2+i}, off, s[{srdr}:{srdr+3}], {soff} offset:{4*i+64}")

def srd(A, d, p, nrec, lower=0):
    if lower:
        A(f"s_sub_u32 s{d}, s{p}, {lower}")
        A(f"s_subb_u32 s{d+1}, s{p+1}, 0")
    else:
        A(f"s_mov_b32 s{d}, s{p}")
        A(f"s_mov_b32 s{d+1}, s{p+1}")
    A(f"s_mov_b32 s{d+2}, {nrec + lower}")
    A(f"s_mov_b32 s{d+3}, 0x20000")

def Rreg(e, c):
    if c < 5: return 216 + (c * 2 + e) * 4
    return 72 + ((c - 5) * 2 + e) * 4

def bf16r(A, d, s):
    A(f"v_cvt_pk_bf16_f32 v{d}, v{s}, v{s}")
    A(f"v_and_b32 v{d}, 0xffff0000, v{d}")

sWX = 61
NTX = ["", ""]
def x_issue(A, track):
    for c in range(9):
        for e in range(2):
            ins = f"buffer_load_dwordx4 {vr(Rreg(e,c),4)}, v8, s[{SX}:{SX+3}], s{sT0+e} offen offset:{c*128}{NTX[0]}"
            if track: A.vm(ins, ("x", c, e))
            else: A(ins)

def x_loads(A, opt):
    A(f"v_lshrrev_b32 v8, 3, v{vLANE}")
    A(f"s_lshl_b32 s{sT0}, s{sWX}, 4")
    A(f"v_add_u32 v8, s{sT0}, v8")
    A(f"v_mul_u32_u24 v8, 1152, v8")
    A(f"v_and_b32 v9, 7, v{vLANE}")
    A(f"v_lshl_add_u32 v8, v9, 4, v8")
    A(f"s_mul_i32 s{sT0}, s{sMT}, 147456")
    A(f"s_add_u32 s{sT0+1}, s{sT0}, 9216")
    if opt.xl:
        A(f"s_cmp_lg_u32 s{sFG}, 0"); A("s_cbranch_scc1 L_x0")
        x_issue(A, False)
        A("L_x0:")
    else: x_issue(A, True)

def dma1(A, stage, i):
    ops = []
    if i % 4 == 0:
        ops.append(f"s_add_u32 m0, s{sM0W}, {(stage & 1) * BUFSZ + i * 1024}")
        ops.append("s_nop 0")
    ops.append(("vm", f"buffer_load_dwordx4 v{vDMA2}, s[{SA}:{SA+3}], s{sD1+i} offen offset:{(i % 4) * 1024} lds", ("d1", stage)))
    return ops

class Rec(list):
    def __call__(s, x): s.append(x)
    def op(s, x): s.append(x)
    def vm(s, x, t=None): s.append(("vm", x, t))
    def lds(s, x, t=None): s.append(("lds", x, t))

def overlap0(slots, opt, dma):
    n = 0
    for c in range(5, 9 - opt.yw):
        for e in range(2):
            slots[n // 2].setdefault("x", []).append(("lds", f"ds_write_b128 v{10+e}, {vr(Rreg(e,c),4)} offset:{(c-5)*16384}", "yw")); n += 1
    b3, b4 = opt.b3, opt.b4
    slots[b3].setdefault("bar", []).extend([("wl", ["yw"]), "s_barrier"])
    for i, s in enumerate(range(20, 36)):
        slots[b3 + i // opt.yr].setdefault("x", []).append(("lds", f"ds_read_b128 {vr(YB+4*s,4)}, v{12+(s&3)} offset:{((s>>2)-5)*16384}", ("y", s)))
    slots[b4].setdefault("bar", []).extend([("wl", [("y", 35)]), "s_barrier"])
    for i, d in enumerate(dma): slots[b4 + i].setdefault("dma", []).extend(d)

def ln_prologue(A, opt, mlp, late=(), pre2=()):
    SUM = [16, 17]; SQ = [18, 19]
    for r in SUM + SQ: A(f"v_mov_b32 v{r}, 0")
    for e in range(2):
        d = 10 + e
        A(f"v_lshrrev_b32 v20, 3, v{vLANE}")
        A(f"s_lshl_b32 s{sT0+2}, s{sWX}, 4")
        A(f"s_add_u32 s{sT0+2}, s{sT0+2}, {8*e}")
        A(f"v_add_u32 v20, s{sT0+2}, v20")
        if not mlp:
            A(f"v_and_b32 v21, 0x63, v20")
            A(f"v_bfe_u32 v22, v20, 2, 2")
            A(f"v_lshl_or_b32 v21, v22, 3, v21")
            A(f"v_bfe_u32 v22, v20, 4, 1")
            A(f"v_lshl_or_b32 v20, v22, 2, v21")
        A(f"v_bfe_u32 v21, v20, 1, 3")
        A(f"v_and_b32 v22, 7, v{vLANE}")
        A(f"v_xor_b32 v21, v21, v22")
        A(f"v_lshlrev_b32 v21, 4, v21")
        A(f"v_lshl_add_u32 v{d}, v20, 7, v21")
        A(f"v_add_u32 v{d}, {LDS_Y}, v{d}")
    A(f"v_and_b32 v20, 31, v{vLANE}")
    A(f"v_bfe_u32 v21, v20, 1, 3")
    A(f"v_lshrrev_b32 v22, 5, v{vLANE}")
    A(f"v_xor_b32 v21, v21, v22")
    A(f"v_lshlrev_b32 v21, 4, v21")
    A(f"s_lshl_b32 s{sT0+2}, s{sTG}, 5")
    A(f"v_add_u32 v20, s{sT0+2}, v20")
    A(f"v_lshl_add_u32 v12, v20, 7, v21")
    A(f"v_add_u32 v12, {LDS_Y}, v12")
    for i in range(1, 4): A(f"v_xor_b32 v{12+i}, {32*i}, v12")
    pstamp(A, opt, 10)
    if opt.xl:
        A(f"s_cmp_eq_u32 s{sFG}, 0"); A(f"s_cbranch_scc1 L_x1{int(mlp)}")
        x_issue(A, True)
        A(f"L_x1{int(mlp)}:")
    for c in range(9):
        A.wait(vm=[("x", c, 1)])
        if c == 0: pstamp(A, opt, 11)
        if c == 8: pstamp(A, opt, 12)
        if mlp and opt.pst == 1 and c in (0, 8): stamp(A, opt, 6 + c // 8)
        for j in range(4):
            for e in range(2):
                r = Rreg(e, c) + j
                A(f"v_dot2c_f32_bf16 v{SUM[e]}, s{sONE}, v{r}")
                A(f"v_dot2c_f32_bf16 v{SQ[e]}, v{r}, v{r}")
    A("s_nop 2")
    for mode in ("quad_perm:[1,0,3,2]", "quad_perm:[2,3,0,1]", "row_half_mirror"):
        for r in SUM + SQ:
            A(f"v_add_f32_dpp v{r}, v{r}, v{r} {mode} row_mask:0xf bank_mask:0xf")
    inv = hexf(1.0 / 576.0); eps = hexf(1e-5)
    late = list(late); cnt = [0]
    def both(f):
        for e in range(2): A(f(e))
        cnt[0] += 1
        if late and not opt.la and cnt[0] % opt.lsp == 0:
            for o in late.pop(0): A.op(o)
    both(lambda e: f"v_mul_f32 v{20+e}, {inv}, v{SUM[e]}")
    both(lambda e: f"v_mul_f32 v{22+e}, {inv}, v{SQ[e]}")
    both(lambda e: f"v_fma_f32 v{22+e}, -v{20+e}, v{20+e}, v{22+e}")
    both(lambda e: f"v_max_f32 v{22+e}, 0, v{22+e}")
    def rnd(d, s):
        both(lambda e: f"v_cvt_pk_bf16_f32 v{d+e}, v{s+e}, v{s+e}")
        both(lambda e: f"v_and_b32 v{d+e}, 0xffff0000, v{d+e}")
    rnd(24, 20)
    rnd(26, 22)
    both(lambda e: f"v_add_f32 v{26+e}, {eps}, v{26+e}")
    rnd(26, 26)
    both(lambda e: f"v_sqrt_f32 v{26+e}, v{26+e}")
    rnd(26, 26)
    both(lambda e: f"v_rcp_f32 v{28+e}, v{26+e}")
    A(f"v_lshrrev_b32 v34, 3, v{vLANE}")
    A(f"s_lshl_b32 s{sT0+3}, s{sWX}, 4")
    A(f"v_add_u32 v34, s{sT0+3}, v34")
    A(f"v_lshlrev_b32 v34, 3, v34")
    A(f"v_mov_b32 v36, v24"); A(f"v_mov_b32 v38, v25"); A(f"v_mov_b32 v37, v28"); A(f"v_mov_b32 v39, v29")
    A(f"s_lshl_b32 s{sT0+2}, s2, 10"); A(f"s_add_u32 s{sT0+2}, s{sT0+2}, {WS_AFF}")
    A.vm(f"buffer_store_dwordx2 v[36:37], v34, s[{SWS}:{SWS+3}], s{sT0+2} offen", "aff")
    A.vm(f"buffer_store_dwordx2 v[38:39], v34, s[{SWS}:{SWS+3}], s{sT0+2} offen offset:64", "aff")
    A("s_nop 1")
    if mlp:
        both(lambda e: f"v_sub_f32 v{30+e}, v{20+e}, v{24+e}")
        both(lambda e: f"v_mul_f32 v{30+e}, v{30+e}, v{28+e}")
        rnd(30, 30)
        both(lambda e: f"v_mul_f32 v{32+e}, v{28+e}, v{28+e}")
        both(lambda e: f"v_mul_f32 v{32+e}, v{32+e}, v{22+e}")
        rnd(32, 32)
        both(lambda e: f"v_add_f32 v{32+e}, {eps}, v{32+e}")
        rnd(32, 32)
        both(lambda e: f"v_sqrt_f32 v{32+e}, v{32+e}")
        rnd(32, 32)
        both(lambda e: f"v_rcp_f32 v{32+e}, v{32+e}")
        both(lambda e: f"v_fma_f32 v{24+e}, v{30+e}, v{26+e}, v{24+e}")
        both(lambda e: f"v_mul_f32 v{28+e}, v{28+e}, v{32+e}")
        both(lambda e: f"v_mul_f32 v{28+e}, {hexf(KSC)}, v{28+e}")
    rnd(34, 28)
    both(lambda e: f"v_lshrrev_b32 v{36+e}, 16, v{34+e}")
    both(lambda e: f"v_mul_f32 v{38+e}, v{34+e}, v{24+e}")
    both(lambda e: f"v_sub_f32 v{38+e}, 0, v{38+e}")
    def norm(e, c):
        b = Rreg(e, c)
        T = 40
        for j in range(4):
            A(f"v_dot2_f32_bf16 v{T+2*j}, v{b+j}, v{36+e}, v{38+e}")
            A(f"v_dot2_f32_bf16 v{T+2*j+1}, v{b+j}, v{34+e}, v{38+e}")
        A("s_nop 0")
        for j in range(4):
            if j == 3: A("s_nop 0")
            A(f"v_cvt_pk_bf16_f32 v{b+j}, v{T+2*j}, v{T+2*j+1}")
    def ywrite(e, c, slot):
        if slot < 4:
            A.lds(f"ds_write_b128 v{10+e}, {vr(Rreg(e,c),4)} offset:{slot*16384}", "yw")
        else:
            A(f"v_add_u32 v48, 0x10000, v{10+e}")
            A.lds(f"ds_write_b128 v48, {vr(Rreg(e,c),4)}", "yw")
    def yread(s, slot):
        if slot < 4:
            A.lds(f"ds_read_b128 {vr(YB+4*s,4)}, v{12+(s&3)} offset:{slot*16384}", ("y", s))
        else:
            A(f"v_add_u32 v48, 0x10000, v{12+(s&3)}")
            A.lds(f"ds_read_b128 {vr(YB+4*s,4)}, v48", ("y", s))
    def pop(n=99):
        while late and n > 0:
            n -= 1
            for o in late.pop(0): A.op(o)
    if not opt.la: pop()
    stamp(A, opt, 1)
    for c in range(5):
        for e in range(2):
            norm(e, c); ywrite(e, c, c)
            if opt.la == 1: pop(1)
    if opt.la in (1, 2): pop()
    A.wait_all()
    if mlp and opt.pst == 2 and 0 < 3: stamp(A, opt, 5)
    A("s_barrier")
    for s in range(20): yread(s, s >> 2)
    for c in range(5, 9):
        for e in range(2): norm(e, c); pop(1)
    pop()
    if opt.ov:
        for o in pre2: A.op(o)
        A.wait(vm=[("d1", 0)])
    A.wait_all()
    if mlp and opt.pst == 2 and 1 < 3: stamp(A, opt, 6)
    A("s_barrier")
    if opt.ov:
        stamp(A, opt, 2)
        for c in range(9 - opt.yw, 9):
            for e in range(2): ywrite(e, c, c - 5)
        return
    for c in range(5, 9):
        for e in range(2): ywrite(e, c, c - 5)
    A.wait_all()
    if mlp and opt.pst == 2 and 2 < 3: stamp(A, opt, 7)
    A("s_barrier")
    for s in range(20, 36): yread(s, (s >> 2) - 5)
    A.wait_all()
    if mlp and opt.pst == 2 and 3 < 3: stamp(A, opt, 8)
    A("s_barrier")
    stamp(A, opt, 2)
    pflush(A, opt, [8, 9, 10, 11, 12])

def cost(o):
    s = o if isinstance(o, str) else o[1]
    if isinstance(s, str) and s.startswith(("v_exp", "v_rcp")): return 8
    if isinstance(s, str) and s.startswith(("v_cvt", "v_dot")) or "dpp" in str(s): return 4
    return 3

def spread(slots, lo, hi, ops, key="valu"):
    tot = sum(cost(o) for o in ops)
    acc = 0
    glue = False
    for o in ops:
        if not glue: j = lo + int(acc * (hi - lo) / tot)
        glue = isinstance(o, str) and o.startswith(("s_cmp", "v_cmp"))
        slots[j].setdefault(key, []).append(o)
        acc += cost(o)

def gelu_ops(acc, dst, grp=4):
    ops = []
    for g0 in range(0, 16, grp):
        es = range(g0, g0 + grp)
        T = lambda e: TMP + (e % 8)
        for e in es: ops.append(f"v_fma_f32 v{T(e)}, v{acc+e}, v{acc+e}, s{sC0K}")
        for e in es: ops.append(f"v_mul_f32 v{T(e)}, v{T(e)}, v{acc+e}")
        for e in es: ops.append(f"v_exp_f32 v{T(e)}, v{T(e)}")
        for e in es: ops.append(f"v_add_f32 v{T(e)}, 1.0, v{T(e)}")
        for e in es: ops.append(f"v_rcp_f32 v{T(e)}, v{T(e)}")
        for e in es: ops.append(f"v_mul_f32 v{T(e)}, v{T(e)}, v{acc+e}")
        for e in es[::2]: ops.append(f"v_cvt_pk_bf16_f32 v{dst + e//2}, v{T(e)}, v{T(e+1)}")
    return ops

def emit_slots(A, slots):
    for s in slots:
        for k in ("pre",):
            for o in s.get(k, []): A.op(o)
        if s.get("mfma"): A(s["mfma"])
        for k in ("bar", "rd", "dma", "x", "valu"):
            for o in s.get(k, []): A.op(o)

WT = " sc0 sc1"
def store_ops(acc, SREG, tag):
    ops = [f"v_cvt_pk_bf16_f32 v{SREG+i}, v{acc+2*i}, v{acc+2*i+1}" for i in range(8)]
    ops.insert(4, ("vm", f"buffer_store_dwordx4 {vr(SREG,4)}, v{vXA}, s[{SWS}:{SWS+3}], s{sST} offen{WT}{NTX[1]}", tag))
    ops.append(("vm", f"buffer_store_dwordx4 {vr(SREG+4,4)}, v{vXA}, s[{SWS}:{SWS+3}], s{sST} offen offset:1024{WT}{NTX[1]}", tag))
    return ops

def announce(lbl, val=1):
    return [f"s_cmp_lg_u32 s{sW}, 0", f"s_cbranch_scc1 {lbl}",
            f"s_lshl_b32 s{sT0}, s{sMT}, 4", f"s_add_u32 s{sT0}, s{sT0}, s{sSL}",
            f"v_mov_b32 v0, {val}", "s_mov_b64 exec, 1",
            f"buffer_store_byte v0, off, s[{SM}:{SM+3}], s{sT0} sc0 sc1", "s_mov_b64 exec, -1", f"{lbl}:"]

def clear_flag(A, mlp=False):
    A(f"s_lshl_b32 s{sT0}, s{sMT}, 3"); A(f"s_add_u32 s{sT0}, s{sT0}, s{sW}")
    A(f"s_mul_i32 s{sFLG}, s{sT0}, {FSTR}"); A(f"s_add_u32 s{sFLG}, s{sFLG}, {WS_FLAG}")
    if mlp: return
    A(f"s_add_u32 s{sMYF}, s{sSL}, s{sFLG}")
    A(f"v_mov_b32 v9, 0")
    A("s_mov_b64 exec, 1")
    A.vm(f"buffer_store_byte v9, off, s[{SWS}:{SWS+3}], s{sMYF} sc0 sc1", "clr")
    A("s_mov_b64 exec, -1")

def check_all(A, lbl, vt, pat="0x01010101"):
    A(f"v_lshlrev_b32 v{vt}, 2, v{vLANE}")
    A(f"s_movk_i32 s{sT0}, 0x4000")
    A(f"{lbl}:")
    A(f"buffer_load_dword v{vt+1}, v{vt}, s[{SM}:{SM+3}], 0 offen sc0 sc1")
    A(f"s_sub_u32 s{sT0}, s{sT0}, 1")
    A(f"s_cbranch_scc1 {lbl}_d")
    A("s_waitcnt vmcnt(0)")
    A(f"v_and_b32 v{vt+1}, {pat}, v{vt+1}")
    A(f"v_cmp_ne_u32 vcc, {pat}, v{vt+1}")
    A(f"s_cbranch_vccnz {lbl}")
    A(f"{lbl}_d:")
    A("s_waitcnt vmcnt(0)")

def mlp_path(A, opt):
    D = 3
    if opt.pst == 1: stamp(A, opt, 5)
    srd(A, SA, kp(10), 5308416)
    srd(A, SB, kp(12), 5308416, lower=4096)
    srd(A, SM, kp(11), 9216)
    A(f"s_mul_i32 s{sT0+2}, s{sMT}, 43"); A(f"s_lshr_b32 s{sT0+2}, s{sT0+2}, 8")
    A(f"s_mul_i32 s{sT0+2}, s{sT0+2}, 6"); A(f"s_sub_u32 s{sROT}, s{sMT}, s{sT0+2}")
    A(f"s_mul_i32 s{sG}, s{sSL}, 11"); A(f"s_lshr_b32 s{sG}, s{sG}, 5")
    A(f"s_mul_i32 s{sT0+2}, s{sG}, 3"); A(f"s_sub_u32 s{sCF}, s{sSL}, s{sT0+2}")
    A(f"s_mul_i32 s{sT0+2}, s{sCF}, 3"); A(f"s_add_u32 s{sROT2}, s{sMT}, 9"); A(f"s_sub_u32 s{sROT2}, s{sROT2}, s{sT0+2}")
    for _ in range(2):
        A(f"s_cmp_ge_u32 s{sROT2}, 9"); A(f"s_cselect_b32 s{sT0+2}, 9, 0"); A(f"s_sub_u32 s{sROT2}, s{sROT2}, s{sT0+2}")
    A(f"s_sub_u32 s{sCP}, s{sCF}, 1"); A(f"s_cselect_b32 s{sCP}, 2, s{sCP}")
    A(f"s_getreg_b32 s{sXID}, hwreg(HW_REG_XCC_ID, 0, 4)"); A(f"s_lshl_b32 s{sXID}, s{sXID}, 8")
    if opt.forcefb: A(f"s_lshl_b32 s{sXID}, s{sCF}, 8")
    for i in range(9): A(f"s_mov_b32 s{sD1+i}, {i*73728 - (i%4)*1024}")
    A(f"s_mul_i32 s{sM0W}, s{sW}, 9216")
    A(f"v_bfe_u32 v9, v{vLANE}, 2, 3")
    A(f"v_lshrrev_b32 v10, 5, v{vLANE}")
    A(f"v_and_b32 v11, 3, v{vLANE}")
    A(f"v_lshlrev_b32 v11, 4, v11")
    A(f"v_lshl_add_u32 v10, v10, 6, v11")
    A(f"v_mul_u32_u24 v{vDMA}, 9216, v9")
    A(f"v_add_u32 v{vDMA}, v{vDMA}, v10")
    A(f"s_mul_i32 s{sT0+2}, s{sW}, {72*9216}")
    A(f"s_mul_i32 s{sT0+3}, s{sSL}, 768")
    A(f"s_add_u32 s{sT0+2}, s{sT0+2}, s{sT0+3}")
    A(f"v_add_u32 v{vDMA}, s{sT0+2}, v{vDMA}")
    A(f"s_lshl_b32 s{sCOL}, s{sROT}, 7")
    A(f"v_add_u32 v{vDMA2}, s{sCOL}, v{vDMA}")
    late = [dma1(A, 0, i) for i in range(9)]
    if not opt.lsp:
        for l in late:
            for o in l: A.op(o)
        late = []
    def nextcol():
        return [f"s_add_u32 s{sCOL}, s{sCOL}, 128", f"s_cmp_ge_u32 s{sCOL}, 768", f"s_cselect_b32 s{sCOL}, 0, s{sCOL}",
                f"v_add_u32 v{vDMA2}, s{sCOL}, v{vDMA}"]
    A(f"s_mul_i32 s{sT0+2}, s{sSL}, 768")
    A(f"v_lshl_add_u32 v49, v0, 1, s{sT0+2}")
    late.append([("vm", f"buffer_load_ushort v49, v49, s[{SM}:{SM+3}], 0 offen", "b1")])
    A(f"v_lshrrev_b32 v9, 5, v{vLANE}"); A("v_lshlrev_b32 v9, 10, v9")
    A(f"v_bfe_u32 v10, v{vLANE}, 2, 2"); A("v_lshl_add_u32 v9, v10, 6, v9")
    A(f"v_bfe_u32 v10, v{vLANE}, 4, 1"); A("v_lshl_add_u32 v9, v10, 5, v9")
    A(f"v_and_b32 v10, 3, v{vLANE}"); A("v_lshl_add_u32 v9, v10, 3, v9")
    A(f"s_lshl_b32 s{sT0+2}, s{sFG}, 9")
    A(f"v_add_u32 v{vTR}, s{sT0+2}, v9")
    A(f"v_add_u32 v{vTR+1}, 0x10000, v{vTR}")
    A(f"v_add_u32 v{vTR+2}, 0x20000, v{vTR}")
    A(f"v_lshrrev_b32 v9, 5, v{vLANE}")
    A(f"s_lshl_b32 s{sT0+2}, s{sFG}, 7"); A(f"s_add_u32 s{sT0+2}, s{sT0+2}, {LDS_B1}")
    A(f"v_lshl_add_u32 v{vB1}, v9, 4, s{sT0+2}")
    A(f"s_mov_b32 s{sC0K}, {hexf(C0K)}")
    A(f"s_mul_i32 s{sT0+2}, s{sW}, 6")
    A(f"s_mul_i32 s{sT0+6}, s{sSL}, {384*1152}")
    for i in range(6):
        A(f"s_add_u32 s{sT0+3}, s{sT0+2}, {i}")
        A(f"s_lshr_b32 s{sT0+4}, s{sT0+3}, 3")
        A(f"s_add_u32 s{sT0+4}, s{sT0+4}, s{sROT}")
        A(f"s_cmp_ge_u32 s{sT0+4}, 6"); A(f"s_cselect_b32 s{sT0+5}, 6, 0"); A(f"s_sub_u32 s{sT0+4}, s{sT0+4}, s{sT0+5}")
        A(f"s_lshl_b32 s{sT0+4}, s{sT0+4}, 3")
        A(f"s_and_b32 s{sT0+3}, s{sT0+3}, 7")
        A(f"s_add_u32 s{sT0+4}, s{sT0+4}, s{sT0+3}")
        A(f"s_mul_i32 s{sT0+4}, s{sT0+4}, 9216")
        A(f"s_add_u32 s{sT0+4}, s{sT0+4}, s{sT0+6}")
        A(f"s_add_u32 s{sD2+i}, s{sT0+4}, {4096 - (i%4)*1024}")
    A(f"s_sub_u32 s{sT0+2}, s{sW}, s{sROT}")
    A(f"s_cmp_lt_i32 s{sT0+2}, 0"); A(f"s_cselect_b32 s{sT0+3}, 6, 0"); A(f"s_add_u32 s{sT0+2}, s{sT0+2}, s{sT0+3}")
    A(f"s_lshl_b32 s{sT0+2}, s{sT0+2}, 8"); A(f"s_add_u32 s{sT0+2}, s{sT0+2}, {LDS_B1}")
    A(f"s_cmp_ge_u32 s{sW}, 6"); A(f"s_cselect_b32 s{sT0+2}, {LDS_B1 + 2048}, s{sT0+2}")
    A(f"v_lshl_add_u32 v50, v{vLANE}, 2, s{sT0+2}")

    ln_prologue_pre = len(A.L)
    R = Rec()
    R(("wv", ["b1"]))
    R("v_lshlrev_b32 v49, 16, v49")
    R(f"v_mul_f32 v49, {hexf(KSC)}, v49")
    R.lds("ds_write_b32 v50, v49", "b1w")
    srd(R, SM, kp(15), 256)
    clear_flag(R, True)
    R(f"s_lshl_b32 s{sT0}, s{sG}, 7"); R(f"s_add_u32 s{sT0}, s{sT0}, 128"); R(f"s_add_u32 s{sLOC}, s{sT0}, s{sFLG}")
    R(f"s_lshl_b32 s{sCF}, s{sCF}, 2"); R(f"s_add_u32 s{sCF}, s{sCF}, s{sLOC}")
    R(f"s_lshl_b32 s{sCP}, s{sCP}, 2"); R(f"s_add_u32 s{sCP}, s{sCP}, s{sLOC}")
    R(f"v_mov_b32 v9, s{sXID}"); R("s_mov_b64 exec, 1")
    R.vm(f"buffer_store_dword v9, off, s[{SWS}:{SWS+3}], s{sCF} sc0 sc1", "clr")
    R("s_mov_b64 exec, -1")
    for o in nextcol(): R.op(o)
    ln_prologue(A, opt, True, late, R)
    if not opt.ov:
        for o in R: A.op(o)
        for i in range(9):
            for o in dma1(A, 1, i): A.op(o)
        A.wait(lds=["b1w"], vm=[("d1", 0)])
        A("s_barrier")

    HP = YB
    H5 = YB + 48
    SREG = YB + 56
    vP2 = YB + 64
    vHX = YB + 70
    def hown(t): return HOWN + 8 * t if t < 5 else H5
    korder = [("o", t, kk) for t in range(5) for kk in range(2)] + [("p", t, kk) for t in range(4) for kk in range(2)] + \
             [("o", 5, 0), ("o", 5, 1)] + [("p", t, kk) for t in (4, 5) for kk in range(2)]
    units = []
    for s in range(6):
        for k in range(36): units.append((1, s, k))
    for j in range(9):
        for k in range(24): units.append((2, j, k))
    NU = len(units)
    def rd(u):
        ph, s, k = units[u]
        b = ABUF + 4 * (u % 4)
        if ph == 1:
            pos = (s & 1) * BUFSZ + k * 2048
            return [("lds", f"ds_read_b64_tr_b16 {vr(b+2*r,2)}, v{vTR + ((pos + r*256) >> 16)} offset:{(pos + r*256) & 0xffff}", ("a", u)) for r in range(2)]
        who, t, kk = korder[k]
        areg = vP2 + (s % 3) * 2 + (0 if who == "o" else 1)
        return [("lds", f"ds_read_b64_tr_b16 {vr(b+2*r,2)}, v{areg} offset:{(8*t + 2*kk + r) * 1024}", ("a", u)) for r in range(2)]
    def b1rd(s):
        return [("lds", f"ds_read_b128 {vr(ACC[s&1] + 4*j, 4)}, v{vB1} offset:{s*256 + j*32}", ("b1", s)) for j in range(4)]
    slots = []
    for u, (ph, s, k) in enumerate(units):
        b = ABUF + 4 * (u % 4)
        acc = ACC[s & 1]
        sl = {}
        w = [("a", u)]
        if ph == 1:
            if k == 0: w.append(("b1", s))
            sl["mfma"] = f"v_mfma_f32_32x32x16_bf16 {vr(acc,16)}, {vr(b,4)}, {vr(YB+4*k,4)}, {vr(acc,16)}"
        else:
            who, t, kk = korder[k]
            hb = (hown(t) if who == "o" else HP + 8 * t) + 4 * kk
            if who == "p": w.append(("hx", t))
            sl["mfma"] = f"v_mfma_f32_32x32x16_bf16 {vr(acc,16)}, {vr(b,4)}, {vr(hb,4)}, {'0' if k == 0 else vr(acc,16)}"
        sl["pre"] = [("wl", w)]
        slots.append(sl)
    for u in range(NU - D):
        ph, s, k = units[u + D]
        if k == 0:
            slots[u]["bar"] = [("wv", [("d1", s) if ph == 1 else ("d2", s)]), "s_barrier"]
        slots[u]["rd"] = rd(u + D)
    P2 = 216
    if opt.ov: overlap0(slots, opt, [dma1(A, 1, i) for i in range(9)])
    slots[36 + 16].setdefault("x", []).extend(announce("L_ann_m"))
    for s in range(2, 6):
        base = (s - 1) * 36 - 2
        slots[base].setdefault("dma", []).extend(nextcol())
        for i in range(9):
            if opt.stg:
                d = dma1(A, s, i)
                e = [o if isinstance(o, str) else o[1] for o in d]
                slots[base + 1 + (opt.d1 * i) // 4].setdefault("dma", []).extend([f"s_cmp_ge_u32 s{sW}, 4", f"s_cbranch_scc1 L_sg{s}_{i}a"] + e + [f"L_sg{s}_{i}a:"])
                slots[base + 1 + opt.stg + (opt.d1 * i) // 4].setdefault("dma", []).extend([f"s_cmp_lt_u32 s{sW}, 4", f"s_cbranch_scc1 L_sg{s}_{i}b"] + d + [f"L_sg{s}_{i}b:"])
            else:
                slots[base + 1 + (opt.d1 * i) // 4].setdefault("dma", []).extend(dma1(A, s, i))
    def dma2(j, i):
        ops = []
        if i % 4 == 0:
            ops += [f"s_add_u32 m0, s{sM0A}, {(j % 3) * 49152 + i * 1024}", "s_nop 0"]
        ops.append(("vm", f"buffer_load_dwordx4 v{vDMA2}, s[{SB}:{SB+3}], s{sD2+i} offen offset:{(i%4)*1024} lds", ("d2", j)))
        return ops
    def nextdp(first):
        if first:
            return [f"s_mul_i32 s{sM0A}, s{sW}, 6144",
                    f"v_bfe_u32 v9, v{vLANE}, 2, 3", f"v_lshrrev_b32 v10, 5, v{vLANE}", f"v_and_b32 v11, 3, v{vLANE}",
                    "v_lshlrev_b32 v11, 4, v11", "v_lshl_add_u32 v10, v10, 6, v11",
                    f"v_mul_u32_u24 v{vDMA}, 1152, v9", f"v_add_u32 v{vDMA}, v{vDMA}, v10",
                    f"s_lshl_b32 s{sCOL}, s{sROT2}, 7", f"v_add_u32 v{vDMA2}, s{sCOL}, v{vDMA}"]
        return [f"s_add_u32 s{sCOL}, s{sCOL}, 128", f"s_cmp_ge_u32 s{sCOL}, 1152", f"s_cselect_b32 s{sCOL}, 0, s{sCOL}",
                f"v_add_u32 v{vDMA2}, s{sCOL}, v{vDMA}"]
    d2base = {0: 5 * 36 - 2, 1: P2 - 2, 2: P2 + 24 - 2, 3: P2 + 24 + 10}
    for j in range(4, 9): d2base[j] = P2 + (j - 2) * 24 + 9
    for j in range(9):
        base = d2base[j]
        slots[base].setdefault("dma", []).extend(nextdp(j == 0))
        for i in range(6): slots[base + 1 + (2 * i if j < 4 else (opt.ds * i) // 4)].setdefault("dma", []).extend(dma2(j, i))
    for s in range(1, 6):
        spread(slots, s * 36 + 2, s * 36 + 31, gelu_ops(ACC[(s - 1) & 1], hown(s - 1)))
    for s in range(1, 6):
        slots[s * 36 - 5].setdefault("x", []).extend(b1rd(s))
    spread(slots, P2 + 2, P2 + 15, gelu_ops(ACC[1], H5))
    S5 = 5 * 36
    setup = [f"v_lshlrev_b32 v9, 4, v{vLANE}",
             f"s_lshl_b32 s{sT0+2}, s{sW}, 11", f"s_add_u32 s{sT0+2}, s{sT0+2}, 49152",
             f"v_add_u32 v{vHX}, s{sT0+2}, v9", f"v_add_u32 v{vHX+1}, {147456-49152}, v{vHX}",
             f"v_xor_b32 v{vHX+2}, 0x2000, v{vHX}", f"v_add_u32 v{vHX+3}, {147456-49152}, v{vHX+2}",
             f"v_lshrrev_b32 v9, 5, v{vLANE}", "v_lshlrev_b32 v9, 8, v9",
             f"v_bfe_u32 v10, v{vLANE}, 2, 2", "v_lshl_add_u32 v9, v10, 6, v9",
             f"v_and_b32 v10, 1, v{vLANE}", "v_lshl_add_u32 v9, v10, 5, v9",
             f"v_bfe_u32 v10, v{vLANE}, 1, 1", "v_lshl_add_u32 v9, v10, 3, v9",
             f"v_bfe_u32 v10, v{vLANE}, 4, 1", "v_lshl_add_u32 v9, v10, 4, v9",
             f"s_mul_i32 s{sT0+2}, s{sFG}, {4096+512}",
             f"v_add_u32 v{vP2}, s{sT0+2}, v9", f"v_xor_b32 v{vP2+1}, 0x1000, v{vP2}",
             f"v_add_u32 v{vP2+2}, 49152, v{vP2}", f"v_add_u32 v{vP2+3}, 49152, v{vP2+1}",
             f"v_add_u32 v{vP2+4}, 98304, v{vP2}", f"v_add_u32 v{vP2+5}, 98304, v{vP2+1}",
             f"v_and_b32 v9, 31, v{vLANE}", f"v_lshrrev_b32 v10, 5, v{vLANE}", "v_lshlrev_b32 v9, 5, v9",
             f"v_lshl_add_u32 v{vXA}, v10, 4, v9",
             f"s_lshl_b32 s{sT0+2}, s{sMT}, 2", f"s_add_u32 s{sT0+2}, s{sT0+2}, s{sTG}",
             f"s_mul_i32 s{sT0+2}, s{sT0+2}, {18*16384}", f"s_mul_i32 s{sT0+3}, s{sG}, 2048",
             f"s_add_u32 s{sT0+2}, s{sT0+2}, s{sT0+3}", f"s_lshl_b32 s{sT0+3}, s{sFG}, 14",
             f"s_add_u32 s{sT0+2}, s{sT0+2}, s{sT0+3}", f"v_add_u32 v{vXA}, s{sT0+2}, v{vXA}",
             f"s_lshl_b32 s{sST}, s{sROT2}, 15", f"s_add_u32 s{sST2}, s{sST}, {opt.ch*PLANE}"]
    spread(slots, S5 + 19, S5 + 23, setup[:7], "x")
    spread(slots, S5 + 25, S5 + 32, setup[7:], "x")
    def hw(t):
        a, off = (vHX, t * 16384) if t < 3 else ((vHX + 1, 0) if t == 3 else (vHX, 49152 + (t - 4) * 16384))
        if off + 1024 > 65535: return None
        return [("lds", f"ds_write_b128 v{a}, {vr(hown(t)+4*kk,4)} offset:{off + kk*1024}", ("hw", t)) for kk in range(2)]
    def hr(t):
        a, off = (vHX + 2, t * 16384) if t < 3 else ((vHX + 3, 0) if t == 3 else (vHX + 2, 49152 + (t - 4) * 16384))
        return [("lds", f"ds_read_b128 {vr(HP+8*t+4*kk,4)}, v{a} offset:{off + kk*1024}", ("hx", t)) for kk in range(2)]
    slots[S5 + 22].setdefault("bar", []).append("s_barrier")
    for t in range(4): slots[S5 + 23 + t].setdefault("x", []).extend(hw(t))
    slots[S5 + 29].setdefault("bar", []).extend([("wl", [("hw", 3)]), "s_barrier"])
    for t in range(4): slots[S5 + 29 + t].setdefault("x", []).extend(hr(t))
    slots[S5 + 33]["bar"].insert(0, ("wl", [("hx", 3)]))
    slots[P2 + 1].setdefault("x", []).extend(hw(4))
    slots[P2 + 2].setdefault("x", []).extend([f"v_add_u32 v{vHX+1}, 0x10000, v{vHX}", f"v_add_u32 v{vHX+3}, 0x10000, v{vHX+2}"])
    slots[P2 + 15].setdefault("x", []).extend(
        [("lds", f"ds_write_b128 v{vHX+1}, {vr(H5+4*kk,4)} offset:{kk*1024}", ("hw", 5)) for kk in range(2)])
    slots[P2 + 17].setdefault("bar", []).extend([("wl", [("hw", 5)]), "s_barrier"])
    slots[P2 + 17].setdefault("x", []).extend(hr(4) +
        [("lds", f"ds_read_b128 {vr(HP+40+4*kk,4)}, v{vHX+3} offset:{kk*1024}", ("hx", 5)) for kk in range(2)])
    slots[P2 + 21]["bar"].insert(0, ("wl", [("hx", 5)]))
    import red
    rr = red.R("m")
    nextst = [f"s_add_u32 s{sST}, s{sST}, 32768", f"s_cmp_ge_u32 s{sST}, {9*32768}", f"s_cselect_b32 s{sST}, 0, s{sST}", f"s_add_u32 s{sST2}, s{sST}, {opt.ch*PLANE}"]
    for j in range(1, 9):
        so = red.store_ops(rr, j - 1, ACC[(j - 1) & 1], SREG)
        if j == 7:
            late = [o for o in so if not isinstance(o, str)]
            so = [o for o in so if isinstance(o, str)]
            slots[P2 + j * 24 + 14].setdefault("valu", []).append(late[0])
            slots[P2 + j * 24 + 15].setdefault("valu", []).extend([late[1]] + nextst)
            spread(slots, P2 + j * 24 + 2, P2 + j * 24 + 6, so)
        else:
            spread(slots, P2 + j * 24 + 2, P2 + j * 24 + opt.sp, so + nextst)
    red.plan(rr, slots, P2, 24, opt)
    HS = 3 + opt.hsl
    slots[(5 * 36 + 12) if opt.hsl else (4 * 36 + 20)].setdefault("dma", []).extend(red.one(("vm", f"buffer_load_dwordx3 v[12:14], off, s[{SWS}:{SWS+3}], s{sLOC} sc0 sc1", "xid")))
    slots[(P2 + 12) if opt.hsl else (5 * 36 + 12)].setdefault("x", []).extend([("wv", ["xid"]), "v_xor_b32 v13, v12, v13", "v_xor_b32 v14, v12, v14", "v_or_b32 v13, v13, v14",
        "s_nop 0", f"v_readfirstlane_b32 s{sLOC}, v13", f"s_and_b32 s{sLOC}, s{sLOC}, 0xf00"])
    if opt.pf in (1, 2):
        pf = [f"s_and_b32 s{sT0}, s{sMT}, 7", f"s_lshl_b32 s{sT0}, s{sT0}, 3", f"s_add_u32 s{sT0}, s{sT0}, s{sW}",
              f"s_mul_i32 s{sT0}, s{sT0}, {54*128}", f"s_mul_i32 s{sT0+1}, s{sSL}, {384*1152}", f"s_add_u32 s{sT0}, s{sT0}, s{sT0+1}",
              f"s_add_u32 s{sT0}, s{sT0}, 4096", f"v_lshlrev_b32 v14, 6, v{vLANE}",
              ("vm", f"buffer_load_dword v15, v14, s[{SB}:{SB+3}], s{sT0} offen", "pf")]
        slots[2 * 36 + 18].setdefault("dma", []).extend(pf)
        pf[-3] = f"s_add_u32 s{sT0}, s{sT0}, 8192"
        slots[3 * 36 + 18].setdefault("dma", []).extend(pf)
    slots[HS * 36 - 2]["dma"] = [f"s_cmp_lg_u32 s{sW}, 0", "s_cbranch_scc1 L_hs0", f"v_lshlrev_b32 v12, 2, v{vLANE}",
        f"buffer_load_dword v13, v12, s[{SM}:{SM+3}], 0 offen sc0 sc1", "L_hs0:"] + slots[HS * 36 - 2]["dma"]
    B = Asm(); check_all(B, "L_hs2", 12)
    slots[(HS + 1) * 36 - D]["bar"][1:1] = [f"s_cmp_lg_u32 s{sW}, 0", "s_cbranch_scc1 L_hs1",
        "v_and_b32 v13, 0x01010101, v13", "v_cmp_ne_u32 vcc, 0x01010101, v13", "s_cbranch_vccz L_hs1"] + B.L + ["L_hs1:"]
    cs = [f"v_and_b32 v104, 31, v{vLANE}", f"v_lshrrev_b32 v105, 5, v{vLANE}", "v_lshlrev_b32 v104, 5, v104", "v_lshl_add_u32 v108, v105, 4, v104",
          f"s_lshl_b32 s{sT0+2}, s{sMT}, 2", f"s_add_u32 s{sT0+2}, s{sT0+2}, s{sTG}",
          f"s_mul_i32 s{sT0+2}, s{sT0+2}, {18*16384}", f"s_mul_i32 s{sT0+3}, s{sG}, 2048",
          f"s_add_u32 s{sT0+2}, s{sT0+2}, s{sT0+3}", f"s_lshl_b32 s{sT0+3}, s{sFG}, 14",
          f"s_add_u32 s{sT0+2}, s{sT0+2}, s{sT0+3}", f"v_add_u32 v108, s{sT0+2}, v108"] + [f"v_mov_b32 v{104+i}, -1" for i in range(4)]
    spread(slots, *((10, 17) if opt.cpv >= 5 else (17, 25)), cs, "x")
    cpos = [opt.cpos, [58, 62, 94, 98, 130, 166], [94, 98, 130, 134, 166, 170], [58, 94, 130, 134, 166, 170], [94, 97, 100, 130, 133, 136],
            [18, 19, 44, 80, 116, 152], [18, 19, 52, 88, 124, 160], [18, 44, 45, 80, 116, 152], [18, 19, 20, 44, 80, 116], []][opt.cpv]
    for i, pos in enumerate(cpos):
        slots[pos].setdefault("dma", []).extend([f"s_add_u32 s{sT0+8}, s{sROT2}, {6 + i//2}", f"s_cmp_ge_u32 s{sT0+8}, 9", f"s_cselect_b32 s{sT0+9}, 9, 0",
            f"s_sub_u32 s{sT0+8}, s{sT0+8}, s{sT0+9}", f"s_lshl_b32 s{sT0+8}, s{sT0+8}, 15",
            ("vm", f"buffer_store_dwordx4 v[104:107], v108, s[{SWS}:{SWS+3}], s{sT0+8} offen offset:{(i&1)*1024} sc0 sc1{' nt' if opt.ntc & 1 else ''}", "clr2")])
    slots[P2 + 10].setdefault("x", []).extend(announce("L_ann_m2", 3))
    q = P2 + 5 * 24 + 9
    B = Asm(); srd(B, SM, kp(15), 256)
    slots[q - 1].setdefault("x", []).extend(B.L)
    slots[q]["dma"] = [f"s_cmp_lg_u32 s{sW}, 0", "s_cbranch_scc1 L_hs3", f"v_lshlrev_b32 v12, 2, v{vLANE}",
        f"buffer_load_dword v13, v12, s[{SM}:{SM+3}], 0 offen sc0 sc1", "L_hs3:"] + slots[q]["dma"]
    B = Asm(); check_all(B, "L_hs5", 12, "0x02020202")
    slots[P2 + 7 * 24 - D]["bar"][1:1] = [f"s_cmp_lg_u32 s{sW}, 0", "s_cbranch_scc1 L_hs4",
        "v_and_b32 v13, 0x02020202, v13", "v_cmp_ne_u32 vcc, 0x02020202, v13", "s_cbranch_vccz L_hs4"] + B.L + ["L_hs4:"]
    if opt.pst == 3:
        for i in range(3): slots[36 * (i + 1 + opt.po)]["pre"] = ["s_memrealtime s[100:101]", ("wall", True, False), f"s_mov_b32 s{76+5+i}, s100"] + slots[36 * (i + 1 + opt.po)]["pre"]
    for o in b1rd(0): A.op(o)
    for u in range(D):
        for o in rd(u): A.op(o)
    emit_slots(A, slots[:P2])
    stamp(A, opt, 3)
    emit_slots(A, slots[P2:])
    A("s_nop 7"); A("s_nop 3")
    for o in red.store_ops(rr, 8, ACC[0], SREG): A.op(o)
    stamp(A, opt, 4)
    red.tail(A, rr, opt)
    rstamp(A, opt, 14)
    A("s_endpgm")

def main_kernel(A, opt):
    K = NAME + "_kernel"
    NTX[0] = " nt" if opt.ntc & 4 else ""; NTX[1] = " nt" if opt.ntc & 2 else ""
    A(f".globl {K}"); A(".p2align 8"); A(f".type {K},@function"); A(f"{K}:")
    A("s_cmp_ge_u32 s2, 256")
    A("s_cbranch_scc1 L_exit")
    A(f"s_load_dwordx16 s[{68}:{83}], s[0:1], 0")
    A(f"s_load_dwordx16 s[{84}:{99}], s[0:1], 64")
    A(f"s_load_dwordx2 s[{66}:{67}], s[0:1], 128")
    if opt.stamps: A("s_memtime s[100:101]"); A("s_memrealtime s[44:45]")
    if opt.cpf == 1:
        A("s_getpc_b64 s[46:47]"); A("L_pc0:")
        A(f"v_lshlrev_b32 v108, 7, v0")
        A(f"v_min_u32 v108, L_exit-L_pc0, v108")
        A("v_mov_b32 v109, s47")
        A("v_add_co_u32 v108, vcc, s46, v108")
        A("v_addc_co_u32 v109, vcc, 0, v109, vcc")
        A("global_load_dword v110, v[108:109], off")
    A(f"v_lshrrev_b32 v2, 6, v0")
    A(f"v_and_b32 v{vLANE}, 63, v0")
    A(f"v_readfirstlane_b32 s{sW}, v2")
    if opt.cpf >= 2:
        lo, sh = {2: (4, 15), 3: (7, 13), 4: (6, 14)}[opt.cpf]
        A("s_getpc_b64 s[46:47]"); A("L_pc0:")
        A(f"s_cmp_lt_u32 s{sW}, {lo}"); A("s_cbranch_scc1 L_pc1")
        A(f"s_bfe_u32 s48, s2, {((16 - sh) << 16) | 3}"); A(f"s_lshl_b32 s48, s48, {sh}")
        A(f"v_subrev_u32 v108, {lo*64}, v0")
        A(f"v_lshl_add_u32 v108, v108, 7, s48")
        A(f"v_min_u32 v108, L_exit-L_pc0, v108")
        A("v_mov_b32 v109, s47")
        A("v_add_co_u32 v108, vcc, s46, v108")
        A("v_addc_co_u32 v109, vcc, 0, v109, vcc")
        A("global_load_dword v110, v[108:109], off")
        A("L_pc1:")
    A(f"s_and_b32 s{sT0}, s2, 7"); A(f"s_lshr_b32 s{sT0+1}, s2, 3")
    if opt.newmap:
        A(f"s_lshr_b32 s{sT0+2}, s{sT0}, 1")
        A(f"s_and_b32 s{sT0+3}, s{sT0+1}, 3")
        A(f"s_mul_i32 s{sSL}, s{sT0+2}, 3"); A(f"s_add_u32 s{sSL}, s{sSL}, s{sT0+3}")
        A(f"s_add_u32 s{sT0+2}, s{sT0+2}, 12")
        A(f"s_cmp_eq_u32 s{sT0+3}, 3"); A(f"s_cselect_b32 s{sSL}, s{sT0+2}, s{sSL}")
        A(f"s_and_b32 s{sT0}, s{sT0}, 1"); A(f"s_lshl_b32 s{sT0}, s{sT0}, 3")
        A(f"s_lshr_b32 s{sMT}, s{sT0+1}, 2"); A(f"s_add_u32 s{sMT}, s{sMT}, s{sT0}")
    else:
        A(f"s_lshl_b32 s{sSL}, s{sT0}, 1"); A(f"s_and_b32 s{sT0+2}, s{sT0+1}, 1"); A(f"s_add_u32 s{sSL}, s{sSL}, s{sT0+2}")
        A(f"s_lshr_b32 s{sMT}, s{sT0+1}, 1")
    A(f"s_and_b32 s{sTG}, s{sW}, 3"); A(f"s_lshr_b32 s{sFG}, s{sW}, 2")
    A(f"s_mov_b32 s{sONE}, 0x3f803f80")
    A(f"s_lshr_b32 s{sWX}, s2, 1"); A(f"s_and_b32 s{sWX}, s{sWX}, {4 if opt.xr else 0}"); A(f"s_xor_b32 s{sWX}, s{sWX}, s{sW}")
    A("s_waitcnt lgkmcnt(0)")
    if opt.stamps: A("v_mov_b32 v15, s100")
    pstamp(A, opt, 8)
    srd(A, SX, kp(0), 2359296)
    srd(A, SWS, 66, WS_SIZE)
    x_loads(A, opt)
    pstamp(A, opt, 9)
    if opt.stamps:
        A(f"s_lshl_b32 s65, s2, 3"); A(f"s_add_u32 s65, s65, s{sW}"); A("s_lshl_b32 s65, s65, 7"); A(f"s_add_u32 s65, s65, {WS_STAMP}")
        if opt.stamps == 1:
            A.vm(f"buffer_store_dword v15, off, s[{SWS}:{SWS+3}], s65", "stamp")
            A(f"v_mov_b32 v15, s44")
            A.vm(f"buffer_store_dword v15, off, s[{SWS}:{SWS+3}], s65 offset:64", "stamp")
    A(f"s_cmp_ge_u32 s{sSL}, 12")
    A("s_cbranch_scc1 L_ssm")
    saved = (list(A.lq), list(A.vq))
    if opt.stamps: A("s_mov_b32 s76, s44")
    mlp_path(A, opt)
    A("L_ssm:")
    if opt.stamps: A("s_mov_b32 s86, s44")
    A.lq, A.vq = saved
    if opt.ssm:
        import gen2_ssm
        SB0[0] = 86
        gen2_ssm.ssm_path(A, opt)
        rstamp(A, opt, 14)
    A("L_exit:")
    A("s_endpgm")

def kp(i):
    return 68 + 2 * i

def kdesc(A, K, nv):
    A(".p2align 6")
    A(f".amdhsa_kernel {K}")
    A(f"  .amdhsa_next_free_vgpr {nv}")
    A("  .amdhsa_next_free_sgpr 102")
    A(f"  .amdhsa_accum_offset {nv}")
    A("  .amdhsa_group_segment_fixed_size 0")
    A("  .amdhsa_kernarg_size 136")
    A("  .amdhsa_user_sgpr_count 2")
    A("  .amdhsa_user_sgpr_kernarg_segment_ptr 1")
    A("  .amdhsa_system_sgpr_workgroup_id_x 1")
    A(".end_amdhsa_kernel")

def build(opt):
    A = Asm()
    A(HDR.rstrip("\n"))
    A("; @launch grid=(256,1,1) block=(512,1,1) lds=163840")
    A('.amdgcn_target "amdgcn-amd-amdhsa--gfx950"')
    A(".text")
    n0 = len(A.L)
    main_kernel(A, opt)
    A.lq = []; A.vq = []
    A.L[n0:], errs = check_hazards(A.L[n0:], fix=True)
    for e in errs[:0]: print(e, file=sys.stderr)
    A('.section .rodata,"a"')
    kdesc(A, NAME + "_kernel", 256)
    return A.text(), errs

if __name__ == "__main__":
    sys.modules["gen2"] = sys.modules["__main__"]
    opt = Opt()
    out = sys.argv[1] if len(sys.argv) > 1 else "k.s"
    for a in sys.argv[2:]:
        k, v = a.split("=")
        setattr(opt, k, int(v))
    t, errs = build(opt)
    if opt.clk: t = t.replace("s_memrealtime", "s_memtime")
    open(out, "w").write(t)
    print(out, len(t.splitlines()), "lines", len(errs), "hazards")
```
